```python
import torch

def _softmax(x, axis=-1):
    return torch.softmax(x, dim=axis)
def _gelu(x):
    return torch.nn.functional.gelu(x, approximate="tanh")
def _silu(x):
    return torch.nn.functional.silu(x)
def _sigmoid(x):
    return torch.sigmoid(x)
def _layernorm(x, axis=-1, eps=1e-5):
    m = x.mean(dim=axis, keepdim=True)
    v = x.var(dim=axis, keepdim=True, unbiased=False)
    return (x - m) / torch.sqrt(v + eps)
def _scatter_add(tgt, idx, src, axis=0):
    return tgt.clone().index_add_(axis, idx, src)
def _segment_sum(src, seg, n):
    out = torch.zeros((n,) + src.shape[1:], dtype=src.dtype)
    return out.index_add_(0, seg, src)
def _pad(x, pw):
    flat = tuple(v for pair in reversed(pw) for v in pair)
    return torch.nn.functional.pad(x, flat)

kernel_name = 'recurrent_scan__gqa_block_cached__swiglu_ffn__decode'

def setup_inputs():

    _w = (lambda a: (lambda t: t.to(torch.bfloat16) if t.is_floating_point() else t)(torch.as_tensor(a)))
    def _A_setup():
        B, Sq, D = 2, 1, 1024
        Hq, Hkv, Sk, Dh = 32, 4, 32768, 128
        assert Hq % Hkv == 0, (Hq, Hkv)
        return {
            "x": _w((lambda *s: torch.randn(*s, dtype=torch.bfloat16) * 0.05)(B, Sq, D)),
            "k_cache": _w((lambda *s: torch.randn(*s, dtype=torch.bfloat16) * 1.6)(B, Hkv, Sk, Dh)),
            "v_cache": _w((lambda *s: torch.randn(*s, dtype=torch.bfloat16) * 0.2)(B, Hkv, Sk, Dh)),
            "wq": _w((lambda *s: torch.randn(*s, dtype=torch.bfloat16) * 1.6)(D, Hq * Dh) * (D ** -0.5)),
            "wo": _w((lambda *s: torch.randn(*s, dtype=torch.bfloat16) * 0.2)(Hq * Dh, D) * ((Hq * Dh) ** -0.5)),
        }
    _A_in = _A_setup()

    def _B_setup():
        B, S, D, F = 2, 1, 1024, 3584
        return {
            "x": _w((lambda *s: torch.randn(*s, dtype=torch.bfloat16) * 0.05)(B, S, D)),
            "w_gate": _w((lambda *s: torch.randn(*s, dtype=torch.bfloat16) * 0.1)(D, F)),
            "w_up": _w((lambda *s: torch.randn(*s, dtype=torch.bfloat16) * 0.1)(D, F)),
            "w_down": _w((lambda *s: torch.randn(*s, dtype=torch.bfloat16) * 0.1)(F, D)),
        }
    _B_in = _B_setup()

    return {
        "A_x": _A_in["x"],
        "A_k_cache": _A_in["k_cache"],
        "A_v_cache": _A_in["v_cache"],
        "A_wq": _A_in["wq"],
        "A_wo": _A_in["wo"],
        "B_x": _B_in["x"],
        "B_w_gate": _B_in["w_gate"],
        "B_w_up": _B_in["w_up"],
        "B_w_down": _B_in["w_down"],
    }

def reference(A_x, A_k_cache, A_v_cache, A_wq, A_wo, B_x, B_w_gate, B_w_up, B_w_down):
    def _A_ref(x, k_cache, v_cache, wq, wo):
        B, Sq, D = x.shape
        Hq, Dh = 32, 128
        Hkv = k_cache.shape[1]
        rep = Hq // Hkv
        q = (lambda x, *d: x.permute(*d))((x @ wq).reshape(B, Sq, Hq, Dh), 0, 2, 1, 3)
        k = (lambda x, n, axis: torch.repeat_interleave(x, n, dim=axis))(k_cache, rep, axis=1)
        v = (lambda x, n, axis: torch.repeat_interleave(x, n, dim=axis))(v_cache, rep, axis=1)
        scores = torch.einsum("bhqd,bhkd->bhqk", q, k) * (Dh ** -0.5)
        p = _softmax(scores, axis=-1)
        o = torch.einsum("bhqk,bhkd->bhqd", p, v)
        return (lambda x, *d: x.permute(*d))(o, 0, 2, 1, 3).reshape(B, Sq, Hq * Dh) @ wo

    def _B_ref(x, w_gate, w_up, w_down):
        g = _silu(x @ w_gate)
        u = x @ w_up
        return (g * u) @ w_down

    x = A_x
    xn = _layernorm(x, axis=-1)
    s = _A_ref(xn, A_k_cache, A_v_cache, A_wq, A_wo)
    g = _silu(_B_ref(xn, B_w_gate, B_w_up, B_w_down))
    return x + s * g
```

```python
import sys

KNAME = "recurrent_scan__gqa_block_cached__swiglu_ffn__decode_kernel"

class Cfg:
    R = 4
    NT = False
    DIAG = False
    SPIN = 1 << 22
    D = 2
    PAT = 2
    DH = 0
    L1TH = 8
    NP = 4

cfg = Cfg()
for a in sys.argv[2:]:
    k, v = a.split("=")
    setattr(cfg, k, int(v))

R = cfg.R
L = []
def e(s): L.append("    " + s)
def lab(s): L.append(s + ":")
def c(s): L.append("    ; " + s)

QPART = 0x000000
GUPART = 0x040000
APART = 0x080000
AML = 0x180000
SPART = 0x200000
FPART = 0x300000
SFLAG = 0x190000
QFLAG = 0x1A0000
HFLAG = 0x1A2000
TSOFF = 0x400000
WS_BYTES = 0x500000

XN = 0
REDQ = XN + 4096
REDG = REDQ + 4096
QL = REDG + 4096
AO = QL + 2048
AMLL = AO + 16384
HL = AMLL + 256
OL = HL + 128
G2L = OL + 128
FLG = G2L + 64
RING = 32768
assert FLG + 64 <= RING
LDS_BYTES = RING + 4 * R * 8192
assert LDS_BYTES <= 163840, LDS_BYTES

S_WG = 2
S_WAVE = 3
SRD_X, SRD_K, SRD_V, SRD_WQ, SRD_WO, SRD_GU, SRD_WD, SRD_OUT, SRD_DBG, SRD_WS, SRD_FP = \
    [56 + 4 * i for i in range(11)]
def srd(b): return f"s[{b}:{b+3}]"
S_WB = 4
S_T0, S_T1, S_T2, S_T3 = 5, 6, 7, 8
S_BQ, S_BG, S_BKV, S_BD, S_BO = 9, 10, 11, 12, 13
S_SPIN = 14
S_T4 = 15
S_STAMP0 = 16
nstamp = [0]

def stamp(reset=False):
    if not cfg.DIAG:
        return
    i = nstamp[0]
    assert i < 14
    e("s_memrealtime s[30:31]")
    e("s_waitcnt lgkmcnt(0)")
    e(f"s_mov_b32 s{S_STAMP0+i}, s30")
    nstamp[0] += 1

def stamp_flush(vtmp0, vtmp1):
    if not cfg.DIAG:
        return
    n = nstamp[0]
    e(f"s_lshl_b32 s30, s{S_WG}, 3")
    e(f"s_add_u32 s30, s30, s{S_WAVE}")
    e("s_lshl_b32 s30, s30, 6")
    e(f"s_add_u32 s30, s30, {TSOFF}")
    e("s_mov_b64 exec, 1")
    e(f"v_mov_b32 v{vtmp0}, 0")
    for i in range(n):
        e(f"v_mov_b32 v{vtmp1}, s{S_STAMP0+i}")
        e(f"buffer_store_dword v{vtmp1}, v{vtmp0}, {srd(SRD_WS)}, s30 offen offset:{4*i}")
        e("s_nop 1")
    e("s_mov_b64 exec, -1")
    nstamp[0] = 0

NTF = " nt" if cfg.NT else ""

LOG2E = 0x3fb8aa3b
SCALE = 0x3db504f3

L.append(f"; @launch grid=(256,1,1) block=(512,1,1) lds={LDS_BYTES}")
L.append('.amdgcn_target "amdgcn-amd-amdhsa--gfx950"')
L.append(".text")
L.append(f".globl {KNAME}")
L.append(".p2align 8")
L.append(f".type {KNAME},@function")
lab(KNAME)
e(f"s_cmp_ge_u32 s{S_WG}, 256")
e("s_cbranch_scc1 L_end")
e("s_load_dwordx16 s[32:47], s[0:1], 0")
e("s_load_dwordx8 s[48:55], s[0:1], 64")
e("v_lshrrev_b32 v1, 6, v0")
e("v_and_b32 v0, 63, v0")
e(f"v_readfirstlane_b32 s{S_WAVE}, v1")
e(f"s_mov_b32 s{S_SPIN}, {cfg.SPIN}")
e("s_waitcnt lgkmcnt(0)")
def mk_srd(b, plo, nbytes):
    e(f"s_mov_b32 s{b}, s{plo}")
    e(f"s_mov_b32 s{b+1}, s{plo+1}")
    e(f"s_mov_b32 s{b+2}, {nbytes}")
    e(f"s_mov_b32 s{b+3}, 0x00020000")
mk_srd(SRD_X, 32, 4096)
mk_srd(SRD_K, 34, 0x4000000)
mk_srd(SRD_V, 36, 0x4000000)
mk_srd(SRD_WQ, 38, 0x800000)
mk_srd(SRD_WO, 40, 0x800000)
e(f"s_cmp_ge_u32 s{S_WG}, 112")
e(f"s_cselect_b32 s{SRD_GU}, s46, s44")
e(f"s_cselect_b32 s{SRD_GU+1}, s47, s45")
e(f"s_cmp_lt_u32 s{S_WG}, 224")
e(f"s_cselect_b32 s{SRD_GU+2}, 0x700000, 0")
e(f"s_mov_b32 s{SRD_GU+3}, 0x00020000")
mk_srd(SRD_WD, 48, 0x700000)
e(f"s_cmp_ge_u32 s{S_WG}, 32")
e(f"s_cselect_b32 s{SRD_WD+2}, 0x700000, 0")
mk_srd(SRD_OUT, 50, 4096)
mk_srd(SRD_DBG, 52, 256)
mk_srd(SRD_WS, 54, WS_BYTES)
e(f"s_add_u32 s{SRD_FP}, s54, {FPART}")
e(f"s_addc_u32 s{SRD_FP+1}, s55, 0")
e(f"s_mov_b32 s{SRD_FP+2}, {112*8192}")
e(f"s_mov_b32 s{SRD_FP+3}, 0x00020000")
e(f"s_cmp_ge_u32 s{S_WAVE}, 4")
e("s_cbranch_scc1 L_helper")

c("================ stream waves ================")
V_L = 0
V_G, V_I, V_T0, V_T1, V_T2, V_T3 = 1, 2, 3, 4, 5, 6
V_CV = 7
V_OWQ = 9
V_OGU = 11
V_OW2 = 13
V_OV = 15
V_OK = 17
V_KA = 21
V_VA = 25
V_XB = 33
V_RED = 34
V_ST = 35
V_MX = 36
V_LS = 37
V_MC = 38
V_T4 = 39
V_B = 40
V_A = 56
V_O = 88
V_S = 120
V_P = 184
V_X = 216
NV_STREAM = 248

outstanding = []
def vm_issue(tag): outstanding.append(tag)
def vm_wait(tag):
    if tag not in outstanding:
        return
    idx = max(i for i, t in enumerate(outstanding) if t == tag)
    n = len(outstanding) - 1 - idx
    assert n <= 63
    e(f"s_waitcnt vmcnt({n})")
    del outstanding[:idx + 1]

e(f"v_lshrrev_b32 v{V_G}, 4, v{V_L}")
e(f"v_and_b32 v{V_I}, 15, v{V_L}")
e(f"s_mul_i32 s{S_WB}, s{S_WAVE}, {R*8192}")
e(f"s_add_u32 s{S_WB}, s{S_WB}, {RING}")
e(f"v_lshlrev_b32 v{V_T0}, 1, v{V_G}")
e(f"v_xor_b32 v{V_T0}, v{V_T0}, v{V_I}")
e(f"v_lshlrev_b32 v{V_CV}, 4, v{V_T0}")
e(f"v_xor_b32 v{V_CV+1}, 0x80, v{V_CV}")
def mk_off(dst, rs):
    e(f"v_mul_u32_u24 v{V_T0}, {rs}, v{V_G}")
    e(f"v_add_u32 v{dst}, v{V_T0}, v{V_CV}")
    e(f"v_add_u32 v{dst+1}, v{V_T0}, v{V_CV+1}")
mk_off(V_OWQ, 8192)
e(f"s_and_b32 s{S_T0}, s{S_WG}, 7")
e(f"s_lshl_b32 s{S_T0}, s{S_T0}, 2")
e(f"s_add_u32 s{S_T0}, s{S_T0}, s{S_WAVE}")
e(f"s_lshl_b32 s{S_BQ}, s{S_T0}, 18")
e(f"s_lshl_b32 s{S_T4}, s{S_T0}, 6")
e(f"s_lshr_b32 s{S_T1}, s{S_WG}, 3")
e(f"s_lshl_b32 s{S_T1}, s{S_T1}, 8")
e(f"s_add_u32 s{S_BQ}, s{S_BQ}, s{S_T1}")

def half_throttle():
    if cfg.DH > 0:
        keep = (cfg.DH - 1) * 4
        if len(outstanding) > keep:
            e(f"s_waitcnt vmcnt({keep})")
            del outstanding[:len(outstanding) - keep]
def dma_w(u, srd_b, sbase, extra, rs, voff):
    slot = u % R
    for jj in range(8):
        if jj % 4 == 0:
            half_throttle()
            e(f"s_add_u32 m0, s{S_WB}, {slot*8192 + (jj//4)*4096}")
        e(f"s_add_u32 s{S_T3}, s{sbase}, {extra + jj*4*rs - (jj&3)*1024}")
        e(f"buffer_load_dwordx4 v{voff + (jj&1)}, {srd(srd_b)}, s{S_T3} offen offset:{(jj&3)*1024}{NTF} lds")
        vm_issue(u)

def dma_kv(u, is_k, idx):
    slot = u % R
    for half in range(2):
        half_throttle()
        e(f"s_add_u32 m0, s{S_WB}, {slot*8192 + half*4096}")
        e(f"s_add_u32 s{S_T3}, s{S_BKV}, {idx*KVSTRIDE + half*4096}")
        for j4 in range(4):
            if is_k:
                e(f"buffer_load_dwordx4 v{V_OK + j4}, {srd(SRD_K)}, s{S_T3} offen offset:{j4*1024}{NTF} lds")
            else:
                e(f"buffer_load_dwordx4 v{V_OV + (j4&1)}, {srd(SRD_V)}, s{S_T3} offen offset:{j4*1024}{NTF} lds")
            vm_issue(u)

NUNITS = 21
def issue_unit(u):
    if u >= NUNITS:
        return
    if (u - cfg.D) in outstanding:
        vm_wait(u - cfg.D)
    if u == 0:
        dma_w(u, SRD_WQ, S_BQ, 0, 8192, V_OWQ)
    elif u in (1, 2):
        dma_w(u, SRD_GU, S_BG, (u - 1) * 32 * 7168, 7168, V_OGU)
    elif u <= 10:
        dma_kv(u, True, u - 3)
    elif u == 11:
        dma_w(u, SRD_WD, S_BD, 0, 2048, V_OW2)
    elif u <= 19:
        dma_kv(u, False, u - 12)
    else:
        dma_w(u, SRD_WO, S_BO, 0, 2048, V_OW2)

issue_unit(0)
mk_off(V_OGU, 7168)
e(f"s_and_b32 s{S_T0}, s{S_WG}, 3")
e(f"s_lshl_b32 s{S_T0}, s{S_T0}, 2")
e(f"s_add_u32 s{S_T0}, s{S_T0}, s{S_WAVE}")
e(f"s_mul_i32 s{S_BG}, s{S_T0}, {64*7168}")
e(f"s_lshl_b32 s{S_T2}, s{S_T0}, 7")
e(f"s_lshr_b32 s{S_T1}, s{S_WG}, 2")
e(f"s_cmp_ge_u32 s{S_T1}, 28")
e(f"s_cselect_b32 s{S_T0}, 28, 0")
e(f"s_sub_u32 s{S_T1}, s{S_T1}, s{S_T0}")
e(f"s_lshl_b32 s{S_T1}, s{S_T1}, 8")
e(f"s_add_u32 s{S_BG}, s{S_BG}, s{S_T1}")
S_XG = S_T2
S_XQ = S_T4
issue_unit(1)
if cfg.PAT == 0:
    e(f"s_lshl_b32 s{S_BKV}, s{S_WG}, 18")
    e(f"s_lshl_b32 s{S_T0}, s{S_WAVE}, 16")
    e(f"s_add_u32 s{S_BKV}, s{S_BKV}, s{S_T0}")
    KVSTRIDE = 8192
elif cfg.PAT == 1:
    e(f"s_lshl_b32 s{S_BKV}, s{S_WG}, 18")
    e(f"s_lshl_b32 s{S_T0}, s{S_WAVE}, 13")
    e(f"s_add_u32 s{S_BKV}, s{S_BKV}, s{S_T0}")
    KVSTRIDE = 32768
else:
    e(f"s_lshr_b32 s{S_BKV}, s{S_WG}, 5")
    e(f"s_lshl_b32 s{S_BKV}, s{S_BKV}, 23")
    e(f"s_and_b32 s{S_T0}, s{S_WG}, 31")
    e(f"s_lshl_b32 s{S_T0}, s{S_T0}, 2")
    e(f"s_add_u32 s{S_T0}, s{S_T0}, s{S_WAVE}")
    e(f"s_lshl_b32 s{S_T0}, s{S_T0}, 13")
    e(f"s_add_u32 s{S_BKV}, s{S_BKV}, s{S_T0}")
    KVSTRIDE = 1 << 20
e(f"v_xor_b32 v{V_T0}, v{V_I}, v{V_G}")
e(f"v_lshlrev_b32 v{V_T1}, 8, v{V_G}")
for j4 in range(4):
    e(f"v_xor_b32 v{V_T2}, {4*j4}, v{V_T0}")
    e(f"v_lshl_add_u32 v{V_OK+j4}, v{V_T2}, 4, v{V_T1}")
mk_off(V_OV, 256)
mk_off(V_OW2, 2048)
e(f"s_max_u32 s{S_T0}, s{S_WG}, 32")
e(f"s_sub_u32 s{S_T0}, s{S_T0}, 32")
def mk_base2(dst, src):
    e(f"s_lshr_b32 s{S_T1}, s{src}, 1")
    e(f"s_lshl_b32 s{dst}, s{S_T1}, 16")
    e(f"s_and_b32 s{S_T1}, s{src}, 1")
    e(f"s_lshl_b32 s{S_T1}, s{S_T1}, 10")
    e(f"s_add_u32 s{dst}, s{dst}, s{S_T1}")
    e(f"s_lshl_b32 s{S_T1}, s{S_WAVE}, 8")
    e(f"s_add_u32 s{dst}, s{dst}, s{S_T1}")
mk_base2(S_BD, S_T0)
mk_base2(S_BO, S_WG)
e(f"v_xor_b32 v{V_T0}, v{V_I}, v{V_G}")
e(f"v_lshlrev_b32 v{V_T1}, 8, v{V_I}")
e(f"v_add_u32 v{V_T1}, s{S_WB}, v{V_T1}")
for ks in range(4):
    e(f"v_xor_b32 v{V_T2}, {4*ks}, v{V_T0}")
    e(f"v_lshl_add_u32 v{V_KA+ks}, v{V_T2}, 4, v{V_T1}")
e(f"v_lshrrev_b32 v{V_T0}, 2, v{V_L}")
e(f"v_lshlrev_b32 v{V_T1}, 8, v{V_T0}")
e(f"v_add_u32 v{V_T1}, s{S_WB}, v{V_T1}")
e(f"v_and_b32 v{V_T2}, 3, v{V_L}")
e(f"v_lshl_add_u32 v{V_T1}, v{V_T2}, 3, v{V_T1}")
e(f"v_and_b32 v{V_T0}, 7, v{V_T0}")
for t in range(8):
    e(f"v_xor_b32 v{V_T2}, {t}, v{V_T0}")
    e(f"v_lshl_add_u32 v{V_VA+t}, v{V_T2}, 5, v{V_T1}")
e(f"v_and_b32 v{V_T0}, 1, v{V_I}")
e(f"v_lshlrev_b32 v{V_T1}, 3, v{V_G}")
e(f"v_lshl_add_u32 v{V_XB}, v{V_T0}, 11, v{V_T1}")
e(f"v_lshlrev_b32 v{V_T1}, 4, v{V_G}")
e(f"v_lshl_add_u32 v{V_RED}, v{V_I}, 9, v{V_T1}")
e(f"v_lshlrev_b32 v{V_T1}, 4, v{V_I}")
e(f"v_lshl_add_u32 v{V_ST}, v{V_G}, 12, v{V_T1}")

def mask(m):
    e(f"s_mov_b32 exec_lo, {m & 0xffffffff:#x}")
    e(f"s_mov_b32 exec_hi, {(m >> 32) & 0xffffffff:#x}")
M_N2 = 0x0003000300030003
M_N8 = 0x00FF00FF00FF00FF

def gemv_unit(u, first, nxt=True):
    slot = u % R
    vm_wait(u)
    for t in range(8):
        e(f"ds_read_b64_tr_b16 v[{V_A+4*t}:{V_A+4*t+1}], v{V_VA+t} offset:{slot*8192}")
        e(f"ds_read_b64_tr_b16 v[{V_A+4*t+2}:{V_A+4*t+3}], v{V_VA+t} offset:{slot*8192+4096}")
        if t == 3:
            pass
    for t in range(8):
        if t % 2 == 0:
            e(f"s_waitcnt lgkmcnt({16 - 2*t - 4})")
        cc = "0" if first else f"v[{V_O+4*t}:{V_O+4*t+3}]"
        e(f"v_mfma_f32_16x16x32_bf16 v[{V_O+4*t}:{V_O+4*t+3}], v[{V_A+4*t}:{V_A+4*t+3}], v[{V_B}:{V_B+3}], {cc}")
    if nxt:
        issue_unit(u + R)

def read_b(vaddr_s, base):
    pass

for u in range(2, cfg.D):
    issue_unit(u)
nxt_issue = [max(2, cfg.D)]
def pump(upto):
    while nxt_issue[0] <= upto:
        issue_unit(nxt_issue[0]); nxt_issue[0] += 1
stamp()
e("s_barrier")
c("---- q-proj unit ----")
e(f"v_add_u32 v{V_T3}, s{S_XQ}, v{V_XB}")
e(f"ds_read_b64 v[{V_B}:{V_B+1}], v{V_T3} offset:{XN}")
e(f"ds_read_b64 v[{V_B+2}:{V_B+3}], v{V_T3} offset:{XN+32}")
e(f"v_add_u32 v{V_T3}, s{S_XG}, v{V_XB}")
e(f"ds_read_b64 v[{V_B+4}:{V_B+5}], v{V_T3} offset:{XN}")
e(f"ds_read_b64 v[{V_B+6}:{V_B+7}], v{V_T3} offset:{XN+32}")
e(f"ds_read_b64 v[{V_B+8}:{V_B+9}], v{V_T3} offset:{XN+64}")
e(f"ds_read_b64 v[{V_B+10}:{V_B+11}], v{V_T3} offset:{XN+96}")
e("s_waitcnt lgkmcnt(0)")
gemv_unit(0, True, nxt=False)
e(f"s_lshl_b32 s{S_T0}, s{S_WAVE}, 10")
e(f"v_add_u32 v{V_T3}, s{S_T0}, v{V_RED}")
e("s_nop 7")
mask(M_N2)
for t in range(8):
    e(f"ds_write_b128 v{V_T3}, v[{V_O+4*t}:{V_O+4*t+3}] offset:{REDQ + t*64}")
e("s_mov_b64 exec, -1")
e("s_waitcnt lgkmcnt(0)")
stamp()
e("s_barrier")
pump(cfg.D)
c("---- gate/up units ----")
for k in range(4):
    e(f"v_mov_b32 v{V_B+k}, v{V_B+4+k}")
e("s_nop 1")
gemv_unit(1, True, nxt=False)
pump(1 + cfg.D)
e("s_nop 7")
for k in range(4):
    e(f"v_mov_b32 v{V_B+k}, v{V_B+8+k}")
e("s_nop 1")
gemv_unit(2, False, nxt=False)
e("s_nop 7")
mask(M_N2)
for t in range(8):
    e(f"ds_write_b128 v{V_T3}, v[{V_O+4*t}:{V_O+4*t+3}] offset:{REDG + t*64}")
e("s_mov_b64 exec, -1")
e("s_waitcnt lgkmcnt(0)")
e("s_barrier")
pump(2 + R)
PARK = [V_O, V_P, V_X, V_A][:cfg.NP]
def k_frags(u, base):
    slot = u % R
    vm_wait(u)
    for tile in range(2):
        for ks in range(4):
            a = base + 16*tile + 4*ks
            e(f"ds_read_b128 v[{a}:{a+3}], v{V_KA+ks} offset:{slot*8192 + tile*4096}")
for ku in range(cfg.NP):
    k_frags(3 + ku, PARK[ku])
    e("s_waitcnt lgkmcnt(0)")
    pump(3 + ku + R)
stamp()
e("s_barrier")
stamp()
c("---- load q fragments ----")
e(f"v_and_b32 v{V_T0}, 7, v{V_I}")
e(f"v_lshlrev_b32 v{V_T1}, 4, v{V_G}")
e(f"v_lshl_add_u32 v{V_T0}, v{V_T0}, 8, v{V_T1}")
for ks in range(4):
    e(f"ds_read_b128 v[{V_B+4*ks}:{V_B+4*ks+3}], v{V_T0} offset:{QL + ks*64}")
e(f"s_mov_b32 s{S_T0}, {SCALE:#x}")
e(f"s_mov_b32 s{S_T1}, 0xffff0000")
e(f"v_mov_b32 v{V_MX}, 0xff800000")
e("s_waitcnt lgkmcnt(0)")

def score_post(base):
    for h in range(2):
        a, b = base + 2*h, base + 2*h + 1
        e(f"v_cvt_pk_bf16_f32 v{V_T2}, v{a}, v{b}")
        e(f"v_lshlrev_b32 v{a}, 16, v{V_T2}")
        e(f"v_and_b32 v{b}, s{S_T1}, v{V_T2}")
        e(f"v_mul_f32 v{a}, s{S_T0}, v{a}")
        e(f"v_mul_f32 v{b}, s{S_T0}, v{b}")
        e(f"v_cvt_pk_bf16_f32 v{V_T2}, v{a}, v{b}")
        e(f"v_lshlrev_b32 v{a}, 16, v{V_T2}")
        e(f"v_and_b32 v{b}, s{S_T1}, v{V_T2}")
        e(f"v_max3_f32 v{V_MX}, v{a}, v{b}, v{V_MX}")

c("---- K phase ----")
for ku in range(8):
    u = 3 + ku
    parked = ku < cfg.NP
    base = PARK[ku] if parked else V_A
    if not parked:
        k_frags(u, V_A)
    for tile in range(2):
        d = V_S + (2*ku + tile) * 4
        if not parked:
            e(f"s_waitcnt lgkmcnt({4 - 4*tile})")
        for ks in range(4):
            a = base + 16*tile + 4*ks
            cc = "0" if ks == 0 else f"v[{d}:{d+3}]"
            e(f"v_mfma_f32_16x16x32_bf16 v[{d}:{d+3}], v[{a}:{a+3}], v[{V_B+4*ks}:{V_B+4*ks+3}], {cc}")
    if not parked:
        pump(u + R)
    e("s_nop 7")
    score_post(V_S + (2*ku) * 4)
    score_post(V_S + (2*ku + 1) * 4)
stamp()
c("---- softmax ----")
def xswap(op, v, tmp):
    e(f"v_mov_b32 v{tmp}, v{v}")
    e("s_nop 1")
    e(f"v_permlane16_swap_b32 v{v}, v{tmp}")
    e(f"{op} v{v}, v{v}, v{tmp}")
    e(f"v_mov_b32 v{tmp}, v{v}")
    e("s_nop 1")
    e(f"v_permlane32_swap_b32 v{v}, v{tmp}")
    e(f"{op} v{v}, v{v}, v{tmp}")
xswap("v_max_f32", V_MX, V_T2)
e(f"s_mov_b32 s{S_T0}, {LOG2E:#x}")
e(f"v_mul_f32 v{V_MC}, s{S_T0}, v{V_MX}")
e(f"v_mov_b32 v{V_LS}, 0")
e(f"v_mov_b32 v{V_T4}, 0")
for r in range(0, 64, 2):
    a, b = V_S + r, V_S + r + 1
    e(f"v_fma_f32 v{a}, v{a}, s{S_T0}, -v{V_MC}")
    e(f"v_fma_f32 v{b}, v{b}, s{S_T0}, -v{V_MC}")
    e(f"v_exp_f32 v{a}, v{a}")
    e(f"v_exp_f32 v{b}, v{b}")
    e("s_nop 0")
    e(f"v_add_f32 v{V_LS}, v{V_LS}, v{a}")
    e(f"v_add_f32 v{V_T4}, v{V_T4}, v{b}")
    e(f"v_cvt_pk_bf16_f32 v{V_P + r//2}, v{a}, v{b}")
e(f"v_add_f32 v{V_LS}, v{V_LS}, v{V_T4}")
xswap("v_add_f32", V_LS, V_T2)
stamp()
e("s_barrier")
c("---- down-proj unit ----")
e(f"v_and_b32 v{V_T0}, 1, v{V_I}")
e(f"v_lshlrev_b32 v{V_T1}, 3, v{V_G}")
e(f"v_lshl_add_u32 v{V_T3}, v{V_T0}, 6, v{V_T1}")
e(f"ds_read_b64 v[{V_B}:{V_B+1}], v{V_T3} offset:{HL}")
e(f"ds_read_b64 v[{V_B+2}:{V_B+3}], v{V_T3} offset:{HL+32}")
e("s_waitcnt lgkmcnt(0)")
gemv_unit(11, True, nxt=False)
pump(11 + R)
def store_part(sb, region, oob_lt32):
    e("s_nop 7")
    for r in range(32):
        e(f"v_min_u32 v{V_O+r}, 0xfffffffe, v{V_O+r}")
    e(f"s_lshr_b32 s{S_T0}, s{sb}, 16")
    e(f"s_lshl_b32 s{S_T0}, s{S_T0}, 5")
    e(f"s_and_b32 s{S_T1}, s{sb}, 0xffff")
    e(f"s_lshl_b32 s{S_T1}, s{S_T1}, 9")
    e(f"s_add_u32 s{S_T0}, s{S_T0}, s{S_T1}")
    e(f"s_add_u32 s{S_T0}, s{S_T0}, {region}")
    if oob_lt32:
        e(f"s_cmp_lt_u32 s{S_WG}, 32")
        e(f"s_cselect_b32 s{S_T0}, 0x40000000, s{S_T0}")
    mask(M_N2)
    for t in range(8):
        e(f"buffer_store_dwordx4 v[{V_O+4*t}:{V_O+4*t+3}], v{V_ST}, {srd(SRD_WS)}, s{S_T0} offen sc1")
        vm_issue("st")
        if t < 7:
            e(f"s_add_u32 s{S_T0}, s{S_T0}, 16384")
    e("s_mov_b64 exec, -1")
store_part(S_BD, FPART, True)
c("---- V phase ----")
for vu in range(8):
    u = 12 + vu
    slot = u % R
    vm_wait(u)
    for t in range(8):
        e(f"ds_read_b64_tr_b16 v[{V_A+4*t}:{V_A+4*t+1}], v{V_VA+t} offset:{slot*8192}")
        e(f"ds_read_b64_tr_b16 v[{V_A+4*t+2}:{V_A+4*t+3}], v{V_VA+t} offset:{slot*8192+4096}")
    for t in range(8):
        if t % 2 == 0:
            e(f"s_waitcnt lgkmcnt({16 - 2*t - 4})")
        cc = "0" if vu == 0 else f"v[{V_O+4*t}:{V_O+4*t+3}]"
        e(f"v_mfma_f32_16x16x32_bf16 v[{V_O+4*t}:{V_O+4*t+3}], v[{V_A+4*t}:{V_A+4*t+3}], v[{V_P+4*vu}:{V_P+4*vu+3}], {cc}")
    pump(u + R)
c("---- write attention partial to LDS ----")
e(f"s_lshl_b32 s{S_T0}, s{S_WAVE}, 12")
e(f"v_add_u32 v{V_T3}, s{S_T0}, v{V_RED}")
e(f"s_lshl_b32 s{S_T0}, s{S_WAVE}, 3")
e(f"v_lshlrev_b32 v{V_T2}, 5, v{V_I}")
e(f"v_add_u32 v{V_T2}, s{S_T0}, v{V_T2}")
e(f"v_mov_b32 v{V_MX+1}, v{V_LS}") if V_LS != V_MX + 1 else None
e("s_nop 7")
mask(M_N8)
for t in range(8):
    e(f"ds_write_b128 v{V_T3}, v[{V_O+4*t}:{V_O+4*t+3}] offset:{AO + t*64}")
mask(0xFF)
e(f"ds_write_b64 v{V_T2}, v[{V_MX}:{V_MX+1}] offset:{AMLL}")
e("s_mov_b64 exec, -1")
e("s_waitcnt lgkmcnt(0)")
stamp()
e("s_barrier")
stamp()
e("s_barrier")
stamp()
c("---- wo unit ----")
e(f"v_and_b32 v{V_T0}, 1, v{V_I}")
e(f"v_lshlrev_b32 v{V_T1}, 3, v{V_G}")
e(f"v_lshl_add_u32 v{V_T3}, v{V_T0}, 6, v{V_T1}")
e(f"ds_read_b64 v[{V_B}:{V_B+1}], v{V_T3} offset:{OL}")
e(f"ds_read_b64 v[{V_B+2}:{V_B+3}], v{V_T3} offset:{OL+32}")
e("s_waitcnt lgkmcnt(0)")
gemv_unit(20, True, nxt=False)
stamp()
store_part(S_BO, SPART, False)
stamp()
if cfg.DIAG:
    e("s_waitcnt vmcnt(0)")
stamp()
stamp_flush(V_T0, V_T1)
e("s_endpgm")

lab("L_helper")
c("================ helper waves ================")
S_HW = 4
H_T = 1
H_A, H_B, H_C, H_D, H_E = 2, 3, 4, 5, 6
H_XF = 8
H_NEG = 12
H_X = 16
H_R = 32
e(f"s_sub_u32 s{S_HW}, s{S_WAVE}, 4")
e(f"s_and_b32 s{S_T0}, s{S_HW}, 1")
e(f"s_lshl_b32 s{S_T1}, s{S_T0}, 11")
e(f"v_lshlrev_b32 v{H_A}, 5, v0")
e(f"buffer_load_dwordx4 v[{H_R}:{H_R+3}], v{H_A}, {srd(SRD_X)}, s{S_T1} offen")
e(f"buffer_load_dwordx4 v[{H_R+4}:{H_R+7}], v{H_A}, {srd(SRD_X)}, s{S_T1} offen offset:16")
e(f"s_lshl_b32 s{S_T2}, s{S_WG}, 3")
e(f"v_and_b32 v{H_B}, 1, v0")
e(f"v_lshlrev_b32 v{H_B}, 11, v{H_B}")
e(f"buffer_load_dwordx2 v[{H_XF}:{H_XF+1}], v{H_B}, {srd(SRD_X)}, s{S_T2} offen")
e(f"s_lshl_b32 s{S_T2}, s{S_HW}, 6")
e(f"v_add_u32 v{H_T}, s{S_T2}, v0")
for k in range(4):
    e(f"v_mov_b32 v{H_NEG+k}, -1")
e(f"v_mov_b32 v{H_C}, 0")
e(f"v_lshlrev_b32 v{H_D}, 2, v0")
e(f"v_and_b32 v{H_D}, 63, v{H_D}")
e(f"ds_write_b32 v{H_D}, v{H_C} offset:{FLG}")
c("bootstrap: WG 0 clears the flag area, then raises d_debug[0]")
e(f"v_lshlrev_b32 v{H_B}, 4, v{H_T}")
e(f"s_cmp_lg_u32 s{S_WG}, 0")
e("s_cbranch_scc1 L_h_noboot")
for k in range(3):
    e(f"s_mov_b32 s{S_T2}, {QFLAG + k*4096}")
    e(f"buffer_store_dwordx4 v[{H_NEG}:{H_NEG+3}], v{H_B}, {srd(SRD_WS)}, s{S_T2} offen sc1")
e("s_waitcnt vmcnt(0)")
e(f"s_lshl_b32 s{S_T2}, s{S_HW}, 2")
e(f"v_mov_b32 v{H_C}, 1")
e(f"v_mov_b32 v{H_D}, 0")
e("s_mov_b64 exec, 1")
e(f"buffer_store_dword v{H_C}, v{H_D}, {srd(SRD_DBG)}, s{S_T2} offen sc1")
e("s_mov_b64 exec, -1")
lab("L_h_noboot")
c("clear sentinels")
e(f"v_lshlrev_b32 v{H_B}, 4, v{H_T}")
e(f"s_lshl_b32 s{S_T2}, s{S_WG}, 12")
e(f"s_add_u32 s{S_T2}, s{S_T2}, {APART}")
e(f"buffer_store_dwordx4 v[{H_NEG}:{H_NEG+3}], v{H_B}, {srd(SRD_WS)}, s{S_T2} offen sc1")
e(f"s_lshl_b32 s{S_T2}, s{S_WG}, 12")
e(f"s_add_u32 s{S_T3}, s{S_T2}, {SPART}")
e(f"buffer_store_dwordx4 v[{H_NEG}:{H_NEG+3}], v{H_B}, {srd(SRD_WS)}, s{S_T3} offen sc1")
e(f"v_cmp_gt_u32 vcc, 224, v{H_T}")
e("s_nop 1")
for k in range(4):
    e(f"v_cndmask_b32 v{H_X+k}, 0, v{H_NEG}, vcc")
e(f"s_add_u32 s{S_T3}, s{S_T2}, {FPART}")
e(f"buffer_store_dwordx4 v[{H_X}:{H_X+3}], v{H_B}, {srd(SRD_WS)}, s{S_T3} offen sc1")
e(f"s_cmp_lg_u32 s{S_HW}, 0")
e("s_cbranch_scc1 L_h_skipml")
e(f"s_lshr_b32 s{S_T2}, s{S_WG}, 5")
e(f"s_lshl_b32 s{S_T2}, s{S_T2}, 11")
e(f"s_and_b32 s{S_T3}, s{S_WG}, 31")
e(f"s_lshl_b32 s{S_T3}, s{S_T3}, 3")
e(f"s_add_u32 s{S_T2}, s{S_T2}, s{S_T3}")
e(f"s_add_u32 s{S_T2}, s{S_T2}, {AML}")
e(f"v_lshlrev_b32 v{H_C}, 8, v0")
mask(0xFF)
e(f"buffer_store_dwordx2 v[{H_NEG}:{H_NEG+1}], v{H_C}, {srd(SRD_WS)}, s{S_T2} offen sc1")
e("s_mov_b64 exec, -1")
lab("L_h_skipml")

def dpp_reduce(op, regs, tmpbase, full=True):
    for pat in ["quad_perm:[1,0,3,2]", "quad_perm:[2,3,0,1]", "row_half_mirror", "row_mirror"]:
        if len(regs) < 3:
            e("s_nop 1")
        for r in regs:
            e(f"{op}_dpp v{r}, v{r}, v{r} {pat} row_mask:0xf bank_mask:0xf")
    swaps = ["v_permlane16_swap_b32"] + (["v_permlane32_swap_b32"] if full else [])
    for sw in swaps:
        for k, r in enumerate(regs):
            e(f"v_mov_b32 v{tmpbase+k}, v{r}")
        e("s_nop 1")
        for k, r in enumerate(regs):
            e(f"{sw} v{r}, v{tmpbase+k}")
        for k, r in enumerate(regs):
            e(f"{op} v{r}, v{r}, v{tmpbase+k}")

def bf16r(dst, src, tmp):
    e(f"v_cvt_pk_bf16_f32 v{tmp}, v{src}, v{src}")
    e(f"v_lshlrev_b32 v{dst}, 16, v{tmp}")

c("layernorm")
e("s_waitcnt vmcnt(3)")
e(f"s_mov_b32 s{S_T2}, 0xffff0000")
for k in range(8):
    e(f"v_lshlrev_b32 v{H_X+2*k}, 16, v{H_R+k}")
    e(f"v_and_b32 v{H_X+2*k+1}, s{S_T2}, v{H_R+k}")
e(f"v_add_f32 v{H_A}, v{H_X}, v{H_X+1}")
for k in range(2, 16):
    e(f"v_add_f32 v{H_A}, v{H_A}, v{H_X+k}")
dpp_reduce("v_add_f32", [H_A], H_B)
e(f"v_mul_f32 v{H_A}, 0x3a800000, v{H_A}")
e(f"v_mov_b32 v{H_C}, 0")
for k in range(16):
    e(f"v_sub_f32 v{H_D}, v{H_X+k}, v{H_A}")
    e(f"v_fmac_f32 v{H_C}, v{H_D}, v{H_D}")
dpp_reduce("v_add_f32", [H_C], H_B)
e(f"v_mul_f32 v{H_C}, 0x3a800000, v{H_C}")
bf16r(H_A, H_A, H_B)
bf16r(H_C, H_C, H_B)
e(f"v_add_f32 v{H_C}, 0x3727c5ac, v{H_C}")
bf16r(H_C, H_C, H_B)
e(f"v_sqrt_f32 v{H_C}, v{H_C}")
e("s_nop 0")
bf16r(H_C, H_C, H_B)
e(f"v_rcp_f32 v{H_D}, v{H_C}")
e("s_nop 0")
for k in range(0, 16, 2):
    a, b = H_X + k, H_X + k + 1
    e(f"v_sub_f32 v{a}, v{a}, v{H_A}")
    e(f"v_sub_f32 v{b}, v{b}, v{H_A}")
    e(f"v_cvt_pk_bf16_f32 v{H_B}, v{a}, v{b}")
    e(f"v_lshlrev_b32 v{a}, 16, v{H_B}")
    e(f"v_and_b32 v{b}, s{S_T2}, v{H_B}")
    for x in (a, b):
        e(f"v_mul_f32 v{H_E}, v{x}, v{H_D}")
        e(f"v_fma_f32 v{x}, -v{H_E}, v{H_C}, v{x}")
        e(f"v_fma_f32 v{x}, v{x}, v{H_D}, v{H_E}")
    e(f"v_cvt_pk_bf16_f32 v{H_R+k//2}, v{a}, v{b}")
e(f"v_lshlrev_b32 v{H_A}, 5, v0")
e(f"v_add_u32 v{H_A}, s{S_T1}, v{H_A}")
e(f"ds_write_b128 v{H_A}, v[{H_R}:{H_R+3}] offset:{XN}")
e(f"ds_write_b128 v{H_A}, v[{H_R+4}:{H_R+7}] offset:{XN+16}")
e("s_waitcnt lgkmcnt(0)")
stamp()
e("s_barrier")
e("s_barrier")
stamp()

def red_publish(red_off, soff_emit, cnt_off_emit, skip_store_if=None, tag=""):
    e(f"v_lshlrev_b32 v{H_A}, 4, v0")
    for w in range(4):
        e(f"ds_read_b128 v[{H_R+4*w}:{H_R+4*w+3}], v{H_A} offset:{red_off + w*1024}")
    e("s_waitcnt lgkmcnt(0)")
    for k in range(4):
        e(f"v_add_f32 v{H_R+k}, v{H_R+k}, v{H_R+4+k}")
        e(f"v_add_f32 v{H_R+8+k}, v{H_R+8+k}, v{H_R+12+k}")
    for k in range(4):
        e(f"v_add_f32 v{H_R+k}, v{H_R+k}, v{H_R+8+k}")
    soff_emit()
    if skip_store_if:
        skip_store_if("L_skipst" + tag)
    e(f"buffer_store_dwordx4 v[{H_R}:{H_R+3}], v{H_B}, {srd(SRD_WS)}, s{S_T2} offen sc1")
    if skip_store_if:
        lab("L_skipst" + tag)
    e(f"v_mov_b32 v{H_A}, 0")
    lab("L_boot" + tag)
    e(f"buffer_load_dwordx4 v[{H_R+4}:{H_R+7}], v{H_A}, {srd(SRD_DBG)}, 0 offen sc1")
    e("s_waitcnt vmcnt(0)")
    e(f"v_and_b32 v{H_R+4}, v{H_R+4}, v{H_R+5}")
    e(f"v_and_b32 v{H_R+6}, v{H_R+6}, v{H_R+7}")
    e(f"v_and_b32 v{H_R+4}, v{H_R+4}, v{H_R+6}")
    e(f"v_cmp_eq_u32 vcc, 0, v{H_R+4}")
    e(f"s_cbranch_vccz L_bootd{tag}")
    e("s_sleep 8")
    e(f"s_sub_u32 s{S_SPIN}, s{S_SPIN}, 1")
    e(f"s_cmp_lg_u32 s{S_SPIN}, 0")
    e(f"s_cbranch_scc1 L_boot{tag}")
    e(f"s_mov_b32 s{S_SPIN}, 1")
    lab("L_bootd" + tag)
    cnt_off_emit()
    e(f"v_mov_b32 v{H_A}, 0")
    e(f"buffer_store_dword v{H_A}, v{H_B}, {srd(SRD_WS)}, s{S_T2} offen sc1")
    e("s_mov_b64 exec, -1")

c("publish q partial (helper 0)")
e(f"s_cmp_lg_u32 s{S_HW}, 0")
e("s_cbranch_scc1 L_h_noq")
def q_soff():
    e(f"v_and_b32 v{H_B}, 31, v0")
    e(f"v_lshlrev_b32 v{H_B}, 4, v{H_B}")
    e(f"v_lshrrev_b32 v{H_C}, 5, v0")
    e(f"v_lshl_add_u32 v{H_B}, v{H_C}, 14, v{H_B}")
    e(f"s_and_b32 s{S_T2}, s{S_WG}, 7")
    e(f"s_lshl_b32 s{S_T2}, s{S_T2}, 15")
    e(f"s_lshr_b32 s{S_T3}, s{S_WG}, 3")
    e(f"s_lshl_b32 s{S_T3}, s{S_T3}, 9")
    e(f"s_add_u32 s{S_T2}, s{S_T2}, s{S_T3}")
    if QPART:
        e(f"s_add_u32 s{S_T2}, s{S_T2}, {QPART}")
def q_cnt():
    e(f"s_lshl_b32 s{S_T2}, s{S_WG}, 2")
    e(f"s_add_u32 s{S_T2}, s{S_T2}, {QFLAG}")
    e(f"v_lshlrev_b32 v{H_B}, 10, v0")
    mask(0xFF)
red_publish(REDQ, q_soff, q_cnt, None, "q")
e("s_branch L_h_q2")
lab("L_h_noq")
e("s_waitcnt vmcnt(0)")
lab("L_h_q2")
stamp()
e("s_barrier")
c("publish gate/up partial (helper 1)")
e(f"s_cmp_lg_u32 s{S_HW}, 1")
e("s_cbranch_scc1 L_h_nog")
def g_soff():
    e(f"v_and_b32 v{H_B}, 31, v0")
    e(f"v_lshlrev_b32 v{H_B}, 4, v{H_B}")
    e(f"v_lshrrev_b32 v{H_C}, 5, v0")
    e(f"v_mul_u32_u24 v{H_C}, 14336, v{H_C}")
    e(f"v_add_u32 v{H_B}, v{H_C}, v{H_B}")
    e(f"s_lshr_b32 s{S_T3}, s{S_WG}, 2")
    e(f"s_cmp_ge_u32 s{S_T3}, 28")
    e(f"s_cselect_b32 s{S_T2}, 28, 0")
    e(f"s_sub_u32 s{S_T3}, s{S_T3}, s{S_T2}")
    e(f"s_lshr_b32 s{S_T2}, s{S_WG}, 2")
    e(f"s_cmp_ge_u32 s{S_T2}, 28")
    e(f"s_cselect_b32 s{S_T2}, 4, 0")
    e(f"s_and_b32 s{S_T4}, s{S_WG}, 3")
    e(f"s_add_u32 s{S_T2}, s{S_T2}, s{S_T4}")
    e(f"s_mul_i32 s{S_T2}, s{S_T2}, {2*14336}")
    e(f"s_lshl_b32 s{S_T3}, s{S_T3}, 9")
    e(f"s_add_u32 s{S_T2}, s{S_T2}, s{S_T3}")
    e(f"s_add_u32 s{S_T2}, s{S_T2}, {GUPART}")
def g_skip(l):
    e(f"s_cmp_ge_u32 s{S_WG}, 224")
    e(f"s_cbranch_scc1 {l}")
def g_cnt():
    e(f"s_lshl_b32 s{S_T2}, s{S_WG}, 2")
    e(f"s_add_u32 s{S_T2}, s{S_T2}, {HFLAG}")
    e(f"v_lshlrev_b32 v{H_B}, 10, v0")
    mask(0xF)
red_publish(REDG, g_soff, g_cnt, g_skip, "g")
lab("L_h_nog")

def lds_flag_wait(idx, name):
    lab(f"L_{name}_w")
    e(f"v_mov_b32 v{H_A}, 0")
    e(f"ds_read_b32 v{H_B}, v{H_A} offset:{FLG + 4*idx}")
    e("s_waitcnt lgkmcnt(0)")
    e(f"v_readfirstlane_b32 s{S_T2}, v{H_B}")
    e(f"s_cmp_lg_u32 s{S_T2}, 0")
    e(f"s_cbranch_scc1 L_{name}_d")
    e("s_sleep 1")
    e(f"s_sub_u32 s{S_SPIN}, s{S_SPIN}, 1")
    e(f"s_cmp_lg_u32 s{S_SPIN}, 0")
    e(f"s_cbranch_scc1 L_{name}_w")
    e(f"s_mov_b32 s{S_SPIN}, 1")
    e(f"s_branch L_{name}_d")

def lds_flag_set(idx):
    e(f"v_mov_b32 v{H_A}, 0")
    e(f"v_mov_b32 v{H_B}, 1")
    e(f"ds_write_b32 v{H_A}, v{H_B} offset:{FLG + 4*idx}")

c("wait for q counter")
e(f"s_cmp_lg_u32 s{S_HW}, 0")
e("s_cbranch_scc1 L_qf_w")
e(f"s_lshr_b32 s{S_T3}, s{S_WG}, 5")
e(f"s_and_b32 s{S_T3}, s{S_T3}, 3")
e(f"s_lshl_b32 s{S_T3}, s{S_T3}, 8")
e(f"s_and_b32 s{S_T2}, s{S_WG}, 7")
e(f"s_lshl_b32 s{S_T2}, s{S_T2}, 10")
e(f"s_add_u32 s{S_T3}, s{S_T3}, s{S_T2}")
e(f"s_add_u32 s{S_T3}, s{S_T3}, {QFLAG}")
e(f"v_lshlrev_b32 v{H_A}, 2, v0")
lab("L_qpoll")
e(f"buffer_load_dword v{H_B}, v{H_A}, {srd(SRD_WS)}, s{S_T3} offen sc1")
e("s_waitcnt vmcnt(0)")
e(f"v_cmp_eq_u32 vcc, -1, v{H_B}")
e("s_cbranch_vccz L_qpoll_d")
e("s_sleep 4")
e(f"s_sub_u32 s{S_SPIN}, s{S_SPIN}, 1")
e(f"s_cmp_lg_u32 s{S_SPIN}, 0")
e("s_cbranch_scc1 L_qpoll")
e(f"s_mov_b32 s{S_SPIN}, 1")
lab("L_qpoll_d")
lds_flag_set(0)
e("s_branch L_qf_d")
lds_flag_wait(0, "qf")
lab("L_qf_d")
stamp()
c("gather q")
e(f"s_lshr_b32 s{S_T2}, s{S_WG}, 5")
e(f"s_lshl_b32 s{S_T2}, s{S_T2}, 12")
e(f"v_lshlrev_b32 v{H_A}, 4, v{H_T}")
for ks in range(8):
    e(f"s_add_u32 s{S_T3}, s{S_T2}, {QPART + ks*32768}")
    e(f"buffer_load_dwordx4 v[{H_R+4*ks}:{H_R+4*ks+3}], v{H_A}, {srd(SRD_WS)}, s{S_T3} offen sc1")
e("s_waitcnt vmcnt(0)")
for ks in range(1, 8):
    for k in range(4):
        e(f"v_add_f32 v{H_R+k}, v{H_R+k}, v{H_R+4*ks+k}")
e(f"v_cvt_pk_bf16_f32 v{H_R}, v{H_R}, v{H_R+1}")
e(f"v_cvt_pk_bf16_f32 v{H_R+1}, v{H_R+2}, v{H_R+3}")
e(f"v_lshlrev_b32 v{H_A}, 3, v{H_T}")
e(f"ds_write_b64 v{H_A}, v[{H_R}:{H_R+1}] offset:{QL}")
e("s_waitcnt lgkmcnt(0)")
stamp()
e("s_barrier")
c("wait for h counter (helper 0), h gather (helper 1)")
e(f"s_cmp_eq_u32 s{S_HW}, 1")
e("s_cbranch_scc1 L_hf_w")
e(f"s_cmp_lg_u32 s{S_HW}, 0")
e("s_cbranch_scc1 L_h_b5")
e(f"v_lshlrev_b32 v{H_A}, 4, v0")
e(f"s_and_b32 s{S_T2}, s{S_WG}, 3")
e(f"s_lshl_b32 s{S_T2}, s{S_T2}, 10")
e(f"s_add_u32 s{S_T2}, s{S_T2}, {HFLAG}")
lab("L_hpoll")
e(f"buffer_load_dwordx4 v[{H_R}:{H_R+3}], v{H_A}, {srd(SRD_WS)}, s{S_T2} offen sc1")
e("s_waitcnt vmcnt(0)")
e(f"v_max3_u32 v{H_B}, v{H_R}, v{H_R+1}, v{H_R+2}")
e(f"v_max_u32 v{H_B}, v{H_B}, v{H_R+3}")
e(f"v_cmp_eq_u32 vcc, -1, v{H_B}")
e("s_cbranch_vccz L_hpoll_d")
e("s_sleep 16")
e(f"s_sub_u32 s{S_SPIN}, s{S_SPIN}, 1")
e(f"s_cmp_lg_u32 s{S_SPIN}, 0")
e("s_cbranch_scc1 L_hpoll")
e(f"s_mov_b32 s{S_SPIN}, 1")
lab("L_hpoll_d")
lds_flag_set(1)
e("s_branch L_h_b5")
lds_flag_wait(1, "hf")
lab("L_hf_d")
e(f"s_max_u32 s{S_T2}, s{S_WG}, 32")
e(f"s_sub_u32 s{S_T2}, s{S_T2}, 32")
e(f"s_lshr_b32 s{S_T2}, s{S_T2}, 1")
e(f"s_lshl_b32 s{S_T2}, s{S_T2}, 7")
e(f"v_and_b32 v{H_A}, 31, v0")
e(f"v_lshlrev_b32 v{H_A}, 2, v{H_A}")
e(f"v_lshrrev_b32 v{H_B}, 5, v0")
e(f"v_mul_u32_u24 v{H_B}, 14336, v{H_B}")
e(f"v_add_u32 v{H_A}, v{H_A}, v{H_B}")
for m in range(8):
    e(f"s_add_u32 s{S_T3}, s{S_T2}, {GUPART + m*2*14336}")
    e(f"buffer_load_dword v{H_R+m}, v{H_A}, {srd(SRD_WS)}, s{S_T3} offen sc1")
e("s_waitcnt vmcnt(0)")
for m in (0, 4):
    e(f"v_add_f32 v{H_R+m}, v{H_R+m}, v{H_R+m+1}")
    e(f"v_add_f32 v{H_R+m+2}, v{H_R+m+2}, v{H_R+m+3}")
    e(f"v_add_f32 v{H_R+m}, v{H_R+m}, v{H_R+m+2}")
    bf16r(H_R + m, H_R + m, H_B)
def silu(dst, src, t):
    e(f"v_mul_f32 v{t}, 0xbfb8aa3b, v{src}")
    e(f"v_exp_f32 v{t}, v{t}")
    e("s_nop 0")
    e(f"v_add_f32 v{t}, 1.0, v{t}")
    e(f"v_rcp_f32 v{t}, v{t}")
    e("s_nop 0")
    e(f"v_mul_f32 v{dst}, v{src}, v{t}")
silu(H_R, H_R, H_B)
bf16r(H_R, H_R, H_B)
e(f"v_mul_f32 v{H_R}, v{H_R}, v{H_R+4}")
e(f"v_cvt_pk_bf16_f32 v{H_R}, v{H_R}, v{H_R}")
e(f"v_lshlrev_b32 v{H_A}, 1, v0")
e(f"ds_write_b16 v{H_A}, v{H_R} offset:{HL}")
e("s_waitcnt lgkmcnt(0)")
lab("L_h_b5")
e("s_waitcnt lgkmcnt(0)")
stamp()
e("s_barrier")
def spin_tail(back, sl=1):
    e(f"s_sleep {sl}")
    e(f"s_sub_u32 s{S_SPIN}, s{S_SPIN}, 1")
    e(f"s_cmp_lg_u32 s{S_SPIN}, 0")
    e(f"s_cbranch_scc1 {back}")
    e(f"s_mov_b32 s{S_SPIN}, 1")
def mailbox(region, name, sl):
    e(f"s_lshl_b32 s{S_T2}, s{S_WG}, 12")
    e(f"s_add_u32 s{S_T2}, s{S_T2}, {region}")
    e(f"v_lshlrev_b32 v{H_A}, 4, v0")
    lab(f"L_{name}")
    for k in range(4):
        e(f"buffer_load_dwordx4 v[{H_R+4*k}:{H_R+4*k+3}], v{H_A}, {srd(SRD_WS)}, s{S_T2} offen offset:{1024*k} sc1")
    e("s_waitcnt vmcnt(0)")
    e(f"v_max3_u32 v{H_D}, v{H_R}, v{H_R+1}, v{H_R+2}")
    e(f"v_max3_u32 v{H_E}, v{H_R+3}, v{H_R+4}, v{H_R+5}")
    e(f"v_max3_u32 v{H_D}, v{H_D}, v{H_R+6}, v{H_R+7}")
    e(f"v_max3_u32 v{H_E}, v{H_E}, v{H_R+8}, v{H_R+9}")
    e(f"v_max3_u32 v{H_D}, v{H_D}, v{H_R+10}, v{H_R+11}")
    e(f"v_max3_u32 v{H_E}, v{H_E}, v{H_R+12}, v{H_R+13}")
    e(f"v_max3_u32 v{H_D}, v{H_D}, v{H_R+14}, v{H_R+15}")
    e(f"v_max_u32 v{H_D}, v{H_D}, v{H_E}")
    e(f"v_cmp_eq_u32 vcc, -1, v{H_D}")
    e(f"s_cbranch_vccz L_{name}_d")
    spin_tail(f"L_{name}", sl)
    lab(f"L_{name}_d")
    for k in range(4):
        e(f"v_add_f32 v{H_R+k}, v{H_R+k}, v{H_R+4+k}")
        e(f"v_add_f32 v{H_R+8+k}, v{H_R+8+k}, v{H_R+12+k}")
    for k in range(4):
        e(f"v_add_f32 v{H_R+k}, v{H_R+k}, v{H_R+8+k}")
    regs = [H_R + k for k in range(4)]
    for pat in ["quad_perm:[2,3,0,1]", "row_ror:4", "row_ror:8"]:
        for r in regs:
            e(f"v_add_f32_dpp v{r}, v{r}, v{r} {pat} row_mask:0xf bank_mask:0xf")
    for sw in ["v_permlane16_swap_b32", "v_permlane32_swap_b32"]:
        for k, r in enumerate(regs):
            e(f"v_mov_b32 v{H_X+k}, v{r}")
        e("s_nop 1")
        for k, r in enumerate(regs):
            e(f"{sw} v{r}, v{H_X+k}")
        for k, r in enumerate(regs):
            e(f"v_add_f32 v{r}, v{r}, v{H_X+k}")
c("f gather (helper 2)")
e(f"s_cmp_lg_u32 s{S_HW}, 2")
e("s_cbranch_scc1 L_h_nof")
mailbox(FPART, "fmb", 16)
for k in range(4):
    bf16r(H_R + k, H_R + k, H_B)
    silu(H_R + k, H_R + k, H_B)
    bf16r(H_R + k, H_R + k, H_B)
mask(0x3)
e(f"ds_write_b128 v{H_A}, v[{H_R}:{H_R+3}] offset:{G2L}")
e("s_mov_b64 exec, -1")
e("s_waitcnt lgkmcnt(0)")
lab("L_h_nof")
stamp()
e("s_barrier")
stamp()
c("combine 4 waves' attention partials, publish")
e(f"v_lshrrev_b32 v{H_A}, 5, v{H_T}")
e(f"v_lshlrev_b32 v{H_B}, 5, v{H_A}")
e(f"ds_read_b128 v[{H_X}:{H_X+3}], v{H_B} offset:{AMLL}")
e(f"ds_read_b128 v[{H_X+4}:{H_X+7}], v{H_B} offset:{AMLL+16}")
e(f"v_lshlrev_b32 v{H_C}, 4, v{H_T}")
for w in range(4):
    e(f"ds_read_b128 v[{H_R+4*w}:{H_R+4*w+3}], v{H_C} offset:{AO + w*4096}")
e(f"s_mov_b32 s{S_T3}, {LOG2E:#x}")
e("s_waitcnt lgkmcnt(4)")
e(f"v_max3_f32 v{H_D}, v{H_X}, v{H_X+2}, v{H_X+4}")
e(f"v_max_f32 v{H_D}, v{H_D}, v{H_X+6}")
for w in range(4):
    e(f"v_sub_f32 v{H_X+2*w}, v{H_X+2*w}, v{H_D}")
    e(f"v_mul_f32 v{H_X+2*w}, s{S_T3}, v{H_X+2*w}")
    e(f"v_exp_f32 v{H_X+2*w}, v{H_X+2*w}")
e("s_nop 0")
e(f"v_mul_f32 v{H_E}, v{H_X}, v{H_X+1}")
for w in range(1, 4):
    e(f"v_fmac_f32 v{H_E}, v{H_X+2*w}, v{H_X+2*w+1}")
e("s_waitcnt lgkmcnt(0)")
for k in range(4):
    e(f"v_mul_f32 v{H_R+k}, v{H_X}, v{H_R+k}")
for w in range(1, 4):
    for k in range(4):
        e(f"v_fmac_f32 v{H_R+k}, v{H_X+2*w}, v{H_R+4*w+k}")
for k in range(4):
    e(f"v_min_u32 v{H_R+k}, 0xfffffffe, v{H_R+k}")
e(f"v_min_u32 v{H_D}, 0xfffffffe, v{H_D}")
e(f"v_min_u32 v{H_E}, 0xfffffffe, v{H_E}")
e(f"s_lshl_b32 s{S_T2}, s{S_WG}, 12")
e(f"s_add_u32 s{S_T2}, s{S_T2}, {APART}")
e(f"buffer_store_dwordx4 v[{H_R}:{H_R+3}], v{H_C}, {srd(SRD_WS)}, s{S_T2} offen sc1")
e(f"s_lshr_b32 s{S_T2}, s{S_WG}, 5")
e(f"s_lshl_b32 s{S_T2}, s{S_T2}, 11")
e(f"s_and_b32 s{S_T3}, s{S_WG}, 31")
e(f"s_lshl_b32 s{S_T3}, s{S_T3}, 3")
e(f"s_add_u32 s{S_T2}, s{S_T2}, s{S_T3}")
e(f"s_add_u32 s{S_T2}, s{S_T2}, {AML}")
e(f"v_lshlrev_b32 v{H_B}, 8, v{H_A}")
assert H_E == H_D + 1
e(f"v_mov_b32 v{H_X+8}, v{H_D}")
e(f"v_mov_b32 v{H_X+9}, v{H_E}")
mask(0x0000000100000001)
e(f"buffer_store_dwordx2 v[{H_X+8}:{H_X+9}], v{H_B}, {srd(SRD_WS)}, s{S_T2} offen sc1")
e("s_mov_b64 exec, -1")
stamp()
c("level-1 gather")
e(f"s_lshr_b32 s{S_T0}, s{S_HW}, 1")
e(f"s_lshl_b32 s{S_T0}, s{S_T0}, 2")
e(f"s_lshr_b32 s{S_T1}, s{S_WG}, 6")
e(f"s_add_u32 s{S_T0}, s{S_T0}, s{S_T1}")
e(f"s_lshr_b32 s{S_T1}, s{S_WG}, 3")
e(f"s_and_b32 s{S_T1}, s{S_T1}, 7")
e(f"s_lshl_b32 s{S_T2}, s{S_T0}, 17")
e(f"s_lshl_b32 s{S_T3}, s{S_T1}, 9")
e(f"s_add_u32 s{S_T2}, s{S_T2}, s{S_T3}")
e(f"s_lshr_b32 s{S_T3}, s{S_WG}, 1")
e(f"s_and_b32 s{S_T3}, s{S_T3}, 3")
e(f"s_lshl_b32 s{S_T3}, s{S_T3}, 7")
e(f"s_add_u32 s{S_T2}, s{S_T2}, s{S_T3}")
e(f"s_and_b32 s{S_T3}, s{S_HW}, 1")
e(f"s_lshl_b32 s{S_T3}, s{S_T3}, 6")
e(f"s_add_u32 s{S_T2}, s{S_T2}, s{S_T3}")
e(f"s_add_u32 s{S_T2}, s{S_T2}, {APART}")
e(f"s_lshl_b32 s{S_T3}, s{S_T0}, 11")
e(f"s_lshl_b32 s{S_T1}, s{S_T1}, 8")
e(f"s_add_u32 s{S_T3}, s{S_T3}, s{S_T1}")
e(f"s_add_u32 s{S_T3}, s{S_T3}, {AML}")
e(f"v_and_b32 v{H_A}, 31, v0")
e(f"v_lshrrev_b32 v{H_B}, 5, v0")
e(f"v_lshlrev_b32 v{H_C}, 3, v{H_A}")
e(f"v_lshlrev_b32 v{H_B}, 5, v{H_B}")
e(f"v_lshl_add_u32 v{H_B}, v{H_A}, 12, v{H_B}")
lab("L_l1f")
e(f"buffer_load_dwordx2 v[{H_R+8}:{H_R+9}], v{H_C}, {srd(SRD_WS)}, s{S_T3} offen sc1")
e("s_waitcnt vmcnt(0)")
e(f"v_max_u32 v{H_D}, v{H_R+8}, v{H_R+9}")
e(f"v_cmp_eq_u32 vcc, -1, v{H_D}")
e(f"s_bcnt1_i32_b64 s{S_T1}, vcc")
e(f"s_cmp_le_u32 s{S_T1}, {cfg.L1TH}")
e("s_cbranch_scc1 L_l1poll")
spin_tail("L_l1f", 2)
lab("L_l1poll")
e(f"buffer_load_dwordx4 v[{H_R}:{H_R+3}], v{H_B}, {srd(SRD_WS)}, s{S_T2} offen sc1")
e(f"buffer_load_dwordx4 v[{H_R+4}:{H_R+7}], v{H_B}, {srd(SRD_WS)}, s{S_T2} offen offset:16 sc1")
e(f"buffer_load_dwordx2 v[{H_R+8}:{H_R+9}], v{H_C}, {srd(SRD_WS)}, s{S_T3} offen sc1")
e("s_waitcnt vmcnt(0)")
e(f"v_max3_u32 v{H_D}, v{H_R}, v{H_R+1}, v{H_R+2}")
e(f"v_max3_u32 v{H_E}, v{H_R+3}, v{H_R+4}, v{H_R+5}")
e(f"v_max3_u32 v{H_D}, v{H_D}, v{H_R+6}, v{H_R+7}")
e(f"v_max3_u32 v{H_E}, v{H_E}, v{H_R+8}, v{H_R+9}")
e(f"v_max_u32 v{H_D}, v{H_D}, v{H_E}")
e(f"v_cmp_eq_u32 vcc, -1, v{H_D}")
e("s_cbranch_vccz L_l1poll_d")
spin_tail("L_l1poll", 1)
lab("L_l1poll_d")
stamp()
e(f"v_mov_b32 v{H_D}, v{H_R+8}")
dpp_reduce("v_max_f32", [H_D], H_X, full=False)
e(f"s_mov_b32 s{S_T1}, {LOG2E:#x}")
e(f"v_sub_f32 v{H_D}, v{H_R+8}, v{H_D}")
e(f"v_mul_f32 v{H_D}, s{S_T1}, v{H_D}")
e(f"v_exp_f32 v{H_D}, v{H_D}")
e("s_nop 0")
for k in range(8):
    e(f"v_mul_f32 v{H_R+k}, v{H_D}, v{H_R+k}")
e(f"v_mul_f32 v{H_R+8}, v{H_D}, v{H_R+9}")
dpp_reduce("v_add_f32", [H_R + k for k in range(9)], H_X, full=False)
e(f"v_rcp_f32 v{H_D}, v{H_R+8}")
e("s_nop 0")
for k in range(8):
    e(f"v_mul_f32 v{H_R+k}, v{H_D}, v{H_R+k}")
for k in range(4):
    e(f"v_cvt_pk_bf16_f32 v{H_R+k}, v{H_R+2*k}, v{H_R+2*k+1}")
e(f"s_lshl_b32 s{S_T1}, s{S_HW}, 5")
e(f"v_lshrrev_b32 v{H_A}, 5, v0")
e(f"v_lshlrev_b32 v{H_A}, 4, v{H_A}")
e(f"v_add_u32 v{H_A}, s{S_T1}, v{H_A}")
mask(0x0000000100000001)
e(f"ds_write_b128 v{H_A}, v[{H_R}:{H_R+3}] offset:{OL}")
e("s_mov_b64 exec, -1")
e("s_waitcnt lgkmcnt(0)")
stamp()
e("s_barrier")
c("level-2")
e(f"s_cmp_lg_u32 s{S_HW}, 0")
e("s_cbranch_scc1 L_h_end")
e(f"v_and_b32 v{H_C}, 1, v0")
e(f"v_lshlrev_b32 v{H_B}, 4, v{H_C}")
e(f"ds_read_b128 v[{H_X+8}:{H_X+11}], v{H_B} offset:{G2L}")
mailbox(SPART, "smb", 1)
stamp()
e(f"s_mov_b32 s{S_T2}, 0xffff0000")
e(f"v_lshlrev_b32 v{H_X}, 16, v{H_XF}")
e(f"v_and_b32 v{H_X+1}, s{S_T2}, v{H_XF}")
e(f"v_lshlrev_b32 v{H_X+2}, 16, v{H_XF+1}")
e(f"v_and_b32 v{H_X+3}, s{S_T2}, v{H_XF+1}")
e("s_waitcnt lgkmcnt(0)")
for k in range(4):
    bf16r(H_R + k, H_R + k, H_B)
    e(f"v_mul_f32 v{H_R+k}, v{H_R+k}, v{H_X+8+k}")
    bf16r(H_R + k, H_R + k, H_B)
    e(f"v_add_f32 v{H_R+k}, v{H_X+k}, v{H_R+k}")
e(f"v_cvt_pk_bf16_f32 v{H_R}, v{H_R}, v{H_R+1}")
e(f"v_cvt_pk_bf16_f32 v{H_R+1}, v{H_R+2}, v{H_R+3}")
e(f"s_lshl_b32 s{S_T0}, s{S_WG}, 3")
e(f"v_lshlrev_b32 v{H_A}, 11, v{H_C}")
mask(0x3)
e(f"buffer_store_dwordx2 v[{H_R}:{H_R+1}], v{H_A}, {srd(SRD_OUT)}, s{S_T0} offen")
e("s_mov_b64 exec, -1")
stamp()
lab("L_h_end")
stamp_flush(H_A, H_B)
lab("L_end")
e("s_endpgm")

L.append('.section .rodata,"a"')
L.append(".p2align 6")
L.append(f".amdhsa_kernel {KNAME}")
L.append(f"  .amdhsa_next_free_vgpr {NV_STREAM}")
L.append("  .amdhsa_next_free_sgpr 100")
L.append(f"  .amdhsa_accum_offset {NV_STREAM}")
L.append("  .amdhsa_group_segment_fixed_size 0")
L.append("  .amdhsa_kernarg_size 96")
L.append("  .amdhsa_user_sgpr_count 2")
L.append("  .amdhsa_user_sgpr_kernarg_segment_ptr 1")
L.append("  .amdhsa_system_sgpr_workgroup_id_x 1")
L.append(".end_amdhsa_kernel")
open(sys.argv[1], "w").write("\n".join(L) + "\n")
print("wrote", sys.argv[1], len(L), "lines; LDS", LDS_BYTES)
```

```python
import sys

KNAME = "recurrent_scan__gqa_block_cached__swiglu_ffn__decode_kernel"

class Cfg:
    R = 4
    NT = False
    DIAG = False
    SPIN = 1 << 22
    D = 2
    PAT = 2
    DH = 0
    L1TH = 8
    NP = 4

cfg = Cfg()
for a in sys.argv[2:]:
    k, v = a.split("=")
    setattr(cfg, k, int(v))

R = cfg.R
L = []
def e(s): L.append("    " + s)
def lab(s): L.append(s + ":")
def c(s): L.append("    ; " + s)

QPART = 0x000000
GUPART = 0x040000
APART = 0x080000
AML = 0x180000
SPART = 0x200000
FPART = 0x300000
SFLAG = 0x190000
QFLAG = 0x1A0000
HFLAG = 0x1A2000
TSOFF = 0x400000
WS_BYTES = 0x500000

XN = 0
REDQ = XN + 4096
REDG = REDQ + 4096
QL = REDG + 4096
AO = QL + 2048
AMLL = AO + 16384
HL = AMLL + 256
OL = HL + 128
G2L = OL + 128
FLG = G2L + 64
RING = 32768
assert FLG + 64 <= RING
LDS_BYTES = RING + 4 * R * 8192
assert LDS_BYTES <= 163840, LDS_BYTES

S_WG = 2
S_WAVE = 3
SRD_X, SRD_K, SRD_V, SRD_WQ, SRD_WO, SRD_GU, SRD_WD, SRD_OUT, SRD_DBG, SRD_WS, SRD_FP = \
    [56 + 4 * i for i in range(11)]
def srd(b): return f"s[{b}:{b+3}]"
S_WB = 4
S_T0, S_T1, S_T2, S_T3 = 5, 6, 7, 8
S_BQ, S_BG, S_BKV, S_BD, S_BO = 9, 10, 11, 12, 13
S_SPIN = 14
S_T4 = 15
S_STAMP0 = 16
nstamp = [0]

def stamp(reset=False):
    if not cfg.DIAG:
        return
    i = nstamp[0]
    assert i < 14
    e("s_memrealtime s[30:31]")
    e("s_waitcnt lgkmcnt(0)")
    e(f"s_mov_b32 s{S_STAMP0+i}, s30")
    nstamp[0] += 1

def stamp_flush(vtmp0, vtmp1, dbgmap=None):
    if not cfg.DIAG:
        return
    n = nstamp[0]
    if cfg.DIAG == 2:
        e("s_mov_b64 exec, 1")
        e(f"v_mov_b32 v{vtmp0}, 0")
        for (i, word, inv) in dbgmap:
            if inv:
                e(f"s_not_b32 s30, s{S_STAMP0+i}")
            else:
                e(f"s_mov_b32 s30, s{S_STAMP0+i}")
            e(f"v_mov_b32 v{vtmp1}, s30")
            e(f"buffer_atomic_umax v{vtmp1}, v{vtmp0}, {srd(SRD_DBG)}, 0 offen offset:{4*word} sc1")
            e("s_nop 1")
        e("s_mov_b64 exec, -1")
        nstamp[0] = 0
        return
    e(f"s_lshl_b32 s30, s{S_WG}, 3")
    e(f"s_add_u32 s30, s30, s{S_WAVE}")
    e("s_lshl_b32 s30, s30, 6")
    e(f"s_add_u32 s30, s30, {TSOFF}")
    e("s_mov_b64 exec, 1")
    e(f"v_mov_b32 v{vtmp0}, 0")
    for i in range(n):
        e(f"v_mov_b32 v{vtmp1}, s{S_STAMP0+i}")
        e(f"buffer_store_dword v{vtmp1}, v{vtmp0}, {srd(SRD_WS)}, s30 offen offset:{4*i}")
        e("s_nop 1")
    e("s_mov_b64 exec, -1")
    nstamp[0] = 0

NTF = " nt" if cfg.NT else ""

LOG2E = 0x3fb8aa3b
SCALE = 0x3db504f3

L.append(f"; @launch grid=(256,1,1) block=(512,1,1) lds={LDS_BYTES}")
L.append('.amdgcn_target "amdgcn-amd-amdhsa--gfx950"')
L.append(".text")
L.append(f".globl {KNAME}")
L.append(".p2align 8")
L.append(f".type {KNAME},@function")
lab(KNAME)
e(f"s_cmp_ge_u32 s{S_WG}, 256")
e("s_cbranch_scc1 L_end")
e("s_load_dwordx16 s[32:47], s[0:1], 0")
e("s_load_dwordx8 s[48:55], s[0:1], 64")
e("v_lshrrev_b32 v1, 6, v0")
e("v_and_b32 v0, 63, v0")
e(f"v_readfirstlane_b32 s{S_WAVE}, v1")
e(f"s_mov_b32 s{S_SPIN}, {cfg.SPIN}")
e("s_waitcnt lgkmcnt(0)")
def mk_srd(b, plo, nbytes):
    e(f"s_mov_b32 s{b}, s{plo}")
    e(f"s_mov_b32 s{b+1}, s{plo+1}")
    e(f"s_mov_b32 s{b+2}, {nbytes}")
    e(f"s_mov_b32 s{b+3}, 0x00020000")
mk_srd(SRD_X, 32, 4096)
mk_srd(SRD_K, 34, 0x4000000)
mk_srd(SRD_V, 36, 0x4000000)
mk_srd(SRD_WQ, 38, 0x800000)
mk_srd(SRD_WO, 40, 0x800000)
e(f"s_cmp_ge_u32 s{S_WG}, 112")
e(f"s_cselect_b32 s{SRD_GU}, s46, s44")
e(f"s_cselect_b32 s{SRD_GU+1}, s47, s45")
e(f"s_cmp_lt_u32 s{S_WG}, 224")
e(f"s_cselect_b32 s{SRD_GU+2}, 0x700000, 0")
e(f"s_mov_b32 s{SRD_GU+3}, 0x00020000")
mk_srd(SRD_WD, 48, 0x700000)
e(f"s_cmp_ge_u32 s{S_WG}, 32")
e(f"s_cselect_b32 s{SRD_WD+2}, 0x700000, 0")
mk_srd(SRD_OUT, 50, 4096)
mk_srd(SRD_DBG, 52, 256)
mk_srd(SRD_WS, 54, WS_BYTES)
e(f"s_add_u32 s{SRD_FP}, s54, {FPART}")
e(f"s_addc_u32 s{SRD_FP+1}, s55, 0")
e(f"s_mov_b32 s{SRD_FP+2}, {112*8192}")
e(f"s_mov_b32 s{SRD_FP+3}, 0x00020000")
e(f"s_cmp_ge_u32 s{S_WAVE}, 4")
e("s_cbranch_scc1 L_helper")

c("================ stream waves ================")
V_L = 0
V_G, V_I, V_T0, V_T1, V_T2, V_T3 = 1, 2, 3, 4, 5, 6
V_CV = 7
V_OWQ = 9
V_OGU = 11
V_OW2 = 13
V_OV = 15
V_OK = 17
V_KA = 21
V_VA = 25
V_XB = 33
V_RED = 34
V_ST = 35
V_MX = 36
V_LS = 37
V_MC = 38
V_T4 = 39
V_B = 40
V_A = 56
V_O = 88
V_S = 120
V_P = 184
V_X = 216
NV_STREAM = 248

outstanding = []
def vm_issue(tag): outstanding.append(tag)
def vm_wait(tag):
    if tag not in outstanding:
        return
    idx = max(i for i, t in enumerate(outstanding) if t == tag)
    n = len(outstanding) - 1 - idx
    assert n <= 63
    e(f"s_waitcnt vmcnt({n})")
    del outstanding[:idx + 1]

e(f"v_lshrrev_b32 v{V_G}, 4, v{V_L}")
e(f"v_and_b32 v{V_I}, 15, v{V_L}")
e(f"s_mul_i32 s{S_WB}, s{S_WAVE}, {R*8192}")
e(f"s_add_u32 s{S_WB}, s{S_WB}, {RING}")
e(f"v_lshlrev_b32 v{V_T0}, 1, v{V_G}")
e(f"v_xor_b32 v{V_T0}, v{V_T0}, v{V_I}")
e(f"v_lshlrev_b32 v{V_CV}, 4, v{V_T0}")
e(f"v_xor_b32 v{V_CV+1}, 0x80, v{V_CV}")
def mk_off(dst, rs):
    e(f"v_mul_u32_u24 v{V_T0}, {rs}, v{V_G}")
    e(f"v_add_u32 v{dst}, v{V_T0}, v{V_CV}")
    e(f"v_add_u32 v{dst+1}, v{V_T0}, v{V_CV+1}")
mk_off(V_OWQ, 8192)
e(f"s_and_b32 s{S_T0}, s{S_WG}, 7")
e(f"s_lshl_b32 s{S_T0}, s{S_T0}, 2")
e(f"s_add_u32 s{S_T0}, s{S_T0}, s{S_WAVE}")
e(f"s_lshl_b32 s{S_BQ}, s{S_T0}, 18")
e(f"s_lshl_b32 s{S_T4}, s{S_T0}, 6")
e(f"s_lshr_b32 s{S_T1}, s{S_WG}, 3")
e(f"s_lshl_b32 s{S_T1}, s{S_T1}, 8")
e(f"s_add_u32 s{S_BQ}, s{S_BQ}, s{S_T1}")

def half_throttle():
    if cfg.DH > 0:
        keep = (cfg.DH - 1) * 4
        if len(outstanding) > keep:
            e(f"s_waitcnt vmcnt({keep})")
            del outstanding[:len(outstanding) - keep]
def dma_w(u, srd_b, sbase, extra, rs, voff):
    slot = u % R
    for jj in range(8):
        if jj % 4 == 0:
            half_throttle()
            e(f"s_add_u32 m0, s{S_WB}, {slot*8192 + (jj//4)*4096}")
        e(f"s_add_u32 s{S_T3}, s{sbase}, {extra + jj*4*rs - (jj&3)*1024}")
        e(f"buffer_load_dwordx4 v{voff + (jj&1)}, {srd(srd_b)}, s{S_T3} offen offset:{(jj&3)*1024}{NTF} lds")
        vm_issue(u)

def dma_kv(u, is_k, idx):
    slot = u % R
    for half in range(2):
        half_throttle()
        e(f"s_add_u32 m0, s{S_WB}, {slot*8192 + half*4096}")
        e(f"s_add_u32 s{S_T3}, s{S_BKV}, {idx*KVSTRIDE + half*4096}")
        for j4 in range(4):
            if is_k:
                e(f"buffer_load_dwordx4 v{V_OK + j4}, {srd(SRD_K)}, s{S_T3} offen offset:{j4*1024}{NTF} lds")
            else:
                e(f"buffer_load_dwordx4 v{V_OV + (j4&1)}, {srd(SRD_V)}, s{S_T3} offen offset:{j4*1024}{NTF} lds")
            vm_issue(u)

NUNITS = 21
def issue_unit(u):
    if u >= NUNITS:
        return
    if (u - cfg.D) in outstanding:
        vm_wait(u - cfg.D)
    if u == 0:
        dma_w(u, SRD_WQ, S_BQ, 0, 8192, V_OWQ)
    elif u in (1, 2):
        dma_w(u, SRD_GU, S_BG, (u - 1) * 32 * 7168, 7168, V_OGU)
    elif u <= 10:
        dma_kv(u, True, u - 3)
    elif u == 11:
        dma_w(u, SRD_WD, S_BD, 0, 2048, V_OW2)
    elif u <= 19:
        dma_kv(u, False, u - 12)
    else:
        dma_w(u, SRD_WO, S_BO, 0, 2048, V_OW2)

issue_unit(0)
mk_off(V_OGU, 7168)
e(f"s_and_b32 s{S_T0}, s{S_WG}, 3")
e(f"s_lshl_b32 s{S_T0}, s{S_T0}, 2")
e(f"s_add_u32 s{S_T0}, s{S_T0}, s{S_WAVE}")
e(f"s_mul_i32 s{S_BG}, s{S_T0}, {64*7168}")
e(f"s_lshl_b32 s{S_T2}, s{S_T0}, 7")
e(f"s_lshr_b32 s{S_T1}, s{S_WG}, 2")
e(f"s_cmp_ge_u32 s{S_T1}, 28")
e(f"s_cselect_b32 s{S_T0}, 28, 0")
e(f"s_sub_u32 s{S_T1}, s{S_T1}, s{S_T0}")
e(f"s_lshl_b32 s{S_T1}, s{S_T1}, 8")
e(f"s_add_u32 s{S_BG}, s{S_BG}, s{S_T1}")
S_XG = S_T2
S_XQ = S_T4
issue_unit(1)
if cfg.PAT == 0:
    e(f"s_lshl_b32 s{S_BKV}, s{S_WG}, 18")
    e(f"s_lshl_b32 s{S_T0}, s{S_WAVE}, 16")
    e(f"s_add_u32 s{S_BKV}, s{S_BKV}, s{S_T0}")
    KVSTRIDE = 8192
elif cfg.PAT == 1:
    e(f"s_lshl_b32 s{S_BKV}, s{S_WG}, 18")
    e(f"s_lshl_b32 s{S_T0}, s{S_WAVE}, 13")
    e(f"s_add_u32 s{S_BKV}, s{S_BKV}, s{S_T0}")
    KVSTRIDE = 32768
else:
    e(f"s_lshr_b32 s{S_BKV}, s{S_WG}, 5")
    e(f"s_lshl_b32 s{S_BKV}, s{S_BKV}, 23")
    e(f"s_and_b32 s{S_T0}, s{S_WG}, 31")
    e(f"s_lshl_b32 s{S_T0}, s{S_T0}, 2")
    e(f"s_add_u32 s{S_T0}, s{S_T0}, s{S_WAVE}")
    e(f"s_lshl_b32 s{S_T0}, s{S_T0}, 13")
    e(f"s_add_u32 s{S_BKV}, s{S_BKV}, s{S_T0}")
    KVSTRIDE = 1 << 20
e(f"v_xor_b32 v{V_T0}, v{V_I}, v{V_G}")
e(f"v_lshlrev_b32 v{V_T1}, 8, v{V_G}")
for j4 in range(4):
    e(f"v_xor_b32 v{V_T2}, {4*j4}, v{V_T0}")
    e(f"v_lshl_add_u32 v{V_OK+j4}, v{V_T2}, 4, v{V_T1}")
mk_off(V_OV, 256)
mk_off(V_OW2, 2048)
e(f"s_max_u32 s{S_T0}, s{S_WG}, 32")
e(f"s_sub_u32 s{S_T0}, s{S_T0}, 32")
def mk_base2(dst, src):
    e(f"s_lshr_b32 s{S_T1}, s{src}, 1")
    e(f"s_lshl_b32 s{dst}, s{S_T1}, 16")
    e(f"s_and_b32 s{S_T1}, s{src}, 1")
    e(f"s_lshl_b32 s{S_T1}, s{S_T1}, 10")
    e(f"s_add_u32 s{dst}, s{dst}, s{S_T1}")
    e(f"s_lshl_b32 s{S_T1}, s{S_WAVE}, 8")
    e(f"s_add_u32 s{dst}, s{dst}, s{S_T1}")
mk_base2(S_BD, S_T0)
mk_base2(S_BO, S_WG)
e(f"v_xor_b32 v{V_T0}, v{V_I}, v{V_G}")
e(f"v_lshlrev_b32 v{V_T1}, 8, v{V_I}")
e(f"v_add_u32 v{V_T1}, s{S_WB}, v{V_T1}")
for ks in range(4):
    e(f"v_xor_b32 v{V_T2}, {4*ks}, v{V_T0}")
    e(f"v_lshl_add_u32 v{V_KA+ks}, v{V_T2}, 4, v{V_T1}")
e(f"v_lshrrev_b32 v{V_T0}, 2, v{V_L}")
e(f"v_lshlrev_b32 v{V_T1}, 8, v{V_T0}")
e(f"v_add_u32 v{V_T1}, s{S_WB}, v{V_T1}")
e(f"v_and_b32 v{V_T2}, 3, v{V_L}")
e(f"v_lshl_add_u32 v{V_T1}, v{V_T2}, 3, v{V_T1}")
e(f"v_and_b32 v{V_T0}, 7, v{V_T0}")
for t in range(8):
    e(f"v_xor_b32 v{V_T2}, {t}, v{V_T0}")
    e(f"v_lshl_add_u32 v{V_VA+t}, v{V_T2}, 5, v{V_T1}")
e(f"v_and_b32 v{V_T0}, 1, v{V_I}")
e(f"v_lshlrev_b32 v{V_T1}, 3, v{V_G}")
e(f"v_lshl_add_u32 v{V_XB}, v{V_T0}, 11, v{V_T1}")
e(f"v_lshlrev_b32 v{V_T1}, 4, v{V_G}")
e(f"v_lshl_add_u32 v{V_RED}, v{V_I}, 9, v{V_T1}")
e(f"v_lshlrev_b32 v{V_T1}, 4, v{V_I}")
e(f"v_lshl_add_u32 v{V_ST}, v{V_G}, 12, v{V_T1}")

def mask(m):
    e(f"s_mov_b32 exec_lo, {m & 0xffffffff:#x}")
    e(f"s_mov_b32 exec_hi, {(m >> 32) & 0xffffffff:#x}")
M_N2 = 0x0003000300030003
M_N8 = 0x00FF00FF00FF00FF

def gemv_unit(u, first, nxt=True):
    slot = u % R
    vm_wait(u)
    for t in range(8):
        e(f"ds_read_b64_tr_b16 v[{V_A+4*t}:{V_A+4*t+1}], v{V_VA+t} offset:{slot*8192}")
        e(f"ds_read_b64_tr_b16 v[{V_A+4*t+2}:{V_A+4*t+3}], v{V_VA+t} offset:{slot*8192+4096}")
        if t == 3:
            pass
    for t in range(8):
        if t % 2 == 0:
            e(f"s_waitcnt lgkmcnt({16 - 2*t - 4})")
        cc = "0" if first else f"v[{V_O+4*t}:{V_O+4*t+3}]"
        e(f"v_mfma_f32_16x16x32_bf16 v[{V_O+4*t}:{V_O+4*t+3}], v[{V_A+4*t}:{V_A+4*t+3}], v[{V_B}:{V_B+3}], {cc}")
    if nxt:
        issue_unit(u + R)

def read_b(vaddr_s, base):
    pass

for u in range(2, cfg.D):
    issue_unit(u)
nxt_issue = [max(2, cfg.D)]
def pump(upto):
    while nxt_issue[0] <= upto:
        issue_unit(nxt_issue[0]); nxt_issue[0] += 1
stamp()
e("s_barrier")
c("---- q-proj unit ----")
e(f"v_add_u32 v{V_T3}, s{S_XQ}, v{V_XB}")
e(f"ds_read_b64 v[{V_B}:{V_B+1}], v{V_T3} offset:{XN}")
e(f"ds_read_b64 v[{V_B+2}:{V_B+3}], v{V_T3} offset:{XN+32}")
e(f"v_add_u32 v{V_T3}, s{S_XG}, v{V_XB}")
e(f"ds_read_b64 v[{V_B+4}:{V_B+5}], v{V_T3} offset:{XN}")
e(f"ds_read_b64 v[{V_B+6}:{V_B+7}], v{V_T3} offset:{XN+32}")
e(f"ds_read_b64 v[{V_B+8}:{V_B+9}], v{V_T3} offset:{XN+64}")
e(f"ds_read_b64 v[{V_B+10}:{V_B+11}], v{V_T3} offset:{XN+96}")
e("s_waitcnt lgkmcnt(0)")
gemv_unit(0, True, nxt=False)
e(f"s_lshl_b32 s{S_T0}, s{S_WAVE}, 10")
e(f"v_add_u32 v{V_T3}, s{S_T0}, v{V_RED}")
e("s_nop 7")
mask(M_N2)
for t in range(8):
    e(f"ds_write_b128 v{V_T3}, v[{V_O+4*t}:{V_O+4*t+3}] offset:{REDQ + t*64}")
e("s_mov_b64 exec, -1")
e("s_waitcnt lgkmcnt(0)")
stamp()
e("s_barrier")
pump(cfg.D)
c("---- gate/up units ----")
for k in range(4):
    e(f"v_mov_b32 v{V_B+k}, v{V_B+4+k}")
e("s_nop 1")
gemv_unit(1, True, nxt=False)
pump(1 + cfg.D)
e("s_nop 7")
for k in range(4):
    e(f"v_mov_b32 v{V_B+k}, v{V_B+8+k}")
e("s_nop 1")
gemv_unit(2, False, nxt=False)
e("s_nop 7")
mask(M_N2)
for t in range(8):
    e(f"ds_write_b128 v{V_T3}, v[{V_O+4*t}:{V_O+4*t+3}] offset:{REDG + t*64}")
e("s_mov_b64 exec, -1")
e("s_waitcnt lgkmcnt(0)")
e("s_barrier")
pump(2 + R)
PARK = [V_O, V_P, V_X, V_A][:cfg.NP]
def k_frags(u, base):
    slot = u % R
    vm_wait(u)
    for tile in range(2):
        for ks in range(4):
            a = base + 16*tile + 4*ks
            e(f"ds_read_b128 v[{a}:{a+3}], v{V_KA+ks} offset:{slot*8192 + tile*4096}")
for ku in range(cfg.NP):
    k_frags(3 + ku, PARK[ku])
    e("s_waitcnt lgkmcnt(0)")
    pump(3 + ku + R)
stamp()
e("s_barrier")
stamp()
c("---- load q fragments ----")
e(f"v_and_b32 v{V_T0}, 7, v{V_I}")
e(f"v_lshlrev_b32 v{V_T1}, 4, v{V_G}")
e(f"v_lshl_add_u32 v{V_T0}, v{V_T0}, 8, v{V_T1}")
for ks in range(4):
    e(f"ds_read_b128 v[{V_B+4*ks}:{V_B+4*ks+3}], v{V_T0} offset:{QL + ks*64}")
e(f"s_mov_b32 s{S_T0}, {SCALE:#x}")
e(f"s_mov_b32 s{S_T1}, 0xffff0000")
e(f"v_mov_b32 v{V_MX}, 0xff800000")
e("s_waitcnt lgkmcnt(0)")

def score_post(base):
    for h in range(2):
        a, b = base + 2*h, base + 2*h + 1
        e(f"v_cvt_pk_bf16_f32 v{V_T2}, v{a}, v{b}")
        e(f"v_lshlrev_b32 v{a}, 16, v{V_T2}")
        e(f"v_and_b32 v{b}, s{S_T1}, v{V_T2}")
        e(f"v_mul_f32 v{a}, s{S_T0}, v{a}")
        e(f"v_mul_f32 v{b}, s{S_T0}, v{b}")
        e(f"v_cvt_pk_bf16_f32 v{V_T2}, v{a}, v{b}")
        e(f"v_lshlrev_b32 v{a}, 16, v{V_T2}")
        e(f"v_and_b32 v{b}, s{S_T1}, v{V_T2}")
        e(f"v_max3_f32 v{V_MX}, v{a}, v{b}, v{V_MX}")

c("---- K phase ----")
for ku in range(8):
    u = 3 + ku
    parked = ku < cfg.NP
    base = PARK[ku] if parked else V_A
    if not parked:
        k_frags(u, V_A)
    for tile in range(2):
        d = V_S + (2*ku + tile) * 4
        if not parked:
            e(f"s_waitcnt lgkmcnt({4 - 4*tile})")
        for ks in range(4):
            a = base + 16*tile + 4*ks
            cc = "0" if ks == 0 else f"v[{d}:{d+3}]"
            e(f"v_mfma_f32_16x16x32_bf16 v[{d}:{d+3}], v[{a}:{a+3}], v[{V_B+4*ks}:{V_B+4*ks+3}], {cc}")
    if not parked:
        pump(u + R)
    e("s_nop 7")
    score_post(V_S + (2*ku) * 4)
    score_post(V_S + (2*ku + 1) * 4)
stamp()
c("---- softmax ----")
def xswap(op, v, tmp):
    e(f"v_mov_b32 v{tmp}, v{v}")
    e("s_nop 1")
    e(f"v_permlane16_swap_b32 v{v}, v{tmp}")
    e(f"{op} v{v}, v{v}, v{tmp}")
    e(f"v_mov_b32 v{tmp}, v{v}")
    e("s_nop 1")
    e(f"v_permlane32_swap_b32 v{v}, v{tmp}")
    e(f"{op} v{v}, v{v}, v{tmp}")
xswap("v_max_f32", V_MX, V_T2)
e(f"s_mov_b32 s{S_T0}, {LOG2E:#x}")
e(f"v_mul_f32 v{V_MC}, s{S_T0}, v{V_MX}")
e(f"v_mov_b32 v{V_LS}, 0")
e(f"v_mov_b32 v{V_T4}, 0")
for r in range(0, 64, 2):
    a, b = V_S + r, V_S + r + 1
    e(f"v_fma_f32 v{a}, v{a}, s{S_T0}, -v{V_MC}")
    e(f"v_fma_f32 v{b}, v{b}, s{S_T0}, -v{V_MC}")
    e(f"v_exp_f32 v{a}, v{a}")
    e(f"v_exp_f32 v{b}, v{b}")
    e("s_nop 0")
    e(f"v_add_f32 v{V_LS}, v{V_LS}, v{a}")
    e(f"v_add_f32 v{V_T4}, v{V_T4}, v{b}")
    e(f"v_cvt_pk_bf16_f32 v{V_P + r//2}, v{a}, v{b}")
e(f"v_add_f32 v{V_LS}, v{V_LS}, v{V_T4}")
xswap("v_add_f32", V_LS, V_T2)
stamp()
e("s_barrier")
c("---- down-proj unit ----")
e(f"v_and_b32 v{V_T0}, 1, v{V_I}")
e(f"v_lshlrev_b32 v{V_T1}, 3, v{V_G}")
e(f"v_lshl_add_u32 v{V_T3}, v{V_T0}, 6, v{V_T1}")
e(f"ds_read_b64 v[{V_B}:{V_B+1}], v{V_T3} offset:{HL}")
e(f"ds_read_b64 v[{V_B+2}:{V_B+3}], v{V_T3} offset:{HL+32}")
e("s_waitcnt lgkmcnt(0)")
gemv_unit(11, True, nxt=False)
pump(11 + R)
def store_part(sb, region, oob_lt32):
    e("s_nop 7")
    for r in range(32):
        e(f"v_min_u32 v{V_O+r}, 0xfffffffe, v{V_O+r}")
    e(f"s_lshr_b32 s{S_T0}, s{sb}, 16")
    e(f"s_lshl_b32 s{S_T0}, s{S_T0}, 5")
    e(f"s_and_b32 s{S_T1}, s{sb}, 0xffff")
    e(f"s_lshl_b32 s{S_T1}, s{S_T1}, 9")
    e(f"s_add_u32 s{S_T0}, s{S_T0}, s{S_T1}")
    e(f"s_add_u32 s{S_T0}, s{S_T0}, {region}")
    if oob_lt32:
        e(f"s_cmp_lt_u32 s{S_WG}, 32")
        e(f"s_cselect_b32 s{S_T0}, 0x40000000, s{S_T0}")
    mask(M_N2)
    for t in range(8):
        e(f"buffer_store_dwordx4 v[{V_O+4*t}:{V_O+4*t+3}], v{V_ST}, {srd(SRD_WS)}, s{S_T0} offen sc1")
        vm_issue("st")
        if t < 7:
            e(f"s_add_u32 s{S_T0}, s{S_T0}, 16384")
    e("s_mov_b64 exec, -1")
store_part(S_BD, FPART, True)
c("---- V phase ----")
for vu in range(8):
    u = 12 + vu
    slot = u % R
    vm_wait(u)
    for t in range(8):
        e(f"ds_read_b64_tr_b16 v[{V_A+4*t}:{V_A+4*t+1}], v{V_VA+t} offset:{slot*8192}")
        e(f"ds_read_b64_tr_b16 v[{V_A+4*t+2}:{V_A+4*t+3}], v{V_VA+t} offset:{slot*8192+4096}")
    for t in range(8):
        if t % 2 == 0:
            e(f"s_waitcnt lgkmcnt({16 - 2*t - 4})")
        cc = "0" if vu == 0 else f"v[{V_O+4*t}:{V_O+4*t+3}]"
        e(f"v_mfma_f32_16x16x32_bf16 v[{V_O+4*t}:{V_O+4*t+3}], v[{V_A+4*t}:{V_A+4*t+3}], v[{V_P+4*vu}:{V_P+4*vu+3}], {cc}")
    pump(u + R)
c("---- write attention partial to LDS ----")
e(f"s_lshl_b32 s{S_T0}, s{S_WAVE}, 12")
e(f"v_add_u32 v{V_T3}, s{S_T0}, v{V_RED}")
e(f"s_lshl_b32 s{S_T0}, s{S_WAVE}, 3")
e(f"v_lshlrev_b32 v{V_T2}, 5, v{V_I}")
e(f"v_add_u32 v{V_T2}, s{S_T0}, v{V_T2}")
e(f"v_mov_b32 v{V_MX+1}, v{V_LS}") if V_LS != V_MX + 1 else None
e("s_nop 7")
mask(M_N8)
for t in range(8):
    e(f"ds_write_b128 v{V_T3}, v[{V_O+4*t}:{V_O+4*t+3}] offset:{AO + t*64}")
mask(0xFF)
e(f"ds_write_b64 v{V_T2}, v[{V_MX}:{V_MX+1}] offset:{AMLL}")
e("s_mov_b64 exec, -1")
e("s_waitcnt lgkmcnt(0)")
stamp()
e("s_barrier")
stamp()
e("s_barrier")
stamp()
c("---- wo unit ----")
e(f"v_and_b32 v{V_T0}, 1, v{V_I}")
e(f"v_lshlrev_b32 v{V_T1}, 3, v{V_G}")
e(f"v_lshl_add_u32 v{V_T3}, v{V_T0}, 6, v{V_T1}")
e(f"ds_read_b64 v[{V_B}:{V_B+1}], v{V_T3} offset:{OL}")
e(f"ds_read_b64 v[{V_B+2}:{V_B+3}], v{V_T3} offset:{OL+32}")
e("s_waitcnt lgkmcnt(0)")
gemv_unit(20, True, nxt=False)
stamp()
store_part(S_BO, SPART, False)
stamp()
if cfg.DIAG:
    e("s_waitcnt vmcnt(0)")
stamp()
stamp_flush(V_T0, V_T1, [(0,4,1),(0,5,0),(3,6,0),(4,7,0),(6,8,1),(6,9,0),(8,10,0),(11,11,0)])
e("s_endpgm")

lab("L_helper")
c("================ helper waves ================")
S_HW = 4
H_T = 1
H_A, H_B, H_C, H_D, H_E = 2, 3, 4, 5, 6
H_XF = 8
H_NEG = 12
H_X = 16
H_R = 32
e(f"s_sub_u32 s{S_HW}, s{S_WAVE}, 4")
e(f"s_and_b32 s{S_T0}, s{S_HW}, 1")
e(f"s_lshl_b32 s{S_T1}, s{S_T0}, 11")
e(f"v_lshlrev_b32 v{H_A}, 5, v0")
e(f"buffer_load_dwordx4 v[{H_R}:{H_R+3}], v{H_A}, {srd(SRD_X)}, s{S_T1} offen")
e(f"buffer_load_dwordx4 v[{H_R+4}:{H_R+7}], v{H_A}, {srd(SRD_X)}, s{S_T1} offen offset:16")
e(f"s_lshl_b32 s{S_T2}, s{S_WG}, 3")
e(f"v_and_b32 v{H_B}, 1, v0")
e(f"v_lshlrev_b32 v{H_B}, 11, v{H_B}")
e(f"buffer_load_dwordx2 v[{H_XF}:{H_XF+1}], v{H_B}, {srd(SRD_X)}, s{S_T2} offen")
e(f"s_lshl_b32 s{S_T2}, s{S_HW}, 6")
e(f"v_add_u32 v{H_T}, s{S_T2}, v0")
for k in range(4):
    e(f"v_mov_b32 v{H_NEG+k}, -1")
e(f"v_mov_b32 v{H_C}, 0")
e(f"v_lshlrev_b32 v{H_D}, 2, v0")
e(f"v_and_b32 v{H_D}, 63, v{H_D}")
e(f"ds_write_b32 v{H_D}, v{H_C} offset:{FLG}")
c("bootstrap: WG 0 clears the flag area, then raises d_debug[0]")
e(f"v_lshlrev_b32 v{H_B}, 4, v{H_T}")
e(f"s_cmp_lg_u32 s{S_WG}, 0")
e("s_cbranch_scc1 L_h_noboot")
for k in range(3):
    e(f"s_mov_b32 s{S_T2}, {QFLAG + k*4096}")
    e(f"buffer_store_dwordx4 v[{H_NEG}:{H_NEG+3}], v{H_B}, {srd(SRD_WS)}, s{S_T2} offen sc1")
e("s_waitcnt vmcnt(0)")
e(f"s_lshl_b32 s{S_T2}, s{S_HW}, 2")
e(f"v_mov_b32 v{H_C}, 1")
e(f"v_mov_b32 v{H_D}, 0")
e("s_mov_b64 exec, 1")
e(f"buffer_store_dword v{H_C}, v{H_D}, {srd(SRD_DBG)}, s{S_T2} offen sc1")
e("s_mov_b64 exec, -1")
lab("L_h_noboot")
c("clear sentinels")
e(f"v_lshlrev_b32 v{H_B}, 4, v{H_T}")
e(f"s_lshl_b32 s{S_T2}, s{S_WG}, 12")
e(f"s_add_u32 s{S_T2}, s{S_T2}, {APART}")
e(f"buffer_store_dwordx4 v[{H_NEG}:{H_NEG+3}], v{H_B}, {srd(SRD_WS)}, s{S_T2} offen sc1")
e(f"s_lshl_b32 s{S_T2}, s{S_WG}, 12")
e(f"s_add_u32 s{S_T3}, s{S_T2}, {SPART}")
e(f"buffer_store_dwordx4 v[{H_NEG}:{H_NEG+3}], v{H_B}, {srd(SRD_WS)}, s{S_T3} offen sc1")
e(f"v_cmp_gt_u32 vcc, 224, v{H_T}")
e("s_nop 1")
for k in range(4):
    e(f"v_cndmask_b32 v{H_X+k}, 0, v{H_NEG}, vcc")
e(f"s_add_u32 s{S_T3}, s{S_T2}, {FPART}")
e(f"buffer_store_dwordx4 v[{H_X}:{H_X+3}], v{H_B}, {srd(SRD_WS)}, s{S_T3} offen sc1")
e(f"s_cmp_lg_u32 s{S_HW}, 0")
e("s_cbranch_scc1 L_h_skipml")
e(f"s_lshr_b32 s{S_T2}, s{S_WG}, 5")
e(f"s_lshl_b32 s{S_T2}, s{S_T2}, 11")
e(f"s_and_b32 s{S_T3}, s{S_WG}, 31")
e(f"s_lshl_b32 s{S_T3}, s{S_T3}, 3")
e(f"s_add_u32 s{S_T2}, s{S_T2}, s{S_T3}")
e(f"s_add_u32 s{S_T2}, s{S_T2}, {AML}")
e(f"v_lshlrev_b32 v{H_C}, 8, v0")
mask(0xFF)
e(f"buffer_store_dwordx2 v[{H_NEG}:{H_NEG+1}], v{H_C}, {srd(SRD_WS)}, s{S_T2} offen sc1")
e("s_mov_b64 exec, -1")
lab("L_h_skipml")

def dpp_reduce(op, regs, tmpbase, full=True):
    for pat in ["quad_perm:[1,0,3,2]", "quad_perm:[2,3,0,1]", "row_half_mirror", "row_mirror"]:
        if len(regs) < 3:
            e("s_nop 1")
        for r in regs:
            e(f"{op}_dpp v{r}, v{r}, v{r} {pat} row_mask:0xf bank_mask:0xf")
    swaps = ["v_permlane16_swap_b32"] + (["v_permlane32_swap_b32"] if full else [])
    for sw in swaps:
        for k, r in enumerate(regs):
            e(f"v_mov_b32 v{tmpbase+k}, v{r}")
        e("s_nop 1")
        for k, r in enumerate(regs):
            e(f"{sw} v{r}, v{tmpbase+k}")
        for k, r in enumerate(regs):
            e(f"{op} v{r}, v{r}, v{tmpbase+k}")

def bf16r(dst, src, tmp):
    e(f"v_cvt_pk_bf16_f32 v{tmp}, v{src}, v{src}")
    e(f"v_lshlrev_b32 v{dst}, 16, v{tmp}")

c("layernorm")
e("s_waitcnt vmcnt(3)")
e(f"s_mov_b32 s{S_T2}, 0xffff0000")
for k in range(8):
    e(f"v_lshlrev_b32 v{H_X+2*k}, 16, v{H_R+k}")
    e(f"v_and_b32 v{H_X+2*k+1}, s{S_T2}, v{H_R+k}")
e(f"v_add_f32 v{H_A}, v{H_X}, v{H_X+1}")
for k in range(2, 16):
    e(f"v_add_f32 v{H_A}, v{H_A}, v{H_X+k}")
dpp_reduce("v_add_f32", [H_A], H_B)
e(f"v_mul_f32 v{H_A}, 0x3a800000, v{H_A}")
e(f"v_mov_b32 v{H_C}, 0")
for k in range(16):
    e(f"v_sub_f32 v{H_D}, v{H_X+k}, v{H_A}")
    e(f"v_fmac_f32 v{H_C}, v{H_D}, v{H_D}")
dpp_reduce("v_add_f32", [H_C], H_B)
e(f"v_mul_f32 v{H_C}, 0x3a800000, v{H_C}")
bf16r(H_A, H_A, H_B)
bf16r(H_C, H_C, H_B)
e(f"v_add_f32 v{H_C}, 0x3727c5ac, v{H_C}")
bf16r(H_C, H_C, H_B)
e(f"v_sqrt_f32 v{H_C}, v{H_C}")
e("s_nop 0")
bf16r(H_C, H_C, H_B)
e(f"v_rcp_f32 v{H_D}, v{H_C}")
e("s_nop 0")
for k in range(0, 16, 2):
    a, b = H_X + k, H_X + k + 1
    e(f"v_sub_f32 v{a}, v{a}, v{H_A}")
    e(f"v_sub_f32 v{b}, v{b}, v{H_A}")
    e(f"v_cvt_pk_bf16_f32 v{H_B}, v{a}, v{b}")
    e(f"v_lshlrev_b32 v{a}, 16, v{H_B}")
    e(f"v_and_b32 v{b}, s{S_T2}, v{H_B}")
    for x in (a, b):
        e(f"v_mul_f32 v{H_E}, v{x}, v{H_D}")
        e(f"v_fma_f32 v{x}, -v{H_E}, v{H_C}, v{x}")
        e(f"v_fma_f32 v{x}, v{x}, v{H_D}, v{H_E}")
    e(f"v_cvt_pk_bf16_f32 v{H_R+k//2}, v{a}, v{b}")
e(f"v_lshlrev_b32 v{H_A}, 5, v0")
e(f"v_add_u32 v{H_A}, s{S_T1}, v{H_A}")
e(f"ds_write_b128 v{H_A}, v[{H_R}:{H_R+3}] offset:{XN}")
e(f"ds_write_b128 v{H_A}, v[{H_R+4}:{H_R+7}] offset:{XN+16}")
e("s_waitcnt lgkmcnt(0)")
stamp()
e("s_barrier")
e("s_barrier")
stamp()

def red_publish(red_off, soff_emit, cnt_off_emit, skip_store_if=None, tag=""):
    e(f"v_lshlrev_b32 v{H_A}, 4, v0")
    for w in range(4):
        e(f"ds_read_b128 v[{H_R+4*w}:{H_R+4*w+3}], v{H_A} offset:{red_off + w*1024}")
    e("s_waitcnt lgkmcnt(0)")
    for k in range(4):
        e(f"v_add_f32 v{H_R+k}, v{H_R+k}, v{H_R+4+k}")
        e(f"v_add_f32 v{H_R+8+k}, v{H_R+8+k}, v{H_R+12+k}")
    for k in range(4):
        e(f"v_add_f32 v{H_R+k}, v{H_R+k}, v{H_R+8+k}")
    soff_emit()
    if skip_store_if:
        skip_store_if("L_skipst" + tag)
    e(f"buffer_store_dwordx4 v[{H_R}:{H_R+3}], v{H_B}, {srd(SRD_WS)}, s{S_T2} offen sc1")
    if skip_store_if:
        lab("L_skipst" + tag)
    e(f"v_mov_b32 v{H_A}, 0")
    lab("L_boot" + tag)
    e(f"buffer_load_dwordx4 v[{H_R+4}:{H_R+7}], v{H_A}, {srd(SRD_DBG)}, 0 offen sc1")
    e("s_waitcnt vmcnt(0)")
    e(f"v_and_b32 v{H_R+4}, v{H_R+4}, v{H_R+5}")
    e(f"v_and_b32 v{H_R+6}, v{H_R+6}, v{H_R+7}")
    e(f"v_and_b32 v{H_R+4}, v{H_R+4}, v{H_R+6}")
    e(f"v_cmp_eq_u32 vcc, 0, v{H_R+4}")
    e(f"s_cbranch_vccz L_bootd{tag}")
    e("s_sleep 8")
    e(f"s_sub_u32 s{S_SPIN}, s{S_SPIN}, 1")
    e(f"s_cmp_lg_u32 s{S_SPIN}, 0")
    e(f"s_cbranch_scc1 L_boot{tag}")
    e(f"s_mov_b32 s{S_SPIN}, 1")
    lab("L_bootd" + tag)
    cnt_off_emit()
    e(f"v_mov_b32 v{H_A}, 0")
    e(f"buffer_store_dword v{H_A}, v{H_B}, {srd(SRD_WS)}, s{S_T2} offen sc1")
    e("s_mov_b64 exec, -1")

c("publish q partial (helper 0)")
e(f"s_cmp_lg_u32 s{S_HW}, 0")
e("s_cbranch_scc1 L_h_noq")
def q_soff():
    e(f"v_and_b32 v{H_B}, 31, v0")
    e(f"v_lshlrev_b32 v{H_B}, 4, v{H_B}")
    e(f"v_lshrrev_b32 v{H_C}, 5, v0")
    e(f"v_lshl_add_u32 v{H_B}, v{H_C}, 14, v{H_B}")
    e(f"s_and_b32 s{S_T2}, s{S_WG}, 7")
    e(f"s_lshl_b32 s{S_T2}, s{S_T2}, 15")
    e(f"s_lshr_b32 s{S_T3}, s{S_WG}, 3")
    e(f"s_lshl_b32 s{S_T3}, s{S_T3}, 9")
    e(f"s_add_u32 s{S_T2}, s{S_T2}, s{S_T3}")
    if QPART:
        e(f"s_add_u32 s{S_T2}, s{S_T2}, {QPART}")
def q_cnt():
    e(f"s_lshl_b32 s{S_T2}, s{S_WG}, 2")
    e(f"s_add_u32 s{S_T2}, s{S_T2}, {QFLAG}")
    e(f"v_lshlrev_b32 v{H_B}, 10, v0")
    mask(0xFF)
red_publish(REDQ, q_soff, q_cnt, None, "q")
e("s_branch L_h_q2")
lab("L_h_noq")
e("s_waitcnt vmcnt(0)")
lab("L_h_q2")
stamp()
e("s_barrier")
c("publish gate/up partial (helper 1)")
e(f"s_cmp_lg_u32 s{S_HW}, 1")
e("s_cbranch_scc1 L_h_nog")
def g_soff():
    e(f"v_and_b32 v{H_B}, 31, v0")
    e(f"v_lshlrev_b32 v{H_B}, 4, v{H_B}")
    e(f"v_lshrrev_b32 v{H_C}, 5, v0")
    e(f"v_mul_u32_u24 v{H_C}, 14336, v{H_C}")
    e(f"v_add_u32 v{H_B}, v{H_C}, v{H_B}")
    e(f"s_lshr_b32 s{S_T3}, s{S_WG}, 2")
    e(f"s_cmp_ge_u32 s{S_T3}, 28")
    e(f"s_cselect_b32 s{S_T2}, 28, 0")
    e(f"s_sub_u32 s{S_T3}, s{S_T3}, s{S_T2}")
    e(f"s_lshr_b32 s{S_T2}, s{S_WG}, 2")
    e(f"s_cmp_ge_u32 s{S_T2}, 28")
    e(f"s_cselect_b32 s{S_T2}, 4, 0")
    e(f"s_and_b32 s{S_T4}, s{S_WG}, 3")
    e(f"s_add_u32 s{S_T2}, s{S_T2}, s{S_T4}")
    e(f"s_mul_i32 s{S_T2}, s{S_T2}, {2*14336}")
    e(f"s_lshl_b32 s{S_T3}, s{S_T3}, 9")
    e(f"s_add_u32 s{S_T2}, s{S_T2}, s{S_T3}")
    e(f"s_add_u32 s{S_T2}, s{S_T2}, {GUPART}")
def g_skip(l):
    e(f"s_cmp_ge_u32 s{S_WG}, 224")
    e(f"s_cbranch_scc1 {l}")
def g_cnt():
    e(f"s_lshl_b32 s{S_T2}, s{S_WG}, 2")
    e(f"s_add_u32 s{S_T2}, s{S_T2}, {HFLAG}")
    e(f"v_lshlrev_b32 v{H_B}, 10, v0")
    mask(0xF)
red_publish(REDG, g_soff, g_cnt, g_skip, "g")
lab("L_h_nog")

def lds_flag_wait(idx, name):
    lab(f"L_{name}_w")
    e(f"v_mov_b32 v{H_A}, 0")
    e(f"ds_read_b32 v{H_B}, v{H_A} offset:{FLG + 4*idx}")
    e("s_waitcnt lgkmcnt(0)")
    e(f"v_readfirstlane_b32 s{S_T2}, v{H_B}")
    e(f"s_cmp_lg_u32 s{S_T2}, 0")
    e(f"s_cbranch_scc1 L_{name}_d")
    e("s_sleep 1")
    e(f"s_sub_u32 s{S_SPIN}, s{S_SPIN}, 1")
    e(f"s_cmp_lg_u32 s{S_SPIN}, 0")
    e(f"s_cbranch_scc1 L_{name}_w")
    e(f"s_mov_b32 s{S_SPIN}, 1")
    e(f"s_branch L_{name}_d")

def lds_flag_set(idx):
    e(f"v_mov_b32 v{H_A}, 0")
    e(f"v_mov_b32 v{H_B}, 1")
    e(f"ds_write_b32 v{H_A}, v{H_B} offset:{FLG + 4*idx}")

c("wait for q counter")
e(f"s_cmp_lg_u32 s{S_HW}, 0")
e("s_cbranch_scc1 L_qf_w")
e(f"s_lshr_b32 s{S_T3}, s{S_WG}, 5")
e(f"s_and_b32 s{S_T3}, s{S_T3}, 3")
e(f"s_lshl_b32 s{S_T3}, s{S_T3}, 8")
e(f"s_and_b32 s{S_T2}, s{S_WG}, 7")
e(f"s_lshl_b32 s{S_T2}, s{S_T2}, 10")
e(f"s_add_u32 s{S_T3}, s{S_T3}, s{S_T2}")
e(f"s_add_u32 s{S_T3}, s{S_T3}, {QFLAG}")
e(f"v_lshlrev_b32 v{H_A}, 2, v0")
lab("L_qpoll")
e(f"buffer_load_dword v{H_B}, v{H_A}, {srd(SRD_WS)}, s{S_T3} offen sc1")
e("s_waitcnt vmcnt(0)")
e(f"v_cmp_eq_u32 vcc, -1, v{H_B}")
e("s_cbranch_vccz L_qpoll_d")
e("s_sleep 4")
e(f"s_sub_u32 s{S_SPIN}, s{S_SPIN}, 1")
e(f"s_cmp_lg_u32 s{S_SPIN}, 0")
e("s_cbranch_scc1 L_qpoll")
e(f"s_mov_b32 s{S_SPIN}, 1")
lab("L_qpoll_d")
lds_flag_set(0)
e("s_branch L_qf_d")
lds_flag_wait(0, "qf")
lab("L_qf_d")
stamp()
c("gather q")
e(f"s_lshr_b32 s{S_T2}, s{S_WG}, 5")
e(f"s_lshl_b32 s{S_T2}, s{S_T2}, 12")
e(f"v_lshlrev_b32 v{H_A}, 4, v{H_T}")
for ks in range(8):
    e(f"s_add_u32 s{S_T3}, s{S_T2}, {QPART + ks*32768}")
    e(f"buffer_load_dwordx4 v[{H_R+4*ks}:{H_R+4*ks+3}], v{H_A}, {srd(SRD_WS)}, s{S_T3} offen sc1")
e("s_waitcnt vmcnt(0)")
for ks in range(1, 8):
    for k in range(4):
        e(f"v_add_f32 v{H_R+k}, v{H_R+k}, v{H_R+4*ks+k}")
e(f"v_cvt_pk_bf16_f32 v{H_R}, v{H_R}, v{H_R+1}")
e(f"v_cvt_pk_bf16_f32 v{H_R+1}, v{H_R+2}, v{H_R+3}")
e(f"v_lshlrev_b32 v{H_A}, 3, v{H_T}")
e(f"ds_write_b64 v{H_A}, v[{H_R}:{H_R+1}] offset:{QL}")
e("s_waitcnt lgkmcnt(0)")
stamp()
e("s_barrier")
c("wait for h counter (helper 0), h gather (helper 1)")
e(f"s_cmp_eq_u32 s{S_HW}, 1")
e("s_cbranch_scc1 L_hf_w")
e(f"s_cmp_lg_u32 s{S_HW}, 0")
e("s_cbranch_scc1 L_h_b5")
e(f"v_lshlrev_b32 v{H_A}, 4, v0")
e(f"s_and_b32 s{S_T2}, s{S_WG}, 3")
e(f"s_lshl_b32 s{S_T2}, s{S_T2}, 10")
e(f"s_add_u32 s{S_T2}, s{S_T2}, {HFLAG}")
lab("L_hpoll")
e(f"buffer_load_dwordx4 v[{H_R}:{H_R+3}], v{H_A}, {srd(SRD_WS)}, s{S_T2} offen sc1")
e("s_waitcnt vmcnt(0)")
e(f"v_max3_u32 v{H_B}, v{H_R}, v{H_R+1}, v{H_R+2}")
e(f"v_max_u32 v{H_B}, v{H_B}, v{H_R+3}")
e(f"v_cmp_eq_u32 vcc, -1, v{H_B}")
e("s_cbranch_vccz L_hpoll_d")
e("s_sleep 16")
e(f"s_sub_u32 s{S_SPIN}, s{S_SPIN}, 1")
e(f"s_cmp_lg_u32 s{S_SPIN}, 0")
e("s_cbranch_scc1 L_hpoll")
e(f"s_mov_b32 s{S_SPIN}, 1")
lab("L_hpoll_d")
lds_flag_set(1)
e("s_branch L_h_b5")
lds_flag_wait(1, "hf")
lab("L_hf_d")
e(f"s_max_u32 s{S_T2}, s{S_WG}, 32")
e(f"s_sub_u32 s{S_T2}, s{S_T2}, 32")
e(f"s_lshr_b32 s{S_T2}, s{S_T2}, 1")
e(f"s_lshl_b32 s{S_T2}, s{S_T2}, 7")
e(f"v_and_b32 v{H_A}, 31, v0")
e(f"v_lshlrev_b32 v{H_A}, 2, v{H_A}")
e(f"v_lshrrev_b32 v{H_B}, 5, v0")
e(f"v_mul_u32_u24 v{H_B}, 14336, v{H_B}")
e(f"v_add_u32 v{H_A}, v{H_A}, v{H_B}")
for m in range(8):
    e(f"s_add_u32 s{S_T3}, s{S_T2}, {GUPART + m*2*14336}")
    e(f"buffer_load_dword v{H_R+m}, v{H_A}, {srd(SRD_WS)}, s{S_T3} offen sc1")
e("s_waitcnt vmcnt(0)")
for m in (0, 4):
    e(f"v_add_f32 v{H_R+m}, v{H_R+m}, v{H_R+m+1}")
    e(f"v_add_f32 v{H_R+m+2}, v{H_R+m+2}, v{H_R+m+3}")
    e(f"v_add_f32 v{H_R+m}, v{H_R+m}, v{H_R+m+2}")
    bf16r(H_R + m, H_R + m, H_B)
def silu(dst, src, t):
    e(f"v_mul_f32 v{t}, 0xbfb8aa3b, v{src}")
    e(f"v_exp_f32 v{t}, v{t}")
    e("s_nop 0")
    e(f"v_add_f32 v{t}, 1.0, v{t}")
    e(f"v_rcp_f32 v{t}, v{t}")
    e("s_nop 0")
    e(f"v_mul_f32 v{dst}, v{src}, v{t}")
silu(H_R, H_R, H_B)
bf16r(H_R, H_R, H_B)
e(f"v_mul_f32 v{H_R}, v{H_R}, v{H_R+4}")
e(f"v_cvt_pk_bf16_f32 v{H_R}, v{H_R}, v{H_R}")
e(f"v_lshlrev_b32 v{H_A}, 1, v0")
e(f"ds_write_b16 v{H_A}, v{H_R} offset:{HL}")
e("s_waitcnt lgkmcnt(0)")
lab("L_h_b5")
e("s_waitcnt lgkmcnt(0)")
stamp()
e("s_barrier")
def spin_tail(back, sl=1):
    e(f"s_sleep {sl}")
    e(f"s_sub_u32 s{S_SPIN}, s{S_SPIN}, 1")
    e(f"s_cmp_lg_u32 s{S_SPIN}, 0")
    e(f"s_cbranch_scc1 {back}")
    e(f"s_mov_b32 s{S_SPIN}, 1")
def mailbox(region, name, sl):
    e(f"s_lshl_b32 s{S_T2}, s{S_WG}, 12")
    e(f"s_add_u32 s{S_T2}, s{S_T2}, {region}")
    e(f"v_lshlrev_b32 v{H_A}, 4, v0")
    lab(f"L_{name}")
    for k in range(4):
        e(f"buffer_load_dwordx4 v[{H_R+4*k}:{H_R+4*k+3}], v{H_A}, {srd(SRD_WS)}, s{S_T2} offen offset:{1024*k} sc1")
    e("s_waitcnt vmcnt(0)")
    e(f"v_max3_u32 v{H_D}, v{H_R}, v{H_R+1}, v{H_R+2}")
    e(f"v_max3_u32 v{H_E}, v{H_R+3}, v{H_R+4}, v{H_R+5}")
    e(f"v_max3_u32 v{H_D}, v{H_D}, v{H_R+6}, v{H_R+7}")
    e(f"v_max3_u32 v{H_E}, v{H_E}, v{H_R+8}, v{H_R+9}")
    e(f"v_max3_u32 v{H_D}, v{H_D}, v{H_R+10}, v{H_R+11}")
    e(f"v_max3_u32 v{H_E}, v{H_E}, v{H_R+12}, v{H_R+13}")
    e(f"v_max3_u32 v{H_D}, v{H_D}, v{H_R+14}, v{H_R+15}")
    e(f"v_max_u32 v{H_D}, v{H_D}, v{H_E}")
    e(f"v_cmp_eq_u32 vcc, -1, v{H_D}")
    e(f"s_cbranch_vccz L_{name}_d")
    spin_tail(f"L_{name}", sl)
    lab(f"L_{name}_d")
    for k in range(4):
        e(f"v_add_f32 v{H_R+k}, v{H_R+k}, v{H_R+4+k}")
        e(f"v_add_f32 v{H_R+8+k}, v{H_R+8+k}, v{H_R+12+k}")
    for k in range(4):
        e(f"v_add_f32 v{H_R+k}, v{H_R+k}, v{H_R+8+k}")
    regs = [H_R + k for k in range(4)]
    for pat in ["quad_perm:[2,3,0,1]", "row_ror:4", "row_ror:8"]:
        for r in regs:
            e(f"v_add_f32_dpp v{r}, v{r}, v{r} {pat} row_mask:0xf bank_mask:0xf")
    for sw in ["v_permlane16_swap_b32", "v_permlane32_swap_b32"]:
        for k, r in enumerate(regs):
            e(f"v_mov_b32 v{H_X+k}, v{r}")
        e("s_nop 1")
        for k, r in enumerate(regs):
            e(f"{sw} v{r}, v{H_X+k}")
        for k, r in enumerate(regs):
            e(f"v_add_f32 v{r}, v{r}, v{H_X+k}")
c("f gather (helper 2)")
e(f"s_cmp_lg_u32 s{S_HW}, 2")
e("s_cbranch_scc1 L_h_nof")
mailbox(FPART, "fmb", 16)
for k in range(4):
    bf16r(H_R + k, H_R + k, H_B)
    silu(H_R + k, H_R + k, H_B)
    bf16r(H_R + k, H_R + k, H_B)
mask(0x3)
e(f"ds_write_b128 v{H_A}, v[{H_R}:{H_R+3}] offset:{G2L}")
e("s_mov_b64 exec, -1")
e("s_waitcnt lgkmcnt(0)")
lab("L_h_nof")
stamp()
e("s_barrier")
stamp()
c("combine 4 waves' attention partials, publish")
e(f"v_lshrrev_b32 v{H_A}, 5, v{H_T}")
e(f"v_lshlrev_b32 v{H_B}, 5, v{H_A}")
e(f"ds_read_b128 v[{H_X}:{H_X+3}], v{H_B} offset:{AMLL}")
e(f"ds_read_b128 v[{H_X+4}:{H_X+7}], v{H_B} offset:{AMLL+16}")
e(f"v_lshlrev_b32 v{H_C}, 4, v{H_T}")
for w in range(4):
    e(f"ds_read_b128 v[{H_R+4*w}:{H_R+4*w+3}], v{H_C} offset:{AO + w*4096}")
e(f"s_mov_b32 s{S_T3}, {LOG2E:#x}")
e("s_waitcnt lgkmcnt(4)")
e(f"v_max3_f32 v{H_D}, v{H_X}, v{H_X+2}, v{H_X+4}")
e(f"v_max_f32 v{H_D}, v{H_D}, v{H_X+6}")
for w in range(4):
    e(f"v_sub_f32 v{H_X+2*w}, v{H_X+2*w}, v{H_D}")
    e(f"v_mul_f32 v{H_X+2*w}, s{S_T3}, v{H_X+2*w}")
    e(f"v_exp_f32 v{H_X+2*w}, v{H_X+2*w}")
e("s_nop 0")
e(f"v_mul_f32 v{H_E}, v{H_X}, v{H_X+1}")
for w in range(1, 4):
    e(f"v_fmac_f32 v{H_E}, v{H_X+2*w}, v{H_X+2*w+1}")
e("s_waitcnt lgkmcnt(0)")
for k in range(4):
    e(f"v_mul_f32 v{H_R+k}, v{H_X}, v{H_R+k}")
for w in range(1, 4):
    for k in range(4):
        e(f"v_fmac_f32 v{H_R+k}, v{H_X+2*w}, v{H_R+4*w+k}")
for k in range(4):
    e(f"v_min_u32 v{H_R+k}, 0xfffffffe, v{H_R+k}")
e(f"v_min_u32 v{H_D}, 0xfffffffe, v{H_D}")
e(f"v_min_u32 v{H_E}, 0xfffffffe, v{H_E}")
e(f"s_lshl_b32 s{S_T2}, s{S_WG}, 12")
e(f"s_add_u32 s{S_T2}, s{S_T2}, {APART}")
e(f"buffer_store_dwordx4 v[{H_R}:{H_R+3}], v{H_C}, {srd(SRD_WS)}, s{S_T2} offen sc1")
e(f"s_lshr_b32 s{S_T2}, s{S_WG}, 5")
e(f"s_lshl_b32 s{S_T2}, s{S_T2}, 11")
e(f"s_and_b32 s{S_T3}, s{S_WG}, 31")
e(f"s_lshl_b32 s{S_T3}, s{S_T3}, 3")
e(f"s_add_u32 s{S_T2}, s{S_T2}, s{S_T3}")
e(f"s_add_u32 s{S_T2}, s{S_T2}, {AML}")
e(f"v_lshlrev_b32 v{H_B}, 8, v{H_A}")
assert H_E == H_D + 1
e(f"v_mov_b32 v{H_X+8}, v{H_D}")
e(f"v_mov_b32 v{H_X+9}, v{H_E}")
mask(0x0000000100000001)
e(f"buffer_store_dwordx2 v[{H_X+8}:{H_X+9}], v{H_B}, {srd(SRD_WS)}, s{S_T2} offen sc1")
e("s_mov_b64 exec, -1")
stamp()
c("level-1 gather")
e(f"s_lshr_b32 s{S_T0}, s{S_HW}, 1")
e(f"s_lshl_b32 s{S_T0}, s{S_T0}, 2")
e(f"s_lshr_b32 s{S_T1}, s{S_WG}, 6")
e(f"s_add_u32 s{S_T0}, s{S_T0}, s{S_T1}")
e(f"s_lshr_b32 s{S_T1}, s{S_WG}, 3")
e(f"s_and_b32 s{S_T1}, s{S_T1}, 7")
e(f"s_lshl_b32 s{S_T2}, s{S_T0}, 17")
e(f"s_lshl_b32 s{S_T3}, s{S_T1}, 9")
e(f"s_add_u32 s{S_T2}, s{S_T2}, s{S_T3}")
e(f"s_lshr_b32 s{S_T3}, s{S_WG}, 1")
e(f"s_and_b32 s{S_T3}, s{S_T3}, 3")
e(f"s_lshl_b32 s{S_T3}, s{S_T3}, 7")
e(f"s_add_u32 s{S_T2}, s{S_T2}, s{S_T3}")
e(f"s_and_b32 s{S_T3}, s{S_HW}, 1")
e(f"s_lshl_b32 s{S_T3}, s{S_T3}, 6")
e(f"s_add_u32 s{S_T2}, s{S_T2}, s{S_T3}")
e(f"s_add_u32 s{S_T2}, s{S_T2}, {APART}")
e(f"s_lshl_b32 s{S_T3}, s{S_T0}, 11")
e(f"s_lshl_b32 s{S_T1}, s{S_T1}, 8")
e(f"s_add_u32 s{S_T3}, s{S_T3}, s{S_T1}")
e(f"s_add_u32 s{S_T3}, s{S_T3}, {AML}")
e(f"v_and_b32 v{H_A}, 31, v0")
e(f"v_lshrrev_b32 v{H_B}, 5, v0")
e(f"v_lshlrev_b32 v{H_C}, 3, v{H_A}")
e(f"v_lshlrev_b32 v{H_B}, 5, v{H_B}")
e(f"v_lshl_add_u32 v{H_B}, v{H_A}, 12, v{H_B}")
lab("L_l1f")
e(f"buffer_load_dwordx2 v[{H_R+8}:{H_R+9}], v{H_C}, {srd(SRD_WS)}, s{S_T3} offen sc1")
e("s_waitcnt vmcnt(0)")
e(f"v_max_u32 v{H_D}, v{H_R+8}, v{H_R+9}")
e(f"v_cmp_eq_u32 vcc, -1, v{H_D}")
e(f"s_bcnt1_i32_b64 s{S_T1}, vcc")
e(f"s_cmp_le_u32 s{S_T1}, {cfg.L1TH}")
e("s_cbranch_scc1 L_l1poll")
spin_tail("L_l1f", 2)
lab("L_l1poll")
e(f"buffer_load_dwordx4 v[{H_R}:{H_R+3}], v{H_B}, {srd(SRD_WS)}, s{S_T2} offen sc1")
e(f"buffer_load_dwordx4 v[{H_R+4}:{H_R+7}], v{H_B}, {srd(SRD_WS)}, s{S_T2} offen offset:16 sc1")
e(f"buffer_load_dwordx2 v[{H_R+8}:{H_R+9}], v{H_C}, {srd(SRD_WS)}, s{S_T3} offen sc1")
e("s_waitcnt vmcnt(0)")
e(f"v_max3_u32 v{H_D}, v{H_R}, v{H_R+1}, v{H_R+2}")
e(f"v_max3_u32 v{H_E}, v{H_R+3}, v{H_R+4}, v{H_R+5}")
e(f"v_max3_u32 v{H_D}, v{H_D}, v{H_R+6}, v{H_R+7}")
e(f"v_max3_u32 v{H_E}, v{H_E}, v{H_R+8}, v{H_R+9}")
e(f"v_max_u32 v{H_D}, v{H_D}, v{H_E}")
e(f"v_cmp_eq_u32 vcc, -1, v{H_D}")
e("s_cbranch_vccz L_l1poll_d")
spin_tail("L_l1poll", 1)
lab("L_l1poll_d")
stamp()
e(f"v_mov_b32 v{H_D}, v{H_R+8}")
dpp_reduce("v_max_f32", [H_D], H_X, full=False)
e(f"s_mov_b32 s{S_T1}, {LOG2E:#x}")
e(f"v_sub_f32 v{H_D}, v{H_R+8}, v{H_D}")
e(f"v_mul_f32 v{H_D}, s{S_T1}, v{H_D}")
e(f"v_exp_f32 v{H_D}, v{H_D}")
e("s_nop 0")
for k in range(8):
    e(f"v_mul_f32 v{H_R+k}, v{H_D}, v{H_R+k}")
e(f"v_mul_f32 v{H_R+8}, v{H_D}, v{H_R+9}")
dpp_reduce("v_add_f32", [H_R + k for k in range(9)], H_X, full=False)
e(f"v_rcp_f32 v{H_D}, v{H_R+8}")
e("s_nop 0")
for k in range(8):
    e(f"v_mul_f32 v{H_R+k}, v{H_D}, v{H_R+k}")
for k in range(4):
    e(f"v_cvt_pk_bf16_f32 v{H_R+k}, v{H_R+2*k}, v{H_R+2*k+1}")
e(f"s_lshl_b32 s{S_T1}, s{S_HW}, 5")
e(f"v_lshrrev_b32 v{H_A}, 5, v0")
e(f"v_lshlrev_b32 v{H_A}, 4, v{H_A}")
e(f"v_add_u32 v{H_A}, s{S_T1}, v{H_A}")
mask(0x0000000100000001)
e(f"ds_write_b128 v{H_A}, v[{H_R}:{H_R+3}] offset:{OL}")
e("s_mov_b64 exec, -1")
e("s_waitcnt lgkmcnt(0)")
stamp()
e("s_barrier")
c("level-2")
e(f"s_cmp_lg_u32 s{S_HW}, 0")
e("s_cbranch_scc1 L_h_end")
e(f"v_and_b32 v{H_C}, 1, v0")
e(f"v_lshlrev_b32 v{H_B}, 4, v{H_C}")
e(f"ds_read_b128 v[{H_X+8}:{H_X+11}], v{H_B} offset:{G2L}")
mailbox(SPART, "smb", 1)
stamp()
e(f"s_mov_b32 s{S_T2}, 0xffff0000")
e(f"v_lshlrev_b32 v{H_X}, 16, v{H_XF}")
e(f"v_and_b32 v{H_X+1}, s{S_T2}, v{H_XF}")
e(f"v_lshlrev_b32 v{H_X+2}, 16, v{H_XF+1}")
e(f"v_and_b32 v{H_X+3}, s{S_T2}, v{H_XF+1}")
e("s_waitcnt lgkmcnt(0)")
for k in range(4):
    bf16r(H_R + k, H_R + k, H_B)
    e(f"v_mul_f32 v{H_R+k}, v{H_R+k}, v{H_X+8+k}")
    bf16r(H_R + k, H_R + k, H_B)
    e(f"v_add_f32 v{H_R+k}, v{H_X+k}, v{H_R+k}")
e(f"v_cvt_pk_bf16_f32 v{H_R}, v{H_R}, v{H_R+1}")
e(f"v_cvt_pk_bf16_f32 v{H_R+1}, v{H_R+2}, v{H_R+3}")
e(f"s_lshl_b32 s{S_T0}, s{S_WG}, 3")
e(f"v_lshlrev_b32 v{H_A}, 11, v{H_C}")
mask(0x3)
e(f"buffer_store_dwordx2 v[{H_R}:{H_R+1}], v{H_A}, {srd(SRD_OUT)}, s{S_T0} offen")
e("s_mov_b64 exec, -1")
stamp()
if cfg.DIAG == 2:
    stamp_flush(H_A, H_B, [(4,12,0),(9,13,0),(11,14,0),(12,15,0)])
lab("L_h_end")
if cfg.DIAG == 1:
    stamp_flush(H_A, H_B)
lab("L_end")
e("s_endpgm")

L.append('.section .rodata,"a"')
L.append(".p2align 6")
L.append(f".amdhsa_kernel {KNAME}")
L.append(f"  .amdhsa_next_free_vgpr {NV_STREAM}")
L.append("  .amdhsa_next_free_sgpr 100")
L.append(f"  .amdhsa_accum_offset {NV_STREAM}")
L.append("  .amdhsa_group_segment_fixed_size 0")
L.append("  .amdhsa_kernarg_size 96")
L.append("  .amdhsa_user_sgpr_count 2")
L.append("  .amdhsa_user_sgpr_kernarg_segment_ptr 1")
L.append("  .amdhsa_system_sgpr_workgroup_id_x 1")
L.append(".end_amdhsa_kernel")
open(sys.argv[1], "w").write("\n".join(L) + "\n")
print("wrote", sys.argv[1], len(L), "lines; LDS", LDS_BYTES)
```

```python
import sys

KNAME = "recurrent_scan__gqa_block_cached__swiglu_ffn__decode_kernel"

class Cfg:
    R = 4
    NT = False
    DIAG = False
    SPIN = 1 << 22
    D = 2
    PAT = 2
    DH = 0
    L1TH = 8
    VS = 0
    FSL = 2
    D2 = 0
    U2 = 14
    TLB = 0
    PRIO = 2
    NS = 6
    ND = 4
    NP = 4

cfg = Cfg()
for a in sys.argv[2:]:
    k, v = a.split("=")
    setattr(cfg, k, int(v))

R = cfg.R
L = []
def e(s): L.append("    " + s)
def lab(s): L.append(s + ":")
def c(s): L.append("    ; " + s)

QPART = 0x000000
GUPART = 0x040000
APART = 0x080000
AML = 0x180000
SPART = 0x200000
FPART = 0x300000
SFLAG = 0x190000
QFLAG = 0x1A0000
HFLAG = 0x1A2000
CNT = 0x1A3000
TSOFF = 0x400000
WS_BYTES = 0x500000

XN = 0
REDQ = XN + 4096
REDG = REDQ + 4096
QL = REDG + 4096
AO = QL + 2048
AMLL = AO + 16384
HL = AMLL + 256
OL = HL + 128
G2L = OL + 128
FLG = G2L + 64
RING = 32768
assert FLG + 64 <= RING
LDS_BYTES = RING + 4 * R * 8192
assert LDS_BYTES <= 163840, LDS_BYTES

S_WG = 2
S_WAVE = 3
SRD_X, SRD_K, SRD_V, SRD_WQ, SRD_WO, SRD_GU, SRD_WD, SRD_OUT, SRD_DBG, SRD_WS, SRD_FP = \
    [56 + 4 * i for i in range(11)]
def srd(b): return f"s[{b}:{b+3}]"
S_WB = 4
S_T0, S_T1, S_T2, S_T3 = 5, 6, 7, 8
S_BQ, S_BG, S_BKV, S_BD, S_BO = 9, 10, 11, 12, 13
S_SPIN = 14
S_T4 = 15
S_STAMP0 = 36
nstamp = [0]
in_stream = [True]

def stamp(kind=0):
    if not cfg.DIAG:
        return
    if in_stream[0] and cfg.VS != kind and kind != 2:
        return
    i = nstamp[0]
    assert i < 14
    e("s_memrealtime s[30:31]")
    e("s_waitcnt lgkmcnt(0)")
    e(f"s_mov_b32 s{S_STAMP0+i}, s30")
    nstamp[0] += 1

def stamp_flush(vtmp0, vtmp1, dbgmap=None):
    if not cfg.DIAG:
        return
    n = nstamp[0]
    if cfg.DIAG == 2:
        e("s_mov_b64 exec, 1")
        e(f"v_mov_b32 v{vtmp0}, 0")
        for (i, word, inv) in dbgmap:
            if inv:
                e(f"s_not_b32 s30, s{S_STAMP0+i}")
            else:
                e(f"s_mov_b32 s30, s{S_STAMP0+i}")
            e(f"v_mov_b32 v{vtmp1}, s30")
            e(f"buffer_atomic_umax v{vtmp1}, v{vtmp0}, {srd(SRD_DBG)}, 0 offen offset:{4*word} sc1")
            e("s_nop 1")
        e("s_mov_b64 exec, -1")
        nstamp[0] = 0
        return
    e(f"s_lshl_b32 s30, s{S_WG}, 3")
    e(f"s_add_u32 s30, s30, s{S_WAVE}")
    e("s_lshl_b32 s30, s30, 6")
    e(f"s_add_u32 s30, s30, {TSOFF}")
    e("s_mov_b64 exec, 1")
    e(f"v_mov_b32 v{vtmp0}, 0")
    for i in range(n):
        e(f"v_mov_b32 v{vtmp1}, s{S_STAMP0+i}")
        e(f"buffer_store_dword v{vtmp1}, v{vtmp0}, {srd(SRD_WS)}, s30 offen offset:{4*i}")
        e("s_nop 1")
    e("s_mov_b64 exec, -1")
    nstamp[0] = 0

NTF = " nt" if cfg.NT else ""

LOG2E = 0x3fb8aa3b
SCALE = 0x3db504f3

L.append(f"; @launch grid=(256,1,1) block=(512,1,1) lds={LDS_BYTES}")
L.append('.amdgcn_target "amdgcn-amd-amdhsa--gfx950"')
L.append(".text")
L.append(f".globl {KNAME}")
L.append(".p2align 8")
L.append(f".type {KNAME},@function")
lab(KNAME)
e(f"s_cmp_ge_u32 s{S_WG}, 256")
e("s_cbranch_scc1 L_end")
e("s_load_dwordx16 s[32:47], s[0:1], 0")
e("s_load_dwordx8 s[48:55], s[0:1], 64")
e("v_lshrrev_b32 v1, 6, v0")
e("v_and_b32 v0, 63, v0")
e(f"v_readfirstlane_b32 s{S_WAVE}, v1")
e(f"s_mov_b32 s{S_SPIN}, {cfg.SPIN}")
e("s_waitcnt lgkmcnt(0)")
def mk_srd(b, plo, nbytes):
    e(f"s_mov_b32 s{b}, s{plo}")
    e(f"s_mov_b32 s{b+1}, s{plo+1}")
    e(f"s_mov_b32 s{b+2}, {nbytes}")
    e(f"s_mov_b32 s{b+3}, 0x00020000")
mk_srd(SRD_X, 32, 4096)
mk_srd(SRD_K, 34, 0x4000000)
mk_srd(SRD_V, 36, 0x4000000)
mk_srd(SRD_WQ, 38, 0x800000)
mk_srd(SRD_WO, 40, 0x800000)
e(f"s_cmp_ge_u32 s{S_WG}, 112")
e(f"s_cselect_b32 s{SRD_GU}, s46, s44")
e(f"s_cselect_b32 s{SRD_GU+1}, s47, s45")
e(f"s_cmp_lt_u32 s{S_WG}, 224")
e(f"s_cselect_b32 s{SRD_GU+2}, 0x700000, 0")
e(f"s_mov_b32 s{SRD_GU+3}, 0x00020000")
mk_srd(SRD_WD, 48, 0x700000)
e(f"s_cmp_ge_u32 s{S_WG}, 32")
e(f"s_cselect_b32 s{SRD_WD+2}, 0x700000, 0")
mk_srd(SRD_OUT, 50, 4096)
mk_srd(SRD_DBG, 52, 256)
mk_srd(SRD_WS, 54, WS_BYTES)
e(f"s_add_u32 s{SRD_FP}, s54, {FPART}")
e(f"s_addc_u32 s{SRD_FP+1}, s55, 0")
e(f"s_mov_b32 s{SRD_FP+2}, {112*8192}")
e(f"s_mov_b32 s{SRD_FP+3}, 0x00020000")
e(f"s_cmp_ge_u32 s{S_WAVE}, 4")
e("s_cbranch_scc1 L_helper")

c("================ stream waves ================")
V_L = 0
V_G, V_I, V_T0, V_T1, V_T2, V_T3 = 1, 2, 3, 4, 5, 6
V_CV = 7
V_OWQ = 9
V_OGU = 11
V_OW2 = 13
V_OV = 15
V_OK = 17
V_KA = 21
V_VA = 25
V_XB = 33
V_RED = 34
V_ST = 35
V_MX = 36
V_LS = 37
V_MC = 38
V_T4 = 39
V_B = 40
V_A = 56
V_O = 88
NKU = cfg.NS
V_S = 120
V_X = V_S + 8*NKU
V_X2 = V_X + 32
V_CL = V_X2 + 32
V_AL = V_CL + 1
NV_STREAM = (V_CL + 6 + 7) // 8 * 8
assert NV_STREAM <= 256
POOL = (8 - cfg.NS) * 32
S_DYN = 18
S_GB = 24
S_CNT = 25

outstanding = []
def vm_issue(tag): outstanding.append(tag)
def vm_wait(tag):
    if tag not in outstanding:
        return
    idx = max(i for i, t in enumerate(outstanding) if t == tag)
    n = len(outstanding) - 1 - idx
    assert n <= 63
    e(f"s_waitcnt vmcnt({n})")
    del outstanding[:idx + 1]

e(f"v_lshrrev_b32 v{V_G}, 4, v{V_L}")
e(f"v_and_b32 v{V_I}, 15, v{V_L}")
e(f"s_mul_i32 s{S_WB}, s{S_WAVE}, {R*8192}")
e(f"s_add_u32 s{S_WB}, s{S_WB}, {RING}")
e(f"v_lshlrev_b32 v{V_T0}, 1, v{V_G}")
e(f"v_xor_b32 v{V_T0}, v{V_T0}, v{V_I}")
e(f"v_lshlrev_b32 v{V_CV}, 4, v{V_T0}")
e(f"v_xor_b32 v{V_CV+1}, 0x80, v{V_CV}")
def mk_off(dst, rs):
    e(f"v_mul_u32_u24 v{V_T0}, {rs}, v{V_G}")
    e(f"v_add_u32 v{dst}, v{V_T0}, v{V_CV}")
    e(f"v_add_u32 v{dst+1}, v{V_T0}, v{V_CV+1}")
mk_off(V_OWQ, 8192)
e(f"s_and_b32 s{S_T0}, s{S_WG}, 7")
e(f"s_lshl_b32 s{S_T0}, s{S_T0}, 2")
e(f"s_add_u32 s{S_T0}, s{S_T0}, s{S_WAVE}")
e(f"s_lshl_b32 s{S_BQ}, s{S_T0}, 18")
e(f"s_lshl_b32 s{S_T4}, s{S_T0}, 6")
e(f"s_lshr_b32 s{S_T1}, s{S_WG}, 3")
e(f"s_lshl_b32 s{S_T1}, s{S_T1}, 8")
e(f"s_add_u32 s{S_BQ}, s{S_BQ}, s{S_T1}")

def half_throttle():
    if cfg.DH > 0:
        keep = (cfg.DH - 1) * 4
        if len(outstanding) > keep:
            e(f"s_waitcnt vmcnt({keep})")
            del outstanding[:len(outstanding) - keep]
def dma_w(u, srd_b, sbase, extra, rs, voff):
    slot = u % R
    for jj in range(8):
        if jj % 4 == 0:
            half_throttle()
            e(f"s_add_u32 m0, s{S_WB}, {slot*8192 + (jj//4)*4096}")
        e(f"s_add_u32 s{S_T3}, s{sbase}, {extra + jj*4*rs - (jj&3)*1024}")
        e(f"buffer_load_dwordx4 v{voff + (jj&1)}, {srd(srd_b)}, s{S_T3} offen offset:{(jj&3)*1024}{NTF} lds")
        vm_issue(u)

def dma_kv(u, is_k, idx):
    slot = u % R
    for half in range(2):
        half_throttle()
        e(f"s_add_u32 m0, s{S_WB}, {slot*8192 + half*4096}")
        if idx < cfg.NS:
            e(f"s_add_u32 s{S_T3}, s{S_BKV}, {idx*KVSTRIDE + half*4096}")
        else:
            e(f"s_add_u32 s{S_T3}, s{S_DYN}, {half*4096}")
        for j4 in range(4):
            if is_k:
                e(f"buffer_load_dwordx4 v{V_OK + j4}, {srd(SRD_K)}, s{S_T3} offen offset:{j4*1024}{NTF} lds")
            else:
                e(f"buffer_load_dwordx4 v{V_OV + (j4&1)}, {srd(SRD_V)}, s{S_T3} offen offset:{j4*1024}{NTF} lds")
            vm_issue(u)

U_K0 = 3
U_V0 = U_K0 + NKU
U_VL = U_V0 + NKU - 1
NUNITS = U_VL + 1
SLOT_B = U_VL % R
SLOT_A = (SLOT_B + 1) % R
U_KD = U_VL + 1
U_WD = U_VL + 2
U_WO = U_VL + 3
U_VD = U_VL + 4
def claim():
    e(f"v_mov_b32 v{V_CL}, 1")
    e(f"v_mov_b32 v{V_CL+2}, 0")
    e("s_mov_b64 exec, 1")
    e(f"buffer_atomic_add v{V_CL}, v{V_CL+2}, {srd(SRD_WS)}, s{S_CNT} offen sc0 sc1")
    e("s_mov_b64 exec, -1")
    vm_issue("cl")
def issue_unit(u):
    if u >= NUNITS:
        return
    dd = cfg.D2 if (cfg.D2 and u >= cfg.U2) else cfg.D
    if (u - dd) in outstanding:
        vm_wait(u - dd)
    if u == 0:
        dma_w(u, SRD_WQ, S_BQ, 0, 8192, V_OWQ)
    elif u in (1, 2):
        dma_w(u, SRD_GU, S_BG, (u - 1) * 32 * 7168, 7168, V_OGU)
    elif u < U_V0:
        dma_kv(u, True, u - U_K0)
    else:
        dma_kv(u, False, u - U_V0)
        if u == U_VL:
            claim()

issue_unit(0)
mk_off(V_OGU, 7168)
e(f"s_and_b32 s{S_T0}, s{S_WG}, 3")
e(f"s_lshl_b32 s{S_T0}, s{S_T0}, 2")
e(f"s_add_u32 s{S_T0}, s{S_T0}, s{S_WAVE}")
e(f"s_mul_i32 s{S_BG}, s{S_T0}, {64*7168}")
e(f"s_lshl_b32 s{S_T2}, s{S_T0}, 7")
e(f"s_lshr_b32 s{S_T1}, s{S_WG}, 2")
e(f"s_cmp_ge_u32 s{S_T1}, 28")
e(f"s_cselect_b32 s{S_T0}, 28, 0")
e(f"s_sub_u32 s{S_T1}, s{S_T1}, s{S_T0}")
e(f"s_lshl_b32 s{S_T1}, s{S_T1}, 8")
e(f"s_add_u32 s{S_BG}, s{S_BG}, s{S_T1}")
S_XG = S_T2
S_XQ = S_T4
issue_unit(1)
if cfg.PAT == 0:
    e(f"s_lshl_b32 s{S_BKV}, s{S_WG}, 18")
    e(f"s_lshl_b32 s{S_T0}, s{S_WAVE}, 16")
    e(f"s_add_u32 s{S_BKV}, s{S_BKV}, s{S_T0}")
    KVSTRIDE = 8192
elif cfg.PAT == 1:
    e(f"s_lshl_b32 s{S_BKV}, s{S_WG}, 18")
    e(f"s_lshl_b32 s{S_T0}, s{S_WAVE}, 13")
    e(f"s_add_u32 s{S_BKV}, s{S_BKV}, s{S_T0}")
    KVSTRIDE = 32768
else:
    e(f"s_lshr_b32 s{S_BKV}, s{S_WG}, 5")
    e(f"s_lshl_b32 s{S_BKV}, s{S_BKV}, 23")
    e(f"s_and_b32 s{S_T0}, s{S_WG}, 31")
    e(f"s_lshl_b32 s{S_T0}, s{S_T0}, 2")
    e(f"s_add_u32 s{S_T0}, s{S_T0}, s{S_WAVE}")
    e(f"s_lshl_b32 s{S_T0}, s{S_T0}, 13")
    e(f"s_add_u32 s{S_BKV}, s{S_BKV}, s{S_T0}")
    KVSTRIDE = 1 << 20
e(f"s_lshr_b32 s{S_GB}, s{S_WG}, 5")
e(f"s_lshl_b32 s{S_GB}, s{S_GB}, 23")
e(f"s_lshr_b32 s{S_T0}, s{S_WG}, 3")
e(f"s_lshl_b32 s{S_CNT}, s{S_T0}, 7")
e(f"s_add_u32 s{S_CNT}, s{S_CNT}, {CNT}")
e(f"s_and_b32 s{S_T0}, s{S_T0}, 3")
e(f"s_mul_i32 s{S_T0}, s{S_T0}, {POOL*8192}")
e(f"s_add_u32 s{S_GB}, s{S_GB}, s{S_T0}")
e(f"s_add_u32 s{S_GB}, s{S_GB}, {cfg.NS*128*8192}")
assert cfg.PAT == 2
e(f"v_xor_b32 v{V_T0}, v{V_I}, v{V_G}")
e(f"v_lshlrev_b32 v{V_T1}, 8, v{V_G}")
for j4 in range(4):
    e(f"v_xor_b32 v{V_T2}, {4*j4}, v{V_T0}")
    e(f"v_lshl_add_u32 v{V_OK+j4}, v{V_T2}, 4, v{V_T1}")
mk_off(V_OV, 256)
mk_off(V_OW2, 2048)
e(f"s_max_u32 s{S_T0}, s{S_WG}, 32")
e(f"s_sub_u32 s{S_T0}, s{S_T0}, 32")
def mk_base2(dst, src):
    e(f"s_lshr_b32 s{S_T1}, s{src}, 1")
    e(f"s_lshl_b32 s{dst}, s{S_T1}, 16")
    e(f"s_and_b32 s{S_T1}, s{src}, 1")
    e(f"s_lshl_b32 s{S_T1}, s{S_T1}, 10")
    e(f"s_add_u32 s{dst}, s{dst}, s{S_T1}")
    e(f"s_lshl_b32 s{S_T1}, s{S_WAVE}, 8")
    e(f"s_add_u32 s{dst}, s{dst}, s{S_T1}")
mk_base2(S_BD, S_T0)
mk_base2(S_BO, S_WG)
e(f"v_xor_b32 v{V_T0}, v{V_I}, v{V_G}")
e(f"v_lshlrev_b32 v{V_T1}, 8, v{V_I}")
e(f"v_add_u32 v{V_T1}, s{S_WB}, v{V_T1}")
for ks in range(4):
    e(f"v_xor_b32 v{V_T2}, {4*ks}, v{V_T0}")
    e(f"v_lshl_add_u32 v{V_KA+ks}, v{V_T2}, 4, v{V_T1}")
e(f"v_lshrrev_b32 v{V_T0}, 2, v{V_L}")
e(f"v_lshlrev_b32 v{V_T1}, 8, v{V_T0}")
e(f"v_add_u32 v{V_T1}, s{S_WB}, v{V_T1}")
e(f"v_and_b32 v{V_T2}, 3, v{V_L}")
e(f"v_lshl_add_u32 v{V_T1}, v{V_T2}, 3, v{V_T1}")
e(f"v_and_b32 v{V_T0}, 7, v{V_T0}")
for t in range(8):
    e(f"v_xor_b32 v{V_T2}, {t}, v{V_T0}")
    e(f"v_lshl_add_u32 v{V_VA+t}, v{V_T2}, 5, v{V_T1}")
e(f"v_and_b32 v{V_T0}, 1, v{V_I}")
e(f"v_lshlrev_b32 v{V_T1}, 3, v{V_G}")
e(f"v_lshl_add_u32 v{V_XB}, v{V_T0}, 11, v{V_T1}")
e(f"v_lshlrev_b32 v{V_T1}, 4, v{V_G}")
e(f"v_lshl_add_u32 v{V_RED}, v{V_I}, 9, v{V_T1}")
e(f"v_lshlrev_b32 v{V_T1}, 4, v{V_I}")
e(f"v_lshl_add_u32 v{V_ST}, v{V_G}, 12, v{V_T1}")

def mask(m):
    e(f"s_mov_b32 exec_lo, {m & 0xffffffff:#x}")
    e(f"s_mov_b32 exec_hi, {(m >> 32) & 0xffffffff:#x}")
M_N2 = 0x0003000300030003
M_N8 = 0x00FF00FF00FF00FF

def gemv_unit(u, first, nxt=True):
    slot = u % R
    vm_wait(u)
    for t in range(8):
        e(f"ds_read_b64_tr_b16 v[{V_A+4*t}:{V_A+4*t+1}], v{V_VA+t} offset:{slot*8192}")
        e(f"ds_read_b64_tr_b16 v[{V_A+4*t+2}:{V_A+4*t+3}], v{V_VA+t} offset:{slot*8192+4096}")
        if t == 3:
            pass
    for t in range(8):
        if t % 2 == 0:
            e(f"s_waitcnt lgkmcnt({16 - 2*t - 4})")
        cc = "0" if first else f"v[{V_O+4*t}:{V_O+4*t+3}]"
        e(f"v_mfma_f32_16x16x32_bf16 v[{V_O+4*t}:{V_O+4*t+3}], v[{V_A+4*t}:{V_A+4*t+3}], v[{V_B}:{V_B+3}], {cc}")
    if nxt:
        issue_unit(u + R)

def read_b(vaddr_s, base):
    pass

for u in range(2, cfg.D):
    issue_unit(u)
nxt_issue = [max(2, cfg.D)]
def pump(upto):
    while nxt_issue[0] <= upto:
        issue_unit(nxt_issue[0]); nxt_issue[0] += 1
stamp(2)
e("s_barrier")
c("---- q-proj unit ----")
e(f"v_add_u32 v{V_T3}, s{S_XQ}, v{V_XB}")
e(f"ds_read_b64 v[{V_B}:{V_B+1}], v{V_T3} offset:{XN}")
e(f"ds_read_b64 v[{V_B+2}:{V_B+3}], v{V_T3} offset:{XN+32}")
e(f"v_add_u32 v{V_T3}, s{S_XG}, v{V_XB}")
e(f"ds_read_b64 v[{V_B+4}:{V_B+5}], v{V_T3} offset:{XN}")
e(f"ds_read_b64 v[{V_B+6}:{V_B+7}], v{V_T3} offset:{XN+32}")
e(f"ds_read_b64 v[{V_B+8}:{V_B+9}], v{V_T3} offset:{XN+64}")
e(f"ds_read_b64 v[{V_B+10}:{V_B+11}], v{V_T3} offset:{XN+96}")
e("s_waitcnt lgkmcnt(0)")
gemv_unit(0, True, nxt=False)
e(f"s_lshl_b32 s{S_T0}, s{S_WAVE}, 10")
e(f"v_add_u32 v{V_T3}, s{S_T0}, v{V_RED}")
e("s_nop 7")
mask(M_N2)
for t in range(8):
    e(f"ds_write_b128 v{V_T3}, v[{V_O+4*t}:{V_O+4*t+3}] offset:{REDQ + t*64}")
e("s_mov_b64 exec, -1")
e("s_waitcnt lgkmcnt(0)")
stamp()
e("s_barrier")
pump(cfg.D)
c("---- gate/up units ----")
for k in range(4):
    e(f"v_mov_b32 v{V_B+k}, v{V_B+4+k}")
e("s_nop 1")
gemv_unit(1, True, nxt=False)
pump(1 + cfg.D)
e("s_nop 7")
for k in range(4):
    e(f"v_mov_b32 v{V_B+k}, v{V_B+8+k}")
e("s_nop 1")
gemv_unit(2, False, nxt=False)
e("s_nop 7")
mask(M_N2)
for t in range(8):
    e(f"ds_write_b128 v{V_T3}, v[{V_O+4*t}:{V_O+4*t+3}] offset:{REDG + t*64}")
e("s_mov_b64 exec, -1")
e("s_waitcnt lgkmcnt(0)")
e("s_barrier")
pump(2 + R)
PARK = [V_O, V_X, V_X2, V_A][:cfg.NP]
def k_frags(u, base):
    slot = u % R
    vm_wait(u)
    for tile in range(2):
        for ks in range(4):
            a = base + 16*tile + 4*ks
            e(f"ds_read_b128 v[{a}:{a+3}], v{V_KA+ks} offset:{slot*8192 + tile*4096}")
for ku in range(cfg.NP):
    k_frags(3 + ku, PARK[ku])
    e("s_waitcnt lgkmcnt(0)")
    pump(3 + ku + R)
stamp()
e("s_barrier")
stamp(2)
c("---- load q fragments ----")
e(f"v_and_b32 v{V_T0}, 7, v{V_I}")
e(f"v_lshlrev_b32 v{V_T1}, 4, v{V_G}")
e(f"v_lshl_add_u32 v{V_T0}, v{V_T0}, 8, v{V_T1}")
for ks in range(4):
    e(f"ds_read_b128 v[{V_B+4*ks}:{V_B+4*ks+3}], v{V_T0} offset:{QL + ks*64}")
e(f"s_mov_b32 s{S_T0}, {SCALE:#x}")
e(f"s_mov_b32 s{S_T1}, 0xffff0000")
e(f"v_mov_b32 v{V_MX}, 0xff800000")
e("s_waitcnt lgkmcnt(0)")

def score_post(base):
    for h in range(2):
        a, b = base + 2*h, base + 2*h + 1
        e(f"v_cvt_pk_bf16_f32 v{V_T2}, v{a}, v{b}")
        e(f"v_lshlrev_b32 v{a}, 16, v{V_T2}")
        e(f"v_and_b32 v{b}, s{S_T1}, v{V_T2}")
        e(f"v_mul_f32 v{a}, s{S_T0}, v{a}")
        e(f"v_mul_f32 v{b}, s{S_T0}, v{b}")
        e(f"v_cvt_pk_bf16_f32 v{V_T2}, v{a}, v{b}")
        e(f"v_lshlrev_b32 v{a}, 16, v{V_T2}")
        e(f"v_and_b32 v{b}, s{S_T1}, v{V_T2}")
        e(f"v_max3_f32 v{V_MX}, v{a}, v{b}, v{V_MX}")

c("---- K phase ----")
def k_mfma(base, d0, wait):
    for tile in range(2):
        d = d0 + tile * 4
        if wait:
            e(f"s_waitcnt lgkmcnt({4 - 4*tile})")
        for ks in range(4):
            a = base + 16*tile + 4*ks
            cc = "0" if ks == 0 else f"v[{d}:{d+3}]"
            e(f"v_mfma_f32_16x16x32_bf16 v[{d}:{d+3}], v[{a}:{a+3}], v[{V_B+4*ks}:{V_B+4*ks+3}], {cc}")
for ku in range(NKU):
    u = 3 + ku
    parked = ku < cfg.NP
    base = PARK[ku] if parked else V_A
    if not parked:
        k_frags(u, V_A)
    k_mfma(base, V_S + 8*ku, not parked)
    if not parked:
        pump(u + R)
    e("s_nop 7")
    score_post(V_S + (2*ku) * 4)
    score_post(V_S + (2*ku + 1) * 4)
stamp(2)
c("---- softmax ----")
def xswap(op, v, tmp):
    e(f"v_mov_b32 v{tmp}, v{v}")
    e("s_nop 1")
    e(f"v_permlane16_swap_b32 v{v}, v{tmp}")
    e(f"{op} v{v}, v{v}, v{tmp}")
    e(f"v_mov_b32 v{tmp}, v{v}")
    e("s_nop 1")
    e(f"v_permlane32_swap_b32 v{v}, v{tmp}")
    e(f"{op} v{v}, v{v}, v{tmp}")
xswap("v_max_f32", V_MX, V_T2)
e(f"s_mov_b32 s{S_T2}, {LOG2E:#x}")
e(f"v_mul_f32 v{V_MC}, s{S_T2}, v{V_MX}")
e(f"v_mov_b32 v{V_LS}, 0")
e(f"v_mov_b32 v{V_T4}, 0")
def exp_block(r0, n):
    for r in range(r0, r0 + n, 2):
        a, b = V_S + r, V_S + r + 1
        e(f"v_fma_f32 v{a}, v{a}, s{S_T2}, -v{V_MC}")
        e(f"v_fma_f32 v{b}, v{b}, s{S_T2}, -v{V_MC}")
        e(f"v_exp_f32 v{a}, v{a}")
        e(f"v_exp_f32 v{b}, v{b}")
        e("s_nop 0")
        e(f"v_add_f32 v{V_LS}, v{V_LS}, v{a}")
        e(f"v_add_f32 v{V_T4}, v{V_T4}, v{b}")
        e(f"v_cvt_pk_bf16_f32 v{V_S + (r//8)*8 + (r%8)//2}, v{a}, v{b}")
exp_block(0, 8*NKU)
e(f"v_add_f32 v{V_LS}, v{V_LS}, v{V_T4}")
stamp()
c("---- V phase ----")
def v_consume(slot, preg, first):
    for t in range(8):
        e(f"ds_read_b64_tr_b16 v[{V_A+4*t}:{V_A+4*t+1}], v{V_VA+t} offset:{slot*8192}")
        e(f"ds_read_b64_tr_b16 v[{V_A+4*t+2}:{V_A+4*t+3}], v{V_VA+t} offset:{slot*8192+4096}")
    for t in range(8):
        if t % 2 == 0:
            e(f"s_waitcnt lgkmcnt({16 - 2*t - 4})")
        cc = "0" if first else f"v[{V_O+4*t}:{V_O+4*t+3}]"
        e(f"v_mfma_f32_16x16x32_bf16 v[{V_O+4*t}:{V_O+4*t+3}], v[{V_A+4*t}:{V_A+4*t+3}], v[{preg}:{preg+3}], {cc}")
for vu in range(NKU - 1):
    u = U_V0 + vu
    vm_wait(u)
    v_consume(u % R, V_S + 8*vu, vu == 0)
    pump(u + R)
    stamp(1)
assert outstanding == [U_VL]*8 + ["cl"], outstanding
PD = V_S + 8*(NKU - 1)
e("s_waitcnt vmcnt(1)")
v_consume(SLOT_B, PD, False)
lab("L_dyn")
e("s_waitcnt vmcnt(0)")
del outstanding[:]
e(f"v_readfirstlane_b32 s{S_T3}, v{V_CL}")
e(f"s_add_u32 s{S_T3}, s{S_T3}, 1")
e(f"s_cmp_ge_u32 s{S_T3}, {POOL}")
e("s_cbranch_scc1 L_dyn_exit")
e(f"s_lshl_b32 s{S_T3}, s{S_T3}, 13")
e(f"s_add_u32 s{S_DYN}, s{S_T3}, s{S_GB}")
dma_kv(U_KD, True, 99)
dma_kv(U_VD, False, 99)
e("s_waitcnt vmcnt(8)")
claim()
del outstanding[:]
for tile in range(2):
    for ks in range(4):
        a = V_A + 16*tile + 4*ks
        e(f"ds_read_b128 v[{a}:{a+3}], v{V_KA+ks} offset:{SLOT_A*8192 + tile*4096}")
k_mfma(V_A, PD, True)
e("s_nop 7")
score_post(PD)
score_post(PD + 4)
xswap("v_max_f32", V_MX, V_T2)
e(f"v_mul_f32 v{V_T4}, s{S_T2}, v{V_MX}")
e(f"v_sub_f32 v{V_AL}, v{V_MC}, v{V_T4}")
e(f"v_exp_f32 v{V_AL}, v{V_AL}")
e(f"v_mov_b32 v{V_MC}, v{V_T4}")
e(f"v_mov_b32 v{V_T4}, 0")
e(f"v_mul_f32 v{V_LS}, v{V_LS}, v{V_AL}")
for r in range(32):
    e(f"v_mul_f32 v{V_O+r}, v{V_O+r}, v{V_AL}")
exp_block(8*(NKU - 1), 8)
e(f"v_add_f32 v{V_LS}, v{V_LS}, v{V_T4}")
e("s_waitcnt vmcnt(1)")
v_consume(SLOT_B, PD, False)
e("s_branch L_dyn")
lab("L_dyn_exit")
dma_w(U_WD, SRD_WD, S_BD, 0, 2048, V_OW2)
dma_w(U_WO, SRD_WO, S_BO, 0, 2048, V_OW2)
xswap("v_add_f32", V_LS, V_T2)
c("---- write attention partial to LDS ----")
e(f"s_lshl_b32 s{S_T0}, s{S_WAVE}, 12")
e(f"v_add_u32 v{V_T3}, s{S_T0}, v{V_RED}")
e(f"s_lshl_b32 s{S_T0}, s{S_WAVE}, 3")
e(f"v_lshlrev_b32 v{V_T2}, 5, v{V_I}")
e(f"v_add_u32 v{V_T2}, s{S_T0}, v{V_T2}")
e(f"v_mov_b32 v{V_MX+1}, v{V_LS}") if V_LS != V_MX + 1 else None
e("s_nop 7")
mask(M_N8)
for t in range(8):
    e(f"ds_write_b128 v{V_T3}, v[{V_O+4*t}:{V_O+4*t+3}] offset:{AO + t*64}")
mask(0xFF)
e(f"ds_write_b64 v{V_T2}, v[{V_MX}:{V_MX+1}] offset:{AMLL}")
e("s_mov_b64 exec, -1")
e("s_waitcnt lgkmcnt(0)")
stamp()
e("s_barrier")
c("---- down-proj unit ----")
e(f"v_and_b32 v{V_T0}, 1, v{V_I}")
e(f"v_lshlrev_b32 v{V_T1}, 3, v{V_G}")
e(f"v_lshl_add_u32 v{V_T3}, v{V_T0}, 6, v{V_T1}")
e(f"ds_read_b64 v[{V_B}:{V_B+1}], v{V_T3} offset:{HL}")
e(f"ds_read_b64 v[{V_B+2}:{V_B+3}], v{V_T3} offset:{HL+32}")
e("s_waitcnt lgkmcnt(0)")
gemv_unit(U_WD, True, nxt=False)
def store_part(sb, region, oob_lt32):
    e("s_nop 7")
    for r in range(32):
        e(f"v_min_u32 v{V_O+r}, 0xfffffffe, v{V_O+r}")
    e(f"s_lshr_b32 s{S_T0}, s{sb}, 16")
    e(f"s_lshl_b32 s{S_T0}, s{S_T0}, 5")
    e(f"s_and_b32 s{S_T1}, s{sb}, 0xffff")
    e(f"s_lshl_b32 s{S_T1}, s{S_T1}, 9")
    e(f"s_add_u32 s{S_T0}, s{S_T0}, s{S_T1}")
    e(f"s_add_u32 s{S_T0}, s{S_T0}, {region}")
    if oob_lt32:
        e(f"s_cmp_lt_u32 s{S_WG}, 32")
        e(f"s_cselect_b32 s{S_T0}, 0x40000000, s{S_T0}")
    mask(M_N2)
    for t in range(8):
        e(f"buffer_store_dwordx4 v[{V_O+4*t}:{V_O+4*t+3}], v{V_ST}, {srd(SRD_WS)}, s{S_T0} offen sc1")
        vm_issue("st")
        if t < 7:
            e(f"s_add_u32 s{S_T0}, s{S_T0}, 16384")
    e("s_mov_b64 exec, -1")
store_part(S_BD, FPART, True)
stamp()
e("s_barrier")
stamp()
c("---- wo unit ----")
e(f"v_and_b32 v{V_T0}, 1, v{V_I}")
e(f"v_lshlrev_b32 v{V_T1}, 3, v{V_G}")
e(f"v_lshl_add_u32 v{V_T3}, v{V_T0}, 6, v{V_T1}")
e(f"ds_read_b64 v[{V_B}:{V_B+1}], v{V_T3} offset:{OL}")
e(f"ds_read_b64 v[{V_B+2}:{V_B+3}], v{V_T3} offset:{OL+32}")
e("s_waitcnt lgkmcnt(0)")
gemv_unit(U_WO, True, nxt=False)
stamp()
store_part(S_BO, SPART, False)
stamp()
if cfg.DIAG:
    e("s_waitcnt vmcnt(0)")
stamp()
stamp_flush(V_T0, V_T1, [(0,4,1),(0,5,0),(3,6,0),(4,7,0),(6,8,1),(6,9,0),(8,10,0),(11,11,0)])
e("s_endpgm")

in_stream[0] = False
lab("L_helper")
if cfg.PRIO:
    e(f"s_setprio {cfg.PRIO}")
c("================ helper waves ================")
S_HW = 4
H_T = 1
H_A, H_B, H_C, H_D, H_E = 2, 3, 4, 5, 6
H_XF = 8
H_NEG = 12
H_X = 16
H_R = 32
e(f"s_sub_u32 s{S_HW}, s{S_WAVE}, 4")
e(f"s_and_b32 s{S_T0}, s{S_HW}, 1")
e(f"s_lshl_b32 s{S_T1}, s{S_T0}, 11")
e(f"v_lshlrev_b32 v{H_A}, 5, v0")
e(f"buffer_load_dwordx4 v[{H_R}:{H_R+3}], v{H_A}, {srd(SRD_X)}, s{S_T1} offen")
e(f"buffer_load_dwordx4 v[{H_R+4}:{H_R+7}], v{H_A}, {srd(SRD_X)}, s{S_T1} offen offset:16")
e(f"s_lshl_b32 s{S_T2}, s{S_WG}, 3")
e(f"v_and_b32 v{H_B}, 1, v0")
e(f"v_lshlrev_b32 v{H_B}, 11, v{H_B}")
e(f"buffer_load_dwordx2 v[{H_XF}:{H_XF+1}], v{H_B}, {srd(SRD_X)}, s{S_T2} offen")
e(f"s_lshl_b32 s{S_T2}, s{S_HW}, 6")
e(f"v_add_u32 v{H_T}, s{S_T2}, v0")
for k in range(4):
    e(f"v_mov_b32 v{H_NEG+k}, -1")
e(f"v_mov_b32 v{H_C}, 0")
e(f"v_lshlrev_b32 v{H_D}, 2, v0")
e(f"v_and_b32 v{H_D}, 63, v{H_D}")
e(f"ds_write_b32 v{H_D}, v{H_C} offset:{FLG}")
if cfg.TLB:
    c("page pre-touch (helper 3)")
    e(f"s_cmp_lg_u32 s{S_HW}, 3")
    e("s_cbranch_scc1 L_h_notlb")
    e(f"v_lshlrev_b32 v{H_C}, {cfg.TLB}, v0")
    per = 64 << cfg.TLB
    k = 0
    for sr, nb in ((SRD_WQ, 8<<20), (SRD_GU, 7<<20), (SRD_K, 64<<20), (SRD_V, 64<<20), (SRD_WD, 7<<20), (SRD_WO, 8<<20), (SRD_WS, WS_BYTES)):
        for off in range(0, nb, per):
            e(f"s_mov_b32 s{S_T2}, {off}")
            e(f"buffer_load_dword v{H_R+16+(k%16)}, v{H_C}, {srd(sr)}, s{S_T2} offen")
            k += 1
    lab("L_h_notlb")
c("bootstrap: WG 0 clears the flag area, then raises d_debug[0]")
e(f"v_lshlrev_b32 v{H_B}, 4, v{H_T}")
e(f"s_cmp_lg_u32 s{S_WG}, 0")
e("s_cbranch_scc1 L_h_noboot")
for k in range(4):
    e(f"s_mov_b32 s{S_T2}, {QFLAG + k*4096}")
    e(f"buffer_store_dwordx4 v[{H_NEG}:{H_NEG+3}], v{H_B}, {srd(SRD_WS)}, s{S_T2} offen sc1")
e("s_waitcnt vmcnt(0)")
e(f"s_lshl_b32 s{S_T2}, s{S_HW}, 2")
e(f"v_mov_b32 v{H_C}, 1")
e(f"v_mov_b32 v{H_D}, 0")
e("s_mov_b64 exec, 1")
e(f"buffer_store_dword v{H_C}, v{H_D}, {srd(SRD_DBG)}, s{S_T2} offen sc1")
e("s_mov_b64 exec, -1")
lab("L_h_noboot")
c("clear sentinels")
e(f"v_lshlrev_b32 v{H_B}, 4, v{H_T}")
e(f"s_lshl_b32 s{S_T2}, s{S_WG}, 12")
e(f"s_add_u32 s{S_T2}, s{S_T2}, {APART}")
e(f"buffer_store_dwordx4 v[{H_NEG}:{H_NEG+3}], v{H_B}, {srd(SRD_WS)}, s{S_T2} offen sc1")
e(f"s_lshl_b32 s{S_T2}, s{S_WG}, 12")
e(f"s_add_u32 s{S_T3}, s{S_T2}, {SPART}")
e(f"buffer_store_dwordx4 v[{H_NEG}:{H_NEG+3}], v{H_B}, {srd(SRD_WS)}, s{S_T3} offen sc1")
e(f"v_cmp_gt_u32 vcc, 224, v{H_T}")
e("s_nop 1")
for k in range(4):
    e(f"v_cndmask_b32 v{H_X+k}, 0, v{H_NEG}, vcc")
e(f"s_add_u32 s{S_T3}, s{S_T2}, {FPART}")
e(f"buffer_store_dwordx4 v[{H_X}:{H_X+3}], v{H_B}, {srd(SRD_WS)}, s{S_T3} offen sc1")
e(f"s_cmp_lg_u32 s{S_HW}, 0")
e("s_cbranch_scc1 L_h_skipml")
e(f"s_lshr_b32 s{S_T2}, s{S_WG}, 5")
e(f"s_lshl_b32 s{S_T2}, s{S_T2}, 11")
e(f"s_and_b32 s{S_T3}, s{S_WG}, 31")
e(f"s_lshl_b32 s{S_T3}, s{S_T3}, 3")
e(f"s_add_u32 s{S_T2}, s{S_T2}, s{S_T3}")
e(f"s_add_u32 s{S_T2}, s{S_T2}, {AML}")
e(f"v_lshlrev_b32 v{H_C}, 8, v0")
mask(0xFF)
e(f"buffer_store_dwordx2 v[{H_NEG}:{H_NEG+1}], v{H_C}, {srd(SRD_WS)}, s{S_T2} offen sc1")
e("s_mov_b64 exec, -1")
lab("L_h_skipml")

def dpp_reduce(op, regs, tmpbase, full=True):
    for pat in ["quad_perm:[1,0,3,2]", "quad_perm:[2,3,0,1]", "row_half_mirror", "row_mirror"]:
        if len(regs) < 3:
            e("s_nop 1")
        for r in regs:
            e(f"{op}_dpp v{r}, v{r}, v{r} {pat} row_mask:0xf bank_mask:0xf")
    swaps = ["v_permlane16_swap_b32"] + (["v_permlane32_swap_b32"] if full else [])
    for sw in swaps:
        for k, r in enumerate(regs):
            e(f"v_mov_b32 v{tmpbase+k}, v{r}")
        e("s_nop 1")
        for k, r in enumerate(regs):
            e(f"{sw} v{r}, v{tmpbase+k}")
        for k, r in enumerate(regs):
            e(f"{op} v{r}, v{r}, v{tmpbase+k}")

def bf16r(dst, src, tmp):
    e(f"v_cvt_pk_bf16_f32 v{tmp}, v{src}, v{src}")
    e(f"v_lshlrev_b32 v{dst}, 16, v{tmp}")

c("layernorm")
e("s_waitcnt vmcnt(3)")
e(f"s_mov_b32 s{S_T2}, 0xffff0000")
for k in range(8):
    e(f"v_lshlrev_b32 v{H_X+2*k}, 16, v{H_R+k}")
    e(f"v_and_b32 v{H_X+2*k+1}, s{S_T2}, v{H_R+k}")
e(f"v_add_f32 v{H_A}, v{H_X}, v{H_X+1}")
for k in range(2, 16):
    e(f"v_add_f32 v{H_A}, v{H_A}, v{H_X+k}")
dpp_reduce("v_add_f32", [H_A], H_B)
e(f"v_mul_f32 v{H_A}, 0x3a800000, v{H_A}")
e(f"v_mov_b32 v{H_C}, 0")
for k in range(16):
    e(f"v_sub_f32 v{H_D}, v{H_X+k}, v{H_A}")
    e(f"v_fmac_f32 v{H_C}, v{H_D}, v{H_D}")
dpp_reduce("v_add_f32", [H_C], H_B)
e(f"v_mul_f32 v{H_C}, 0x3a800000, v{H_C}")
bf16r(H_A, H_A, H_B)
bf16r(H_C, H_C, H_B)
e(f"v_add_f32 v{H_C}, 0x3727c5ac, v{H_C}")
bf16r(H_C, H_C, H_B)
e(f"v_sqrt_f32 v{H_C}, v{H_C}")
e("s_nop 0")
bf16r(H_C, H_C, H_B)
e(f"v_rcp_f32 v{H_D}, v{H_C}")
e("s_nop 0")
for k in range(0, 16, 2):
    a, b = H_X + k, H_X + k + 1
    e(f"v_sub_f32 v{a}, v{a}, v{H_A}")
    e(f"v_sub_f32 v{b}, v{b}, v{H_A}")
    e(f"v_cvt_pk_bf16_f32 v{H_B}, v{a}, v{b}")
    e(f"v_lshlrev_b32 v{a}, 16, v{H_B}")
    e(f"v_and_b32 v{b}, s{S_T2}, v{H_B}")
    for x in (a, b):
        e(f"v_mul_f32 v{H_E}, v{x}, v{H_D}")
        e(f"v_fma_f32 v{x}, -v{H_E}, v{H_C}, v{x}")
        e(f"v_fma_f32 v{x}, v{x}, v{H_D}, v{H_E}")
    e(f"v_cvt_pk_bf16_f32 v{H_R+k//2}, v{a}, v{b}")
e(f"v_lshlrev_b32 v{H_A}, 5, v0")
e(f"v_add_u32 v{H_A}, s{S_T1}, v{H_A}")
e(f"ds_write_b128 v{H_A}, v[{H_R}:{H_R+3}] offset:{XN}")
e(f"ds_write_b128 v{H_A}, v[{H_R+4}:{H_R+7}] offset:{XN+16}")
e("s_waitcnt lgkmcnt(0)")
stamp()
e("s_barrier")
e("s_barrier")
stamp()

def red_publish(red_off, soff_emit, cnt_off_emit, skip_store_if=None, tag=""):
    e(f"v_lshlrev_b32 v{H_A}, 4, v0")
    for w in range(4):
        e(f"ds_read_b128 v[{H_R+4*w}:{H_R+4*w+3}], v{H_A} offset:{red_off + w*1024}")
    e("s_waitcnt lgkmcnt(0)")
    for k in range(4):
        e(f"v_add_f32 v{H_R+k}, v{H_R+k}, v{H_R+4+k}")
        e(f"v_add_f32 v{H_R+8+k}, v{H_R+8+k}, v{H_R+12+k}")
    for k in range(4):
        e(f"v_add_f32 v{H_R+k}, v{H_R+k}, v{H_R+8+k}")
    soff_emit()
    if skip_store_if:
        skip_store_if("L_skipst" + tag)
    e(f"buffer_store_dwordx4 v[{H_R}:{H_R+3}], v{H_B}, {srd(SRD_WS)}, s{S_T2} offen sc1")
    if skip_store_if:
        lab("L_skipst" + tag)
    e(f"v_mov_b32 v{H_A}, 0")
    lab("L_boot" + tag)
    e(f"buffer_load_dwordx4 v[{H_R+4}:{H_R+7}], v{H_A}, {srd(SRD_DBG)}, 0 offen sc1")
    e("s_waitcnt vmcnt(0)")
    e(f"v_and_b32 v{H_R+4}, v{H_R+4}, v{H_R+5}")
    e(f"v_and_b32 v{H_R+6}, v{H_R+6}, v{H_R+7}")
    e(f"v_and_b32 v{H_R+4}, v{H_R+4}, v{H_R+6}")
    e(f"v_cmp_eq_u32 vcc, 0, v{H_R+4}")
    e(f"s_cbranch_vccz L_bootd{tag}")
    e("s_sleep 8")
    e(f"s_sub_u32 s{S_SPIN}, s{S_SPIN}, 1")
    e(f"s_cmp_lg_u32 s{S_SPIN}, 0")
    e(f"s_cbranch_scc1 L_boot{tag}")
    e(f"s_mov_b32 s{S_SPIN}, 1")
    lab("L_bootd" + tag)
    cnt_off_emit()
    e(f"v_mov_b32 v{H_A}, 0")
    e(f"buffer_store_dword v{H_A}, v{H_B}, {srd(SRD_WS)}, s{S_T2} offen sc1")
    e("s_mov_b64 exec, -1")

c("publish q partial (helper 0)")
e(f"s_cmp_lg_u32 s{S_HW}, 0")
e("s_cbranch_scc1 L_h_noq")
def q_soff():
    e(f"v_and_b32 v{H_B}, 31, v0")
    e(f"v_lshlrev_b32 v{H_B}, 4, v{H_B}")
    e(f"v_lshrrev_b32 v{H_C}, 5, v0")
    e(f"v_lshl_add_u32 v{H_B}, v{H_C}, 14, v{H_B}")
    e(f"s_and_b32 s{S_T2}, s{S_WG}, 7")
    e(f"s_lshl_b32 s{S_T2}, s{S_T2}, 15")
    e(f"s_lshr_b32 s{S_T3}, s{S_WG}, 3")
    e(f"s_lshl_b32 s{S_T3}, s{S_T3}, 9")
    e(f"s_add_u32 s{S_T2}, s{S_T2}, s{S_T3}")
    if QPART:
        e(f"s_add_u32 s{S_T2}, s{S_T2}, {QPART}")
def q_cnt():
    e(f"s_lshl_b32 s{S_T2}, s{S_WG}, 2")
    e(f"s_add_u32 s{S_T2}, s{S_T2}, {QFLAG}")
    e(f"v_lshlrev_b32 v{H_B}, 10, v0")
    mask(0xFF)
red_publish(REDQ, q_soff, q_cnt, None, "q")
e("s_branch L_h_q2")
lab("L_h_noq")
e("s_waitcnt vmcnt(0)")
lab("L_h_q2")
stamp()
e("s_barrier")
c("publish gate/up partial (helper 1)")
e(f"s_cmp_lg_u32 s{S_HW}, 1")
e("s_cbranch_scc1 L_h_nog")
def g_soff():
    e(f"v_and_b32 v{H_B}, 31, v0")
    e(f"v_lshlrev_b32 v{H_B}, 4, v{H_B}")
    e(f"v_lshrrev_b32 v{H_C}, 5, v0")
    e(f"v_mul_u32_u24 v{H_C}, 14336, v{H_C}")
    e(f"v_add_u32 v{H_B}, v{H_C}, v{H_B}")
    e(f"s_lshr_b32 s{S_T3}, s{S_WG}, 2")
    e(f"s_cmp_ge_u32 s{S_T3}, 28")
    e(f"s_cselect_b32 s{S_T2}, 28, 0")
    e(f"s_sub_u32 s{S_T3}, s{S_T3}, s{S_T2}")
    e(f"s_lshr_b32 s{S_T2}, s{S_WG}, 2")
    e(f"s_cmp_ge_u32 s{S_T2}, 28")
    e(f"s_cselect_b32 s{S_T2}, 4, 0")
    e(f"s_and_b32 s{S_T4}, s{S_WG}, 3")
    e(f"s_add_u32 s{S_T2}, s{S_T2}, s{S_T4}")
    e(f"s_mul_i32 s{S_T2}, s{S_T2}, {2*14336}")
    e(f"s_lshl_b32 s{S_T3}, s{S_T3}, 9")
    e(f"s_add_u32 s{S_T2}, s{S_T2}, s{S_T3}")
    e(f"s_add_u32 s{S_T2}, s{S_T2}, {GUPART}")
def g_skip(l):
    e(f"s_cmp_ge_u32 s{S_WG}, 224")
    e(f"s_cbranch_scc1 {l}")
def g_cnt():
    e(f"s_lshl_b32 s{S_T2}, s{S_WG}, 2")
    e(f"s_add_u32 s{S_T2}, s{S_T2}, {HFLAG}")
    e(f"v_lshlrev_b32 v{H_B}, 10, v0")
    mask(0xF)
red_publish(REDG, g_soff, g_cnt, g_skip, "g")
lab("L_h_nog")

def lds_flag_wait(idx, name):
    lab(f"L_{name}_w")
    e(f"v_mov_b32 v{H_A}, 0")
    e(f"ds_read_b32 v{H_B}, v{H_A} offset:{FLG + 4*idx}")
    e("s_waitcnt lgkmcnt(0)")
    e(f"v_readfirstlane_b32 s{S_T2}, v{H_B}")
    e(f"s_cmp_lg_u32 s{S_T2}, 0")
    e(f"s_cbranch_scc1 L_{name}_d")
    e("s_sleep 1")
    e(f"s_sub_u32 s{S_SPIN}, s{S_SPIN}, 1")
    e(f"s_cmp_lg_u32 s{S_SPIN}, 0")
    e(f"s_cbranch_scc1 L_{name}_w")
    e(f"s_mov_b32 s{S_SPIN}, 1")
    e(f"s_branch L_{name}_d")

def lds_flag_set(idx):
    e(f"v_mov_b32 v{H_A}, 0")
    e(f"v_mov_b32 v{H_B}, 1")
    e(f"ds_write_b32 v{H_A}, v{H_B} offset:{FLG + 4*idx}")

c("wait for q counter")
e(f"s_cmp_lg_u32 s{S_HW}, 0")
e("s_cbranch_scc1 L_qf_w")
e(f"s_lshr_b32 s{S_T3}, s{S_WG}, 5")
e(f"s_and_b32 s{S_T3}, s{S_T3}, 3")
e(f"s_lshl_b32 s{S_T3}, s{S_T3}, 8")
e(f"s_and_b32 s{S_T2}, s{S_WG}, 7")
e(f"s_lshl_b32 s{S_T2}, s{S_T2}, 10")
e(f"s_add_u32 s{S_T3}, s{S_T3}, s{S_T2}")
e(f"s_add_u32 s{S_T3}, s{S_T3}, {QFLAG}")
e(f"v_lshlrev_b32 v{H_A}, 2, v0")
lab("L_qpoll")
e(f"buffer_load_dword v{H_B}, v{H_A}, {srd(SRD_WS)}, s{S_T3} offen sc1")
e("s_waitcnt vmcnt(0)")
e(f"v_cmp_eq_u32 vcc, -1, v{H_B}")
e("s_cbranch_vccz L_qpoll_d")
e("s_sleep 4")
e(f"s_sub_u32 s{S_SPIN}, s{S_SPIN}, 1")
e(f"s_cmp_lg_u32 s{S_SPIN}, 0")
e("s_cbranch_scc1 L_qpoll")
e(f"s_mov_b32 s{S_SPIN}, 1")
lab("L_qpoll_d")
lds_flag_set(0)
e("s_branch L_qf_d")
lds_flag_wait(0, "qf")
lab("L_qf_d")
stamp()
c("gather q")
e(f"s_lshr_b32 s{S_T2}, s{S_WG}, 5")
e(f"s_lshl_b32 s{S_T2}, s{S_T2}, 12")
e(f"v_lshlrev_b32 v{H_A}, 4, v{H_T}")
for ks in range(8):
    e(f"s_add_u32 s{S_T3}, s{S_T2}, {QPART + ks*32768}")
    e(f"buffer_load_dwordx4 v[{H_R+4*ks}:{H_R+4*ks+3}], v{H_A}, {srd(SRD_WS)}, s{S_T3} offen sc1")
e("s_waitcnt vmcnt(0)")
for ks in range(1, 8):
    for k in range(4):
        e(f"v_add_f32 v{H_R+k}, v{H_R+k}, v{H_R+4*ks+k}")
e(f"v_cvt_pk_bf16_f32 v{H_R}, v{H_R}, v{H_R+1}")
e(f"v_cvt_pk_bf16_f32 v{H_R+1}, v{H_R+2}, v{H_R+3}")
e(f"v_lshlrev_b32 v{H_A}, 3, v{H_T}")
e(f"ds_write_b64 v{H_A}, v[{H_R}:{H_R+1}] offset:{QL}")
e("s_waitcnt lgkmcnt(0)")
stamp()
e("s_barrier")
c("wait for h counter (helper 0), h gather (helper 1)")
e(f"s_cmp_eq_u32 s{S_HW}, 1")
e("s_cbranch_scc1 L_hf_w")
e(f"s_cmp_lg_u32 s{S_HW}, 0")
e("s_cbranch_scc1 L_h_b5")
e(f"v_lshlrev_b32 v{H_A}, 4, v0")
e(f"s_and_b32 s{S_T2}, s{S_WG}, 3")
e(f"s_lshl_b32 s{S_T2}, s{S_T2}, 10")
e(f"s_add_u32 s{S_T2}, s{S_T2}, {HFLAG}")
lab("L_hpoll")
e(f"buffer_load_dwordx4 v[{H_R}:{H_R+3}], v{H_A}, {srd(SRD_WS)}, s{S_T2} offen sc1")
e("s_waitcnt vmcnt(0)")
e(f"v_max3_u32 v{H_B}, v{H_R}, v{H_R+1}, v{H_R+2}")
e(f"v_max_u32 v{H_B}, v{H_B}, v{H_R+3}")
e(f"v_cmp_eq_u32 vcc, -1, v{H_B}")
e("s_cbranch_vccz L_hpoll_d")
e("s_sleep 16")
e(f"s_sub_u32 s{S_SPIN}, s{S_SPIN}, 1")
e(f"s_cmp_lg_u32 s{S_SPIN}, 0")
e("s_cbranch_scc1 L_hpoll")
e(f"s_mov_b32 s{S_SPIN}, 1")
lab("L_hpoll_d")
lds_flag_set(1)
e("s_branch L_h_b5")
lds_flag_wait(1, "hf")
lab("L_hf_d")
e(f"s_max_u32 s{S_T2}, s{S_WG}, 32")
e(f"s_sub_u32 s{S_T2}, s{S_T2}, 32")
e(f"s_lshr_b32 s{S_T2}, s{S_T2}, 1")
e(f"s_lshl_b32 s{S_T2}, s{S_T2}, 7")
e(f"v_and_b32 v{H_A}, 31, v0")
e(f"v_lshlrev_b32 v{H_A}, 2, v{H_A}")
e(f"v_lshrrev_b32 v{H_B}, 5, v0")
e(f"v_mul_u32_u24 v{H_B}, 14336, v{H_B}")
e(f"v_add_u32 v{H_A}, v{H_A}, v{H_B}")
for m in range(8):
    e(f"s_add_u32 s{S_T3}, s{S_T2}, {GUPART + m*2*14336}")
    e(f"buffer_load_dword v{H_R+m}, v{H_A}, {srd(SRD_WS)}, s{S_T3} offen sc1")
e("s_waitcnt vmcnt(0)")
for m in (0, 4):
    e(f"v_add_f32 v{H_R+m}, v{H_R+m}, v{H_R+m+1}")
    e(f"v_add_f32 v{H_R+m+2}, v{H_R+m+2}, v{H_R+m+3}")
    e(f"v_add_f32 v{H_R+m}, v{H_R+m}, v{H_R+m+2}")
    bf16r(H_R + m, H_R + m, H_B)
def silu(dst, src, t):
    e(f"v_mul_f32 v{t}, 0xbfb8aa3b, v{src}")
    e(f"v_exp_f32 v{t}, v{t}")
    e("s_nop 0")
    e(f"v_add_f32 v{t}, 1.0, v{t}")
    e(f"v_rcp_f32 v{t}, v{t}")
    e("s_nop 0")
    e(f"v_mul_f32 v{dst}, v{src}, v{t}")
silu(H_R, H_R, H_B)
bf16r(H_R, H_R, H_B)
e(f"v_mul_f32 v{H_R}, v{H_R}, v{H_R+4}")
e(f"v_cvt_pk_bf16_f32 v{H_R}, v{H_R}, v{H_R}")
e(f"v_lshlrev_b32 v{H_A}, 1, v0")
e(f"ds_write_b16 v{H_A}, v{H_R} offset:{HL}")
e("s_waitcnt lgkmcnt(0)")
lab("L_h_b5")
e("s_waitcnt lgkmcnt(0)")
stamp()
def spin_tail(back, sl=1):
    e(f"s_sleep {sl}")
    e(f"s_sub_u32 s{S_SPIN}, s{S_SPIN}, 1")
    e(f"s_cmp_lg_u32 s{S_SPIN}, 0")
    e(f"s_cbranch_scc1 {back}")
    e(f"s_mov_b32 s{S_SPIN}, 1")
def mailbox(region, name, sl):
    e(f"s_lshl_b32 s{S_T2}, s{S_WG}, 12")
    e(f"s_add_u32 s{S_T2}, s{S_T2}, {region}")
    e(f"v_lshlrev_b32 v{H_A}, 4, v0")
    lab(f"L_{name}")
    for k in range(4):
        e(f"buffer_load_dwordx4 v[{H_R+4*k}:{H_R+4*k+3}], v{H_A}, {srd(SRD_WS)}, s{S_T2} offen offset:{1024*k} sc1")
    e("s_waitcnt vmcnt(0)")
    e(f"v_max3_u32 v{H_D}, v{H_R}, v{H_R+1}, v{H_R+2}")
    e(f"v_max3_u32 v{H_E}, v{H_R+3}, v{H_R+4}, v{H_R+5}")
    e(f"v_max3_u32 v{H_D}, v{H_D}, v{H_R+6}, v{H_R+7}")
    e(f"v_max3_u32 v{H_E}, v{H_E}, v{H_R+8}, v{H_R+9}")
    e(f"v_max3_u32 v{H_D}, v{H_D}, v{H_R+10}, v{H_R+11}")
    e(f"v_max3_u32 v{H_E}, v{H_E}, v{H_R+12}, v{H_R+13}")
    e(f"v_max3_u32 v{H_D}, v{H_D}, v{H_R+14}, v{H_R+15}")
    e(f"v_max_u32 v{H_D}, v{H_D}, v{H_E}")
    e(f"v_cmp_eq_u32 vcc, -1, v{H_D}")
    e(f"s_cbranch_vccz L_{name}_d")
    spin_tail(f"L_{name}", sl)
    lab(f"L_{name}_d")
    for k in range(4):
        e(f"v_add_f32 v{H_R+k}, v{H_R+k}, v{H_R+4+k}")
        e(f"v_add_f32 v{H_R+8+k}, v{H_R+8+k}, v{H_R+12+k}")
    for k in range(4):
        e(f"v_add_f32 v{H_R+k}, v{H_R+k}, v{H_R+8+k}")
    regs = [H_R + k for k in range(4)]
    for pat in ["quad_perm:[2,3,0,1]", "row_ror:4", "row_ror:8"]:
        for r in regs:
            e(f"v_add_f32_dpp v{r}, v{r}, v{r} {pat} row_mask:0xf bank_mask:0xf")
    for sw in ["v_permlane16_swap_b32", "v_permlane32_swap_b32"]:
        for k, r in enumerate(regs):
            e(f"v_mov_b32 v{H_X+k}, v{r}")
        e("s_nop 1")
        for k, r in enumerate(regs):
            e(f"{sw} v{r}, v{H_X+k}")
        for k, r in enumerate(regs):
            e(f"v_add_f32 v{r}, v{r}, v{H_X+k}")
stamp()
e("s_barrier")
stamp()
c("combine 4 waves' attention partials, publish")
e(f"v_lshrrev_b32 v{H_A}, 5, v{H_T}")
e(f"v_lshlrev_b32 v{H_B}, 5, v{H_A}")
e(f"ds_read_b128 v[{H_X}:{H_X+3}], v{H_B} offset:{AMLL}")
e(f"ds_read_b128 v[{H_X+4}:{H_X+7}], v{H_B} offset:{AMLL+16}")
e(f"v_lshlrev_b32 v{H_C}, 4, v{H_T}")
for w in range(4):
    e(f"ds_read_b128 v[{H_R+4*w}:{H_R+4*w+3}], v{H_C} offset:{AO + w*4096}")
e(f"s_mov_b32 s{S_T3}, {LOG2E:#x}")
e("s_waitcnt lgkmcnt(4)")
e(f"v_max3_f32 v{H_D}, v{H_X}, v{H_X+2}, v{H_X+4}")
e(f"v_max_f32 v{H_D}, v{H_D}, v{H_X+6}")
for w in range(4):
    e(f"v_sub_f32 v{H_X+2*w}, v{H_X+2*w}, v{H_D}")
    e(f"v_mul_f32 v{H_X+2*w}, s{S_T3}, v{H_X+2*w}")
    e(f"v_exp_f32 v{H_X+2*w}, v{H_X+2*w}")
e("s_nop 0")
e(f"v_mul_f32 v{H_E}, v{H_X}, v{H_X+1}")
for w in range(1, 4):
    e(f"v_fmac_f32 v{H_E}, v{H_X+2*w}, v{H_X+2*w+1}")
e("s_waitcnt lgkmcnt(0)")
for k in range(4):
    e(f"v_mul_f32 v{H_R+k}, v{H_X}, v{H_R+k}")
for w in range(1, 4):
    for k in range(4):
        e(f"v_fmac_f32 v{H_R+k}, v{H_X+2*w}, v{H_R+4*w+k}")
for k in range(4):
    e(f"v_min_u32 v{H_R+k}, 0xfffffffe, v{H_R+k}")
e(f"v_min_u32 v{H_D}, 0xfffffffe, v{H_D}")
e(f"v_min_u32 v{H_E}, 0xfffffffe, v{H_E}")
e(f"s_lshl_b32 s{S_T2}, s{S_WG}, 12")
e(f"s_add_u32 s{S_T2}, s{S_T2}, {APART}")
e(f"buffer_store_dwordx4 v[{H_R}:{H_R+3}], v{H_C}, {srd(SRD_WS)}, s{S_T2} offen sc1")
e(f"s_lshr_b32 s{S_T2}, s{S_WG}, 5")
e(f"s_lshl_b32 s{S_T2}, s{S_T2}, 11")
e(f"s_and_b32 s{S_T3}, s{S_WG}, 31")
e(f"s_lshl_b32 s{S_T3}, s{S_T3}, 3")
e(f"s_add_u32 s{S_T2}, s{S_T2}, s{S_T3}")
e(f"s_add_u32 s{S_T2}, s{S_T2}, {AML}")
e(f"v_lshlrev_b32 v{H_B}, 8, v{H_A}")
assert H_E == H_D + 1
e(f"v_mov_b32 v{H_X+8}, v{H_D}")
e(f"v_mov_b32 v{H_X+9}, v{H_E}")
mask(0x0000000100000001)
e(f"buffer_store_dwordx2 v[{H_X+8}:{H_X+9}], v{H_B}, {srd(SRD_WS)}, s{S_T2} offen sc1")
e("s_mov_b64 exec, -1")
stamp()
c("level-1 gather")
e(f"s_lshr_b32 s{S_T0}, s{S_HW}, 1")
e(f"s_lshl_b32 s{S_T0}, s{S_T0}, 2")
e(f"s_lshr_b32 s{S_T1}, s{S_WG}, 6")
e(f"s_add_u32 s{S_T0}, s{S_T0}, s{S_T1}")
e(f"s_lshr_b32 s{S_T1}, s{S_WG}, 3")
e(f"s_and_b32 s{S_T1}, s{S_T1}, 7")
e(f"s_lshl_b32 s{S_T2}, s{S_T0}, 17")
e(f"s_lshl_b32 s{S_T3}, s{S_T1}, 9")
e(f"s_add_u32 s{S_T2}, s{S_T2}, s{S_T3}")
e(f"s_lshr_b32 s{S_T3}, s{S_WG}, 1")
e(f"s_and_b32 s{S_T3}, s{S_T3}, 3")
e(f"s_lshl_b32 s{S_T3}, s{S_T3}, 7")
e(f"s_add_u32 s{S_T2}, s{S_T2}, s{S_T3}")
e(f"s_and_b32 s{S_T3}, s{S_HW}, 1")
e(f"s_lshl_b32 s{S_T3}, s{S_T3}, 6")
e(f"s_add_u32 s{S_T2}, s{S_T2}, s{S_T3}")
e(f"s_add_u32 s{S_T2}, s{S_T2}, {APART}")
e(f"s_lshl_b32 s{S_T3}, s{S_T0}, 11")
e(f"s_lshl_b32 s{S_T1}, s{S_T1}, 8")
e(f"s_add_u32 s{S_T3}, s{S_T3}, s{S_T1}")
e(f"s_add_u32 s{S_T3}, s{S_T3}, {AML}")
e(f"v_and_b32 v{H_A}, 31, v0")
e(f"v_lshrrev_b32 v{H_B}, 5, v0")
e(f"v_lshlrev_b32 v{H_C}, 3, v{H_A}")
e(f"v_lshlrev_b32 v{H_B}, 5, v{H_B}")
e(f"v_lshl_add_u32 v{H_B}, v{H_A}, 12, v{H_B}")
lab("L_l1f")
e(f"buffer_load_dwordx2 v[{H_R+8}:{H_R+9}], v{H_C}, {srd(SRD_WS)}, s{S_T3} offen sc1")
e("s_waitcnt vmcnt(0)")
e(f"v_max_u32 v{H_D}, v{H_R+8}, v{H_R+9}")
e(f"v_cmp_eq_u32 vcc, -1, v{H_D}")
e(f"s_bcnt1_i32_b64 s{S_T1}, vcc")
e(f"s_cmp_le_u32 s{S_T1}, {cfg.L1TH}")
e("s_cbranch_scc1 L_l1poll")
spin_tail("L_l1f", 2)
lab("L_l1poll")
e(f"buffer_load_dwordx4 v[{H_R}:{H_R+3}], v{H_B}, {srd(SRD_WS)}, s{S_T2} offen sc1")
e(f"buffer_load_dwordx4 v[{H_R+4}:{H_R+7}], v{H_B}, {srd(SRD_WS)}, s{S_T2} offen offset:16 sc1")
e(f"buffer_load_dwordx2 v[{H_R+8}:{H_R+9}], v{H_C}, {srd(SRD_WS)}, s{S_T3} offen sc1")
e("s_waitcnt vmcnt(0)")
e(f"v_max3_u32 v{H_D}, v{H_R}, v{H_R+1}, v{H_R+2}")
e(f"v_max3_u32 v{H_E}, v{H_R+3}, v{H_R+4}, v{H_R+5}")
e(f"v_max3_u32 v{H_D}, v{H_D}, v{H_R+6}, v{H_R+7}")
e(f"v_max3_u32 v{H_E}, v{H_E}, v{H_R+8}, v{H_R+9}")
e(f"v_max_u32 v{H_D}, v{H_D}, v{H_E}")
e(f"v_cmp_eq_u32 vcc, -1, v{H_D}")
e("s_cbranch_vccz L_l1poll_d")
spin_tail("L_l1poll", 1)
lab("L_l1poll_d")
stamp()
e(f"v_mov_b32 v{H_D}, v{H_R+8}")
dpp_reduce("v_max_f32", [H_D], H_X, full=False)
e(f"s_mov_b32 s{S_T1}, {LOG2E:#x}")
e(f"v_sub_f32 v{H_D}, v{H_R+8}, v{H_D}")
e(f"v_mul_f32 v{H_D}, s{S_T1}, v{H_D}")
e(f"v_exp_f32 v{H_D}, v{H_D}")
e("s_nop 0")
for k in range(8):
    e(f"v_mul_f32 v{H_R+k}, v{H_D}, v{H_R+k}")
e(f"v_mul_f32 v{H_R+8}, v{H_D}, v{H_R+9}")
dpp_reduce("v_add_f32", [H_R + k for k in range(9)], H_X, full=False)
e(f"v_rcp_f32 v{H_D}, v{H_R+8}")
e("s_nop 0")
for k in range(8):
    e(f"v_mul_f32 v{H_R+k}, v{H_D}, v{H_R+k}")
for k in range(4):
    e(f"v_cvt_pk_bf16_f32 v{H_R+k}, v{H_R+2*k}, v{H_R+2*k+1}")
e(f"s_lshl_b32 s{S_T1}, s{S_HW}, 5")
e(f"v_lshrrev_b32 v{H_A}, 5, v0")
e(f"v_lshlrev_b32 v{H_A}, 4, v{H_A}")
e(f"v_add_u32 v{H_A}, s{S_T1}, v{H_A}")
mask(0x0000000100000001)
e(f"ds_write_b128 v{H_A}, v[{H_R}:{H_R+3}] offset:{OL}")
e("s_mov_b64 exec, -1")
e("s_waitcnt lgkmcnt(0)")
stamp()
e("s_barrier")
c("f gather (helper 2)")
e(f"s_cmp_lg_u32 s{S_HW}, 2")
e("s_cbranch_scc1 L_h_nof")
mailbox(FPART, "fmb", cfg.FSL)
for k in range(4):
    bf16r(H_R + k, H_R + k, H_B)
    silu(H_R + k, H_R + k, H_B)
    bf16r(H_R + k, H_R + k, H_B)
mask(0x3)
e(f"ds_write_b128 v{H_A}, v[{H_R}:{H_R+3}] offset:{G2L}")
e("s_mov_b64 exec, -1")
e("s_waitcnt lgkmcnt(0)")
lds_flag_set(2)
e("s_branch L_h_end")
lab("L_h_nof")
c("level-2")
e(f"s_cmp_lg_u32 s{S_HW}, 0")
e("s_cbranch_scc1 L_h_end")
e(f"v_and_b32 v{H_C}, 1, v0")
mailbox(SPART, "smb", 1)
stamp()
lds_flag_wait(2, "g2f")
lab("L_g2f_d")
e(f"v_lshlrev_b32 v{H_B}, 4, v{H_C}")
e(f"ds_read_b128 v[{H_X+8}:{H_X+11}], v{H_B} offset:{G2L}")
e(f"s_mov_b32 s{S_T2}, 0xffff0000")
e(f"v_lshlrev_b32 v{H_X}, 16, v{H_XF}")
e(f"v_and_b32 v{H_X+1}, s{S_T2}, v{H_XF}")
e(f"v_lshlrev_b32 v{H_X+2}, 16, v{H_XF+1}")
e(f"v_and_b32 v{H_X+3}, s{S_T2}, v{H_XF+1}")
e("s_waitcnt lgkmcnt(0)")
for k in range(4):
    bf16r(H_R + k, H_R + k, H_B)
    e(f"v_mul_f32 v{H_R+k}, v{H_R+k}, v{H_X+8+k}")
    bf16r(H_R + k, H_R + k, H_B)
    e(f"v_add_f32 v{H_R+k}, v{H_X+k}, v{H_R+k}")
e(f"v_cvt_pk_bf16_f32 v{H_R}, v{H_R}, v{H_R+1}")
e(f"v_cvt_pk_bf16_f32 v{H_R+1}, v{H_R+2}, v{H_R+3}")
e(f"s_lshl_b32 s{S_T0}, s{S_WG}, 3")
e(f"v_lshlrev_b32 v{H_A}, 11, v{H_C}")
mask(0x3)
e(f"buffer_store_dwordx2 v[{H_R}:{H_R+1}], v{H_A}, {srd(SRD_OUT)}, s{S_T0} offen")
e("s_mov_b64 exec, -1")
stamp()
if cfg.DIAG == 2:
    stamp_flush(H_A, H_B, [(4,12,0),(9,13,0),(11,14,0),(12,15,0)])
lab("L_h_end")
if cfg.DIAG == 1:
    stamp_flush(H_A, H_B)
lab("L_end")
e("s_endpgm")

L.append('.section .rodata,"a"')
L.append(".p2align 6")
L.append(f".amdhsa_kernel {KNAME}")
L.append(f"  .amdhsa_next_free_vgpr {NV_STREAM}")
L.append("  .amdhsa_next_free_sgpr 100")
L.append(f"  .amdhsa_accum_offset {NV_STREAM}")
L.append("  .amdhsa_group_segment_fixed_size 0")
L.append("  .amdhsa_kernarg_size 96")
L.append("  .amdhsa_user_sgpr_count 2")
L.append("  .amdhsa_user_sgpr_kernarg_segment_ptr 1")
L.append("  .amdhsa_system_sgpr_workgroup_id_x 1")
L.append(".end_amdhsa_kernel")
open(sys.argv[1], "w").write("\n".join(L) + "\n")
print("wrote", sys.argv[1], len(L), "lines; LDS", LDS_BYTES)
```

```python
import sys

KNAME = "recurrent_scan__gqa_block_cached__swiglu_ffn__decode_kernel"

class Cfg:
    R = 4
    NT = False
    DIAG = False
    SPIN = 1 << 22
    D = 2
    PAT = 2
    DH = 0
    L1TH = 8
    VS = 0
    FSL = 2
    D2 = 0
    U2 = 14
    TLB = 0
    PRIO = 2
    PROBE = -1
    PWG = 0
    NS = 6
    ND = 4
    NP = 4

cfg = Cfg()
for a in sys.argv[2:]:
    k, v = a.split("=")
    setattr(cfg, k, int(v))

R = cfg.R
L = []
def e(s): L.append("    " + s)
def lab(s): L.append(s + ":")
def c(s): L.append("    ; " + s)

QPART = 0x000000
GUPART = 0x040000
APART = 0x080000
AML = 0x180000
SPART = 0x200000
FPART = 0x300000
SFLAG = 0x190000
QFLAG = 0x1A0000
HFLAG = 0x1A2000
CNT = 0x1A3000
TSOFF = 0x400000
WS_BYTES = 0x500000

XN = 0
REDQ = XN + 4096
REDG = REDQ + 4096
QL = REDG + 4096
AO = QL + 2048
AMLL = AO + 16384
HL = AMLL + 256
OL = HL + 128
G2L = OL + 128
FLG = G2L + 64
RING = 32768
assert FLG + 64 <= RING
LDS_BYTES = RING + 4 * R * 8192
assert LDS_BYTES <= 163840, LDS_BYTES

S_WG = 2
S_WAVE = 3
SRD_X, SRD_K, SRD_V, SRD_WQ, SRD_WO, SRD_GU, SRD_WD, SRD_OUT, SRD_DBG, SRD_WS, SRD_FP = \
    [56 + 4 * i for i in range(11)]
def srd(b): return f"s[{b}:{b+3}]"
S_WB = 4
S_T0, S_T1, S_T2, S_T3 = 5, 6, 7, 8
S_BQ, S_BG, S_BKV, S_BD, S_BO = 9, 10, 11, 12, 13
S_SPIN = 14
S_T4 = 15
S_STAMP0 = 36
nstamp = [0]
in_stream = [True]

def stamp(kind=0):
    if not cfg.DIAG:
        return
    if in_stream[0] and cfg.VS != kind and kind != 2:
        return
    if in_stream[0] and cfg.DIAG == 3:
        return
    i = nstamp[0]
    assert i < 14
    e("s_memrealtime s[30:31]")
    e("s_waitcnt lgkmcnt(0)")
    e(f"s_mov_b32 s{S_STAMP0+i}, s30")
    nstamp[0] += 1

def stamp_flush(vtmp0, vtmp1, dbgmap=None):
    if not cfg.DIAG:
        return
    n = nstamp[0]
    if cfg.DIAG == 3:
        nstamp[0] = 0
        return
    if cfg.DIAG == 2:
        e("s_mov_b64 exec, 1")
        e(f"v_mov_b32 v{vtmp0}, 0")
        for (i, word, inv) in dbgmap:
            if inv:
                e(f"s_not_b32 s30, s{S_STAMP0+i}")
            else:
                e(f"s_mov_b32 s30, s{S_STAMP0+i}")
            e(f"v_mov_b32 v{vtmp1}, s30")
            e(f"buffer_atomic_umax v{vtmp1}, v{vtmp0}, {srd(SRD_DBG)}, 0 offen offset:{4*word} sc1")
            e("s_nop 1")
        e("s_mov_b64 exec, -1")
        nstamp[0] = 0
        return
    e(f"s_lshl_b32 s30, s{S_WG}, 3")
    e(f"s_add_u32 s30, s30, s{S_WAVE}")
    e("s_lshl_b32 s30, s30, 6")
    e(f"s_add_u32 s30, s30, {TSOFF}")
    e("s_mov_b64 exec, 1")
    e(f"v_mov_b32 v{vtmp0}, 0")
    for i in range(n):
        e(f"v_mov_b32 v{vtmp1}, s{S_STAMP0+i}")
        e(f"buffer_store_dword v{vtmp1}, v{vtmp0}, {srd(SRD_WS)}, s30 offen offset:{4*i}")
        e("s_nop 1")
    e("s_mov_b64 exec, -1")
    nstamp[0] = 0

NTF = " nt" if cfg.NT else ""

LOG2E = 0x3fb8aa3b
SCALE = 0x3db504f3

L.append(f"; @launch grid=(256,1,1) block=(512,1,1) lds={LDS_BYTES}")
L.append('.amdgcn_target "amdgcn-amd-amdhsa--gfx950"')
L.append(".text")
L.append(f".globl {KNAME}")
L.append(".p2align 8")
L.append(f".type {KNAME},@function")
lab(KNAME)
e(f"s_cmp_ge_u32 s{S_WG}, 256")
e("s_cbranch_scc1 L_end")
if cfg.DIAG == 3:
    e("s_memrealtime s[100:101]")
e("s_load_dwordx16 s[32:47], s[0:1], 0")
e("s_load_dwordx8 s[48:55], s[0:1], 64")
e("v_lshrrev_b32 v1, 6, v0")
e("v_and_b32 v0, 63, v0")
e(f"v_readfirstlane_b32 s{S_WAVE}, v1")
e(f"s_mov_b32 s{S_SPIN}, {cfg.SPIN}")
e("s_waitcnt lgkmcnt(0)")
def mk_srd(b, plo, nbytes):
    e(f"s_mov_b32 s{b}, s{plo}")
    e(f"s_mov_b32 s{b+1}, s{plo+1}")
    e(f"s_mov_b32 s{b+2}, {nbytes}")
    e(f"s_mov_b32 s{b+3}, 0x00020000")
mk_srd(SRD_X, 32, 4096)
mk_srd(SRD_K, 34, 0x4000000)
mk_srd(SRD_V, 36, 0x4000000)
mk_srd(SRD_WQ, 38, 0x800000)
mk_srd(SRD_WO, 40, 0x800000)
e(f"s_cmp_ge_u32 s{S_WG}, 112")
e(f"s_cselect_b32 s{SRD_GU}, s46, s44")
e(f"s_cselect_b32 s{SRD_GU+1}, s47, s45")
e(f"s_cmp_lt_u32 s{S_WG}, 224")
e(f"s_cselect_b32 s{SRD_GU+2}, 0x700000, 0")
e(f"s_mov_b32 s{SRD_GU+3}, 0x00020000")
mk_srd(SRD_WD, 48, 0x700000)
e(f"s_cmp_ge_u32 s{S_WG}, 32")
e(f"s_cselect_b32 s{SRD_WD+2}, 0x700000, 0")
mk_srd(SRD_OUT, 50, 4096)
mk_srd(SRD_DBG, 52, 256)
mk_srd(SRD_WS, 54, WS_BYTES)
e(f"s_add_u32 s{SRD_FP}, s54, {FPART}")
e(f"s_addc_u32 s{SRD_FP+1}, s55, 0")
e(f"s_mov_b32 s{SRD_FP+2}, {112*8192}")
e(f"s_mov_b32 s{SRD_FP+3}, 0x00020000")
e(f"s_cmp_ge_u32 s{S_WAVE}, 4")
e("s_cbranch_scc1 L_helper")

c("================ stream waves ================")
V_L = 0
V_G, V_I, V_T0, V_T1, V_T2, V_T3 = 1, 2, 3, 4, 5, 6
V_CV = 7
V_OWQ = 9
V_OGU = 11
V_OW2 = 13
V_OV = 15
V_OK = 17
V_KA = 21
V_VA = 25
V_XB = 33
V_RED = 34
V_ST = 35
V_MX = 36
V_LS = 37
V_MC = 38
V_T4 = 39
V_B = 40
V_A = 56
V_O = 88
NKU = cfg.NS
V_S = 120
V_X = V_S + 8*NKU
V_X2 = V_X + 32
V_CL = V_X2 + 32
V_AL = V_CL + 1
NV_STREAM = (V_CL + 6 + 7) // 8 * 8
assert NV_STREAM <= 256
POOL = (8 - cfg.NS) * 32
S_DYN = 18
S_GB = 24
S_CNT = 25

outstanding = []
def vm_issue(tag): outstanding.append(tag)
def vm_wait(tag):
    if tag not in outstanding:
        return
    idx = max(i for i, t in enumerate(outstanding) if t == tag)
    n = len(outstanding) - 1 - idx
    assert n <= 63
    e(f"s_waitcnt vmcnt({n})")
    del outstanding[:idx + 1]

e(f"v_lshrrev_b32 v{V_G}, 4, v{V_L}")
e(f"v_and_b32 v{V_I}, 15, v{V_L}")
e(f"s_mul_i32 s{S_WB}, s{S_WAVE}, {R*8192}")
e(f"s_add_u32 s{S_WB}, s{S_WB}, {RING}")
e(f"v_lshlrev_b32 v{V_T0}, 1, v{V_G}")
e(f"v_xor_b32 v{V_T0}, v{V_T0}, v{V_I}")
e(f"v_lshlrev_b32 v{V_CV}, 4, v{V_T0}")
e(f"v_xor_b32 v{V_CV+1}, 0x80, v{V_CV}")
def mk_off(dst, rs):
    e(f"v_mul_u32_u24 v{V_T0}, {rs}, v{V_G}")
    e(f"v_add_u32 v{dst}, v{V_T0}, v{V_CV}")
    e(f"v_add_u32 v{dst+1}, v{V_T0}, v{V_CV+1}")
mk_off(V_OWQ, 8192)
e(f"s_and_b32 s{S_T0}, s{S_WG}, 7")
e(f"s_lshl_b32 s{S_T0}, s{S_T0}, 2")
e(f"s_add_u32 s{S_T0}, s{S_T0}, s{S_WAVE}")
e(f"s_lshl_b32 s{S_BQ}, s{S_T0}, 18")
e(f"s_lshl_b32 s{S_T4}, s{S_T0}, 6")
e(f"s_lshr_b32 s{S_T1}, s{S_WG}, 3")
e(f"s_lshl_b32 s{S_T1}, s{S_T1}, 8")
e(f"s_add_u32 s{S_BQ}, s{S_BQ}, s{S_T1}")

def half_throttle():
    if cfg.DH > 0:
        keep = (cfg.DH - 1) * 4
        if len(outstanding) > keep:
            e(f"s_waitcnt vmcnt({keep})")
            del outstanding[:len(outstanding) - keep]
def dma_w(u, srd_b, sbase, extra, rs, voff):
    slot = u % R
    for jj in range(8):
        if jj % 4 == 0:
            half_throttle()
            e(f"s_add_u32 m0, s{S_WB}, {slot*8192 + (jj//4)*4096}")
        e(f"s_add_u32 s{S_T3}, s{sbase}, {extra + jj*4*rs - (jj&3)*1024}")
        e(f"buffer_load_dwordx4 v{voff + (jj&1)}, {srd(srd_b)}, s{S_T3} offen offset:{(jj&3)*1024}{NTF} lds")
        vm_issue(u)

def dma_kv(u, is_k, idx):
    slot = u % R
    for half in range(2):
        half_throttle()
        e(f"s_add_u32 m0, s{S_WB}, {slot*8192 + half*4096}")
        if idx < cfg.NS:
            e(f"s_add_u32 s{S_T3}, s{S_BKV}, {idx*KVSTRIDE + half*4096}")
        else:
            e(f"s_add_u32 s{S_T3}, s{S_DYN}, {half*4096}")
        for j4 in range(4):
            if is_k:
                e(f"buffer_load_dwordx4 v{V_OK + j4}, {srd(SRD_K)}, s{S_T3} offen offset:{j4*1024}{NTF} lds")
            else:
                e(f"buffer_load_dwordx4 v{V_OV + (j4&1)}, {srd(SRD_V)}, s{S_T3} offen offset:{j4*1024}{NTF} lds")
            vm_issue(u)

U_K0 = 3
U_V0 = U_K0 + NKU
U_VL = U_V0 + NKU - 1
NUNITS = U_VL + 1
SLOT_B = U_VL % R
SLOT_A = (SLOT_B + 1) % R
U_KD = U_VL + 1
U_WD = U_VL + 2
U_WO = U_VL + 3
U_VD = U_VL + 4
def claim():
    e(f"v_mov_b32 v{V_CL}, 1")
    e(f"v_mov_b32 v{V_CL+2}, 0")
    e("s_mov_b64 exec, 1")
    e(f"buffer_atomic_add v{V_CL}, v{V_CL+2}, {srd(SRD_WS)}, s{S_CNT} offen sc0 sc1")
    e("s_mov_b64 exec, -1")
    vm_issue("cl")
def issue_unit(u):
    if u >= NUNITS:
        return
    dd = cfg.D2 if (cfg.D2 and u >= cfg.U2) else cfg.D
    if (u - dd) in outstanding:
        vm_wait(u - dd)
    if u == 0:
        dma_w(u, SRD_WQ, S_BQ, 0, 8192, V_OWQ)
    elif u in (1, 2):
        dma_w(u, SRD_GU, S_BG, (u - 1) * 32 * 7168, 7168, V_OGU)
    elif u < U_V0:
        dma_kv(u, True, u - U_K0)
    else:
        dma_kv(u, False, u - U_V0)
        if u == U_VL:
            claim()

issue_unit(0)
mk_off(V_OGU, 7168)
e(f"s_and_b32 s{S_T0}, s{S_WG}, 3")
e(f"s_lshl_b32 s{S_T0}, s{S_T0}, 2")
e(f"s_add_u32 s{S_T0}, s{S_T0}, s{S_WAVE}")
e(f"s_mul_i32 s{S_BG}, s{S_T0}, {64*7168}")
e(f"s_lshl_b32 s{S_T2}, s{S_T0}, 7")
e(f"s_lshr_b32 s{S_T1}, s{S_WG}, 2")
e(f"s_cmp_ge_u32 s{S_T1}, 28")
e(f"s_cselect_b32 s{S_T0}, 28, 0")
e(f"s_sub_u32 s{S_T1}, s{S_T1}, s{S_T0}")
e(f"s_lshl_b32 s{S_T1}, s{S_T1}, 8")
e(f"s_add_u32 s{S_BG}, s{S_BG}, s{S_T1}")
S_XG = S_T2
S_XQ = S_T4
issue_unit(1)
if cfg.PAT == 0:
    e(f"s_lshl_b32 s{S_BKV}, s{S_WG}, 18")
    e(f"s_lshl_b32 s{S_T0}, s{S_WAVE}, 16")
    e(f"s_add_u32 s{S_BKV}, s{S_BKV}, s{S_T0}")
    KVSTRIDE = 8192
elif cfg.PAT == 1:
    e(f"s_lshl_b32 s{S_BKV}, s{S_WG}, 18")
    e(f"s_lshl_b32 s{S_T0}, s{S_WAVE}, 13")
    e(f"s_add_u32 s{S_BKV}, s{S_BKV}, s{S_T0}")
    KVSTRIDE = 32768
else:
    e(f"s_lshr_b32 s{S_BKV}, s{S_WG}, 5")
    e(f"s_lshl_b32 s{S_BKV}, s{S_BKV}, 23")
    e(f"s_and_b32 s{S_T0}, s{S_WG}, 31")
    e(f"s_lshl_b32 s{S_T0}, s{S_T0}, 2")
    e(f"s_add_u32 s{S_T0}, s{S_T0}, s{S_WAVE}")
    e(f"s_lshl_b32 s{S_T0}, s{S_T0}, 13")
    e(f"s_add_u32 s{S_BKV}, s{S_BKV}, s{S_T0}")
    KVSTRIDE = 1 << 20
e(f"s_lshr_b32 s{S_GB}, s{S_WG}, 5")
e(f"s_lshl_b32 s{S_GB}, s{S_GB}, 23")
e(f"s_lshr_b32 s{S_T0}, s{S_WG}, 3")
e(f"s_lshl_b32 s{S_CNT}, s{S_T0}, 7")
e(f"s_add_u32 s{S_CNT}, s{S_CNT}, {CNT}")
e(f"s_and_b32 s{S_T0}, s{S_T0}, 3")
e(f"s_mul_i32 s{S_T0}, s{S_T0}, {POOL*8192}")
e(f"s_add_u32 s{S_GB}, s{S_GB}, s{S_T0}")
e(f"s_add_u32 s{S_GB}, s{S_GB}, {cfg.NS*128*8192}")
assert cfg.PAT == 2
e(f"v_xor_b32 v{V_T0}, v{V_I}, v{V_G}")
e(f"v_lshlrev_b32 v{V_T1}, 8, v{V_G}")
for j4 in range(4):
    e(f"v_xor_b32 v{V_T2}, {4*j4}, v{V_T0}")
    e(f"v_lshl_add_u32 v{V_OK+j4}, v{V_T2}, 4, v{V_T1}")
mk_off(V_OV, 256)
mk_off(V_OW2, 2048)
e(f"s_max_u32 s{S_T0}, s{S_WG}, 32")
e(f"s_sub_u32 s{S_T0}, s{S_T0}, 32")
def mk_base2(dst, src):
    e(f"s_lshr_b32 s{S_T1}, s{src}, 1")
    e(f"s_lshl_b32 s{dst}, s{S_T1}, 16")
    e(f"s_and_b32 s{S_T1}, s{src}, 1")
    e(f"s_lshl_b32 s{S_T1}, s{S_T1}, 10")
    e(f"s_add_u32 s{dst}, s{dst}, s{S_T1}")
    e(f"s_lshl_b32 s{S_T1}, s{S_WAVE}, 8")
    e(f"s_add_u32 s{dst}, s{dst}, s{S_T1}")
mk_base2(S_BD, S_T0)
mk_base2(S_BO, S_WG)
e(f"v_xor_b32 v{V_T0}, v{V_I}, v{V_G}")
e(f"v_lshlrev_b32 v{V_T1}, 8, v{V_I}")
e(f"v_add_u32 v{V_T1}, s{S_WB}, v{V_T1}")
for ks in range(4):
    e(f"v_xor_b32 v{V_T2}, {4*ks}, v{V_T0}")
    e(f"v_lshl_add_u32 v{V_KA+ks}, v{V_T2}, 4, v{V_T1}")
e(f"v_lshrrev_b32 v{V_T0}, 2, v{V_L}")
e(f"v_lshlrev_b32 v{V_T1}, 8, v{V_T0}")
e(f"v_add_u32 v{V_T1}, s{S_WB}, v{V_T1}")
e(f"v_and_b32 v{V_T2}, 3, v{V_L}")
e(f"v_lshl_add_u32 v{V_T1}, v{V_T2}, 3, v{V_T1}")
e(f"v_and_b32 v{V_T0}, 7, v{V_T0}")
for t in range(8):
    e(f"v_xor_b32 v{V_T2}, {t}, v{V_T0}")
    e(f"v_lshl_add_u32 v{V_VA+t}, v{V_T2}, 5, v{V_T1}")
e(f"v_and_b32 v{V_T0}, 1, v{V_I}")
e(f"v_lshlrev_b32 v{V_T1}, 3, v{V_G}")
e(f"v_lshl_add_u32 v{V_XB}, v{V_T0}, 11, v{V_T1}")
e(f"v_lshlrev_b32 v{V_T1}, 4, v{V_G}")
e(f"v_lshl_add_u32 v{V_RED}, v{V_I}, 9, v{V_T1}")
e(f"v_lshlrev_b32 v{V_T1}, 4, v{V_I}")
e(f"v_lshl_add_u32 v{V_ST}, v{V_G}, 12, v{V_T1}")

def mask(m):
    e(f"s_mov_b32 exec_lo, {m & 0xffffffff:#x}")
    e(f"s_mov_b32 exec_hi, {(m >> 32) & 0xffffffff:#x}")
M_N2 = 0x0003000300030003
M_N8 = 0x00FF00FF00FF00FF

def gemv_unit(u, first, nxt=True):
    slot = u % R
    vm_wait(u)
    for t in range(8):
        e(f"ds_read_b64_tr_b16 v[{V_A+4*t}:{V_A+4*t+1}], v{V_VA+t} offset:{slot*8192}")
        e(f"ds_read_b64_tr_b16 v[{V_A+4*t+2}:{V_A+4*t+3}], v{V_VA+t} offset:{slot*8192+4096}")
        if t == 3:
            pass
    for t in range(8):
        if t % 2 == 0:
            e(f"s_waitcnt lgkmcnt({16 - 2*t - 4})")
        cc = "0" if first else f"v[{V_O+4*t}:{V_O+4*t+3}]"
        e(f"v_mfma_f32_16x16x32_bf16 v[{V_O+4*t}:{V_O+4*t+3}], v[{V_A+4*t}:{V_A+4*t+3}], v[{V_B}:{V_B+3}], {cc}")
    if nxt:
        issue_unit(u + R)

def read_b(vaddr_s, base):
    pass

for u in range(2, cfg.D):
    issue_unit(u)
nxt_issue = [max(2, cfg.D)]
def pump(upto):
    while nxt_issue[0] <= upto:
        issue_unit(nxt_issue[0]); nxt_issue[0] += 1
stamp(2)
e("s_barrier")
c("---- q-proj unit ----")
e(f"v_add_u32 v{V_T3}, s{S_XQ}, v{V_XB}")
e(f"ds_read_b64 v[{V_B}:{V_B+1}], v{V_T3} offset:{XN}")
e(f"ds_read_b64 v[{V_B+2}:{V_B+3}], v{V_T3} offset:{XN+32}")
e(f"v_add_u32 v{V_T3}, s{S_XG}, v{V_XB}")
e(f"ds_read_b64 v[{V_B+4}:{V_B+5}], v{V_T3} offset:{XN}")
e(f"ds_read_b64 v[{V_B+6}:{V_B+7}], v{V_T3} offset:{XN+32}")
e(f"ds_read_b64 v[{V_B+8}:{V_B+9}], v{V_T3} offset:{XN+64}")
e(f"ds_read_b64 v[{V_B+10}:{V_B+11}], v{V_T3} offset:{XN+96}")
e("s_waitcnt lgkmcnt(0)")
gemv_unit(0, True, nxt=False)
e(f"s_lshl_b32 s{S_T0}, s{S_WAVE}, 10")
e(f"v_add_u32 v{V_T3}, s{S_T0}, v{V_RED}")
e("s_nop 7")
mask(M_N2)
for t in range(8):
    e(f"ds_write_b128 v{V_T3}, v[{V_O+4*t}:{V_O+4*t+3}] offset:{REDQ + t*64}")
e("s_mov_b64 exec, -1")
e("s_waitcnt lgkmcnt(0)")
stamp()
e("s_barrier")
pump(cfg.D)
c("---- gate/up units ----")
for k in range(4):
    e(f"v_mov_b32 v{V_B+k}, v{V_B+4+k}")
e("s_nop 1")
gemv_unit(1, True, nxt=False)
pump(1 + cfg.D)
e("s_nop 7")
for k in range(4):
    e(f"v_mov_b32 v{V_B+k}, v{V_B+8+k}")
e("s_nop 1")
gemv_unit(2, False, nxt=False)
e("s_nop 7")
mask(M_N2)
for t in range(8):
    e(f"ds_write_b128 v{V_T3}, v[{V_O+4*t}:{V_O+4*t+3}] offset:{REDG + t*64}")
e("s_mov_b64 exec, -1")
e("s_waitcnt lgkmcnt(0)")
e("s_barrier")
pump(2 + R)
PARK = [V_O, V_X, V_X2, V_A][:cfg.NP]
def k_frags(u, base):
    slot = u % R
    vm_wait(u)
    for tile in range(2):
        for ks in range(4):
            a = base + 16*tile + 4*ks
            e(f"ds_read_b128 v[{a}:{a+3}], v{V_KA+ks} offset:{slot*8192 + tile*4096}")
for ku in range(cfg.NP):
    k_frags(3 + ku, PARK[ku])
    e("s_waitcnt lgkmcnt(0)")
    pump(3 + ku + R)
stamp()
e("s_barrier")
stamp(2)
c("---- load q fragments ----")
e(f"v_and_b32 v{V_T0}, 7, v{V_I}")
e(f"v_lshlrev_b32 v{V_T1}, 4, v{V_G}")
e(f"v_lshl_add_u32 v{V_T0}, v{V_T0}, 8, v{V_T1}")
for ks in range(4):
    e(f"ds_read_b128 v[{V_B+4*ks}:{V_B+4*ks+3}], v{V_T0} offset:{QL + ks*64}")
e(f"s_mov_b32 s{S_T0}, {SCALE:#x}")
e(f"s_mov_b32 s{S_T1}, 0xffff0000")
e(f"v_mov_b32 v{V_MX}, 0xff800000")
e("s_waitcnt lgkmcnt(0)")

def score_post(base):
    for h in range(2):
        a, b = base + 2*h, base + 2*h + 1
        e(f"v_cvt_pk_bf16_f32 v{V_T2}, v{a}, v{b}")
        e(f"v_lshlrev_b32 v{a}, 16, v{V_T2}")
        e(f"v_and_b32 v{b}, s{S_T1}, v{V_T2}")
        e(f"v_mul_f32 v{a}, s{S_T0}, v{a}")
        e(f"v_mul_f32 v{b}, s{S_T0}, v{b}")
        e(f"v_cvt_pk_bf16_f32 v{V_T2}, v{a}, v{b}")
        e(f"v_lshlrev_b32 v{a}, 16, v{V_T2}")
        e(f"v_and_b32 v{b}, s{S_T1}, v{V_T2}")
        e(f"v_max3_f32 v{V_MX}, v{a}, v{b}, v{V_MX}")

c("---- K phase ----")
def k_mfma(base, d0, wait):
    for tile in range(2):
        d = d0 + tile * 4
        if wait:
            e(f"s_waitcnt lgkmcnt({4 - 4*tile})")
        for ks in range(4):
            a = base + 16*tile + 4*ks
            cc = "0" if ks == 0 else f"v[{d}:{d+3}]"
            e(f"v_mfma_f32_16x16x32_bf16 v[{d}:{d+3}], v[{a}:{a+3}], v[{V_B+4*ks}:{V_B+4*ks+3}], {cc}")
for ku in range(NKU):
    u = 3 + ku
    parked = ku < cfg.NP
    base = PARK[ku] if parked else V_A
    if not parked:
        k_frags(u, V_A)
    k_mfma(base, V_S + 8*ku, not parked)
    if not parked:
        pump(u + R)
    e("s_nop 7")
    score_post(V_S + (2*ku) * 4)
    score_post(V_S + (2*ku + 1) * 4)
stamp(2)
c("---- softmax ----")
def xswap(op, v, tmp):
    e(f"v_mov_b32 v{tmp}, v{v}")
    e("s_nop 1")
    e(f"v_permlane16_swap_b32 v{v}, v{tmp}")
    e(f"{op} v{v}, v{v}, v{tmp}")
    e(f"v_mov_b32 v{tmp}, v{v}")
    e("s_nop 1")
    e(f"v_permlane32_swap_b32 v{v}, v{tmp}")
    e(f"{op} v{v}, v{v}, v{tmp}")
xswap("v_max_f32", V_MX, V_T2)
e(f"s_mov_b32 s{S_T2}, {LOG2E:#x}")
e(f"v_mul_f32 v{V_MC}, s{S_T2}, v{V_MX}")
e(f"v_mov_b32 v{V_LS}, 0")
e(f"v_mov_b32 v{V_T4}, 0")
def exp_block(r0, n):
    for r in range(r0, r0 + n, 2):
        a, b = V_S + r, V_S + r + 1
        e(f"v_fma_f32 v{a}, v{a}, s{S_T2}, -v{V_MC}")
        e(f"v_fma_f32 v{b}, v{b}, s{S_T2}, -v{V_MC}")
        e(f"v_exp_f32 v{a}, v{a}")
        e(f"v_exp_f32 v{b}, v{b}")
        e("s_nop 0")
        e(f"v_add_f32 v{V_LS}, v{V_LS}, v{a}")
        e(f"v_add_f32 v{V_T4}, v{V_T4}, v{b}")
        e(f"v_cvt_pk_bf16_f32 v{V_S + (r//8)*8 + (r%8)//2}, v{a}, v{b}")
exp_block(0, 8*NKU)
e(f"v_add_f32 v{V_LS}, v{V_LS}, v{V_T4}")
stamp()
c("---- V phase ----")
def v_consume(slot, preg, first):
    for t in range(8):
        e(f"ds_read_b64_tr_b16 v[{V_A+4*t}:{V_A+4*t+1}], v{V_VA+t} offset:{slot*8192}")
        e(f"ds_read_b64_tr_b16 v[{V_A+4*t+2}:{V_A+4*t+3}], v{V_VA+t} offset:{slot*8192+4096}")
    for t in range(8):
        if t % 2 == 0:
            e(f"s_waitcnt lgkmcnt({16 - 2*t - 4})")
        cc = "0" if first else f"v[{V_O+4*t}:{V_O+4*t+3}]"
        e(f"v_mfma_f32_16x16x32_bf16 v[{V_O+4*t}:{V_O+4*t+3}], v[{V_A+4*t}:{V_A+4*t+3}], v[{preg}:{preg+3}], {cc}")
for vu in range(NKU - 1):
    u = U_V0 + vu
    vm_wait(u)
    v_consume(u % R, V_S + 8*vu, vu == 0)
    pump(u + R)
    stamp(1)
assert outstanding == [U_VL]*8 + ["cl"], outstanding
PD = V_S + 8*(NKU - 1)
e("s_waitcnt vmcnt(1)")
v_consume(SLOT_B, PD, False)
lab("L_dyn")
e("s_waitcnt vmcnt(0)")
del outstanding[:]
e(f"v_readfirstlane_b32 s{S_T3}, v{V_CL}")
e(f"s_add_u32 s{S_T3}, s{S_T3}, 1")
e(f"s_cmp_ge_u32 s{S_T3}, {POOL}")
e("s_cbranch_scc1 L_dyn_exit")
e(f"s_lshl_b32 s{S_T3}, s{S_T3}, 13")
e(f"s_add_u32 s{S_DYN}, s{S_T3}, s{S_GB}")
dma_kv(U_KD, True, 99)
dma_kv(U_VD, False, 99)
e("s_waitcnt vmcnt(8)")
claim()
del outstanding[:]
for tile in range(2):
    for ks in range(4):
        a = V_A + 16*tile + 4*ks
        e(f"ds_read_b128 v[{a}:{a+3}], v{V_KA+ks} offset:{SLOT_A*8192 + tile*4096}")
k_mfma(V_A, PD, True)
e("s_nop 7")
score_post(PD)
score_post(PD + 4)
xswap("v_max_f32", V_MX, V_T2)
e(f"v_mul_f32 v{V_T4}, s{S_T2}, v{V_MX}")
e(f"v_sub_f32 v{V_AL}, v{V_MC}, v{V_T4}")
e(f"v_exp_f32 v{V_AL}, v{V_AL}")
e(f"v_mov_b32 v{V_MC}, v{V_T4}")
e(f"v_mov_b32 v{V_T4}, 0")
e(f"v_mul_f32 v{V_LS}, v{V_LS}, v{V_AL}")
for r in range(32):
    e(f"v_mul_f32 v{V_O+r}, v{V_O+r}, v{V_AL}")
exp_block(8*(NKU - 1), 8)
e(f"v_add_f32 v{V_LS}, v{V_LS}, v{V_T4}")
e("s_waitcnt vmcnt(1)")
v_consume(SLOT_B, PD, False)
e("s_branch L_dyn")
lab("L_dyn_exit")
dma_w(U_WD, SRD_WD, S_BD, 0, 2048, V_OW2)
dma_w(U_WO, SRD_WO, S_BO, 0, 2048, V_OW2)
xswap("v_add_f32", V_LS, V_T2)
c("---- write attention partial to LDS ----")
e(f"s_lshl_b32 s{S_T0}, s{S_WAVE}, 12")
e(f"v_add_u32 v{V_T3}, s{S_T0}, v{V_RED}")
e(f"s_lshl_b32 s{S_T0}, s{S_WAVE}, 3")
e(f"v_lshlrev_b32 v{V_T2}, 5, v{V_I}")
e(f"v_add_u32 v{V_T2}, s{S_T0}, v{V_T2}")
e(f"v_mov_b32 v{V_MX+1}, v{V_LS}") if V_LS != V_MX + 1 else None
e("s_nop 7")
mask(M_N8)
for t in range(8):
    e(f"ds_write_b128 v{V_T3}, v[{V_O+4*t}:{V_O+4*t+3}] offset:{AO + t*64}")
mask(0xFF)
e(f"ds_write_b64 v{V_T2}, v[{V_MX}:{V_MX+1}] offset:{AMLL}")
e("s_mov_b64 exec, -1")
e("s_waitcnt lgkmcnt(0)")
stamp()
e("s_barrier")
c("---- down-proj unit ----")
e(f"v_and_b32 v{V_T0}, 1, v{V_I}")
e(f"v_lshlrev_b32 v{V_T1}, 3, v{V_G}")
e(f"v_lshl_add_u32 v{V_T3}, v{V_T0}, 6, v{V_T1}")
e(f"ds_read_b64 v[{V_B}:{V_B+1}], v{V_T3} offset:{HL}")
e(f"ds_read_b64 v[{V_B+2}:{V_B+3}], v{V_T3} offset:{HL+32}")
e("s_waitcnt lgkmcnt(0)")
gemv_unit(U_WD, True, nxt=False)
def store_part(sb, region, oob_lt32):
    e("s_nop 7")
    for r in range(32):
        e(f"v_min_u32 v{V_O+r}, 0xfffffffe, v{V_O+r}")
    e(f"s_lshr_b32 s{S_T0}, s{sb}, 16")
    e(f"s_lshl_b32 s{S_T0}, s{S_T0}, 5")
    e(f"s_and_b32 s{S_T1}, s{sb}, 0xffff")
    e(f"s_lshl_b32 s{S_T1}, s{S_T1}, 9")
    e(f"s_add_u32 s{S_T0}, s{S_T0}, s{S_T1}")
    e(f"s_add_u32 s{S_T0}, s{S_T0}, {region}")
    if oob_lt32:
        e(f"s_cmp_lt_u32 s{S_WG}, 32")
        e(f"s_cselect_b32 s{S_T0}, 0x40000000, s{S_T0}")
    mask(M_N2)
    for t in range(8):
        e(f"buffer_store_dwordx4 v[{V_O+4*t}:{V_O+4*t+3}], v{V_ST}, {srd(SRD_WS)}, s{S_T0} offen sc1")
        vm_issue("st")
        if t < 7:
            e(f"s_add_u32 s{S_T0}, s{S_T0}, 16384")
    e("s_mov_b64 exec, -1")
store_part(S_BD, FPART, True)
stamp()
e("s_barrier")
stamp()
c("---- wo unit ----")
e(f"v_and_b32 v{V_T0}, 1, v{V_I}")
e(f"v_lshlrev_b32 v{V_T1}, 3, v{V_G}")
e(f"v_lshl_add_u32 v{V_T3}, v{V_T0}, 6, v{V_T1}")
e(f"ds_read_b64 v[{V_B}:{V_B+1}], v{V_T3} offset:{OL}")
e(f"ds_read_b64 v[{V_B+2}:{V_B+3}], v{V_T3} offset:{OL+32}")
e("s_waitcnt lgkmcnt(0)")
gemv_unit(U_WO, True, nxt=False)
stamp()
store_part(S_BO, SPART, False)
stamp()
if cfg.DIAG:
    e("s_waitcnt vmcnt(0)")
stamp()
stamp_flush(V_T0, V_T1, [(0,4,1),(0,5,0),(3,6,0),(4,7,0),(6,8,1),(6,9,0),(8,10,0),(11,11,0)])
e("s_endpgm")

in_stream[0] = False
lab("L_helper")
if cfg.PRIO:
    e(f"s_setprio {cfg.PRIO}")
c("================ helper waves ================")
S_HW = 4
H_T = 1
H_A, H_B, H_C, H_D, H_E = 2, 3, 4, 5, 6
H_XF = 8
H_NEG = 12
H_X = 16
H_R = 32
e(f"s_sub_u32 s{S_HW}, s{S_WAVE}, 4")
e(f"s_and_b32 s{S_T0}, s{S_HW}, 1")
e(f"s_lshl_b32 s{S_T1}, s{S_T0}, 11")
e(f"v_lshlrev_b32 v{H_A}, 5, v0")
e(f"buffer_load_dwordx4 v[{H_R}:{H_R+3}], v{H_A}, {srd(SRD_X)}, s{S_T1} offen")
e(f"buffer_load_dwordx4 v[{H_R+4}:{H_R+7}], v{H_A}, {srd(SRD_X)}, s{S_T1} offen offset:16")
e(f"s_lshl_b32 s{S_T2}, s{S_WG}, 3")
e(f"v_and_b32 v{H_B}, 1, v0")
e(f"v_lshlrev_b32 v{H_B}, 11, v{H_B}")
e(f"buffer_load_dwordx2 v[{H_XF}:{H_XF+1}], v{H_B}, {srd(SRD_X)}, s{S_T2} offen")
e(f"s_lshl_b32 s{S_T2}, s{S_HW}, 6")
e(f"v_add_u32 v{H_T}, s{S_T2}, v0")
for k in range(4):
    e(f"v_mov_b32 v{H_NEG+k}, -1")
e(f"v_mov_b32 v{H_C}, 0")
e(f"v_lshlrev_b32 v{H_D}, 2, v0")
e(f"v_and_b32 v{H_D}, 63, v{H_D}")
e(f"ds_write_b32 v{H_D}, v{H_C} offset:{FLG}")
if cfg.TLB:
    c("page pre-touch (helper 3)")
    e(f"s_cmp_lg_u32 s{S_HW}, 3")
    e("s_cbranch_scc1 L_h_notlb")
    e(f"v_lshlrev_b32 v{H_C}, {cfg.TLB}, v0")
    per = 64 << cfg.TLB
    k = 0
    for sr, nb in ((SRD_WQ, 8<<20), (SRD_GU, 7<<20), (SRD_K, 64<<20), (SRD_V, 64<<20), (SRD_WD, 7<<20), (SRD_WO, 8<<20), (SRD_WS, WS_BYTES)):
        for off in range(0, nb, per):
            e(f"s_mov_b32 s{S_T2}, {off}")
            e(f"buffer_load_dword v{H_R+16+(k%16)}, v{H_C}, {srd(sr)}, s{S_T2} offen")
            k += 1
    lab("L_h_notlb")
c("bootstrap: WG 0 clears the flag area, then raises d_debug[0]")
e(f"v_lshlrev_b32 v{H_B}, 4, v{H_T}")
e(f"s_cmp_lg_u32 s{S_WG}, 0")
e("s_cbranch_scc1 L_h_noboot")
for k in range(4):
    e(f"s_mov_b32 s{S_T2}, {QFLAG + k*4096}")
    e(f"buffer_store_dwordx4 v[{H_NEG}:{H_NEG+3}], v{H_B}, {srd(SRD_WS)}, s{S_T2} offen sc1")
e("s_waitcnt vmcnt(0)")
e(f"s_lshl_b32 s{S_T2}, s{S_HW}, 2")
e(f"v_mov_b32 v{H_C}, 1")
e(f"v_mov_b32 v{H_D}, 0")
e("s_mov_b64 exec, 1")
e(f"buffer_store_dword v{H_C}, v{H_D}, {srd(SRD_DBG)}, s{S_T2} offen sc1")
e("s_mov_b64 exec, -1")
lab("L_h_noboot")
c("clear sentinels")
e(f"v_lshlrev_b32 v{H_B}, 4, v{H_T}")
e(f"s_lshl_b32 s{S_T2}, s{S_WG}, 12")
e(f"s_add_u32 s{S_T2}, s{S_T2}, {APART}")
e(f"buffer_store_dwordx4 v[{H_NEG}:{H_NEG+3}], v{H_B}, {srd(SRD_WS)}, s{S_T2} offen sc1")
e(f"s_lshl_b32 s{S_T2}, s{S_WG}, 12")
e(f"s_add_u32 s{S_T3}, s{S_T2}, {SPART}")
e(f"buffer_store_dwordx4 v[{H_NEG}:{H_NEG+3}], v{H_B}, {srd(SRD_WS)}, s{S_T3} offen sc1")
e(f"v_cmp_gt_u32 vcc, 224, v{H_T}")
e("s_nop 1")
for k in range(4):
    e(f"v_cndmask_b32 v{H_X+k}, 0, v{H_NEG}, vcc")
e(f"s_add_u32 s{S_T3}, s{S_T2}, {FPART}")
e(f"buffer_store_dwordx4 v[{H_X}:{H_X+3}], v{H_B}, {srd(SRD_WS)}, s{S_T3} offen sc1")
e(f"s_cmp_lg_u32 s{S_HW}, 0")
e("s_cbranch_scc1 L_h_skipml")
e(f"s_lshr_b32 s{S_T2}, s{S_WG}, 5")
e(f"s_lshl_b32 s{S_T2}, s{S_T2}, 11")
e(f"s_and_b32 s{S_T3}, s{S_WG}, 31")
e(f"s_lshl_b32 s{S_T3}, s{S_T3}, 3")
e(f"s_add_u32 s{S_T2}, s{S_T2}, s{S_T3}")
e(f"s_add_u32 s{S_T2}, s{S_T2}, {AML}")
e(f"v_lshlrev_b32 v{H_C}, 8, v0")
mask(0xFF)
e(f"buffer_store_dwordx2 v[{H_NEG}:{H_NEG+1}], v{H_C}, {srd(SRD_WS)}, s{S_T2} offen sc1")
e("s_mov_b64 exec, -1")
lab("L_h_skipml")

def dpp_reduce(op, regs, tmpbase, full=True):
    for pat in ["quad_perm:[1,0,3,2]", "quad_perm:[2,3,0,1]", "row_half_mirror", "row_mirror"]:
        if len(regs) < 3:
            e("s_nop 1")
        for r in regs:
            e(f"{op}_dpp v{r}, v{r}, v{r} {pat} row_mask:0xf bank_mask:0xf")
    swaps = ["v_permlane16_swap_b32"] + (["v_permlane32_swap_b32"] if full else [])
    for sw in swaps:
        for k, r in enumerate(regs):
            e(f"v_mov_b32 v{tmpbase+k}, v{r}")
        e("s_nop 1")
        for k, r in enumerate(regs):
            e(f"{sw} v{r}, v{tmpbase+k}")
        for k, r in enumerate(regs):
            e(f"{op} v{r}, v{r}, v{tmpbase+k}")

def bf16r(dst, src, tmp):
    e(f"v_cvt_pk_bf16_f32 v{tmp}, v{src}, v{src}")
    e(f"v_lshlrev_b32 v{dst}, 16, v{tmp}")

c("layernorm")
e("s_waitcnt vmcnt(3)")
e(f"s_mov_b32 s{S_T2}, 0xffff0000")
for k in range(8):
    e(f"v_lshlrev_b32 v{H_X+2*k}, 16, v{H_R+k}")
    e(f"v_and_b32 v{H_X+2*k+1}, s{S_T2}, v{H_R+k}")
e(f"v_add_f32 v{H_A}, v{H_X}, v{H_X+1}")
for k in range(2, 16):
    e(f"v_add_f32 v{H_A}, v{H_A}, v{H_X+k}")
dpp_reduce("v_add_f32", [H_A], H_B)
e(f"v_mul_f32 v{H_A}, 0x3a800000, v{H_A}")
e(f"v_mov_b32 v{H_C}, 0")
for k in range(16):
    e(f"v_sub_f32 v{H_D}, v{H_X+k}, v{H_A}")
    e(f"v_fmac_f32 v{H_C}, v{H_D}, v{H_D}")
dpp_reduce("v_add_f32", [H_C], H_B)
e(f"v_mul_f32 v{H_C}, 0x3a800000, v{H_C}")
bf16r(H_A, H_A, H_B)
bf16r(H_C, H_C, H_B)
e(f"v_add_f32 v{H_C}, 0x3727c5ac, v{H_C}")
bf16r(H_C, H_C, H_B)
e(f"v_sqrt_f32 v{H_C}, v{H_C}")
e("s_nop 0")
bf16r(H_C, H_C, H_B)
e(f"v_rcp_f32 v{H_D}, v{H_C}")
e("s_nop 0")
for k in range(0, 16, 2):
    a, b = H_X + k, H_X + k + 1
    e(f"v_sub_f32 v{a}, v{a}, v{H_A}")
    e(f"v_sub_f32 v{b}, v{b}, v{H_A}")
    e(f"v_cvt_pk_bf16_f32 v{H_B}, v{a}, v{b}")
    e(f"v_lshlrev_b32 v{a}, 16, v{H_B}")
    e(f"v_and_b32 v{b}, s{S_T2}, v{H_B}")
    for x in (a, b):
        e(f"v_mul_f32 v{H_E}, v{x}, v{H_D}")
        e(f"v_fma_f32 v{x}, -v{H_E}, v{H_C}, v{x}")
        e(f"v_fma_f32 v{x}, v{x}, v{H_D}, v{H_E}")
    e(f"v_cvt_pk_bf16_f32 v{H_R+k//2}, v{a}, v{b}")
e(f"v_lshlrev_b32 v{H_A}, 5, v0")
e(f"v_add_u32 v{H_A}, s{S_T1}, v{H_A}")
e(f"ds_write_b128 v{H_A}, v[{H_R}:{H_R+3}] offset:{XN}")
e(f"ds_write_b128 v{H_A}, v[{H_R+4}:{H_R+7}] offset:{XN+16}")
e("s_waitcnt lgkmcnt(0)")
stamp()
e("s_barrier")
e("s_barrier")
stamp()

def red_publish(red_off, soff_emit, cnt_off_emit, skip_store_if=None, tag=""):
    e(f"v_lshlrev_b32 v{H_A}, 4, v0")
    for w in range(4):
        e(f"ds_read_b128 v[{H_R+4*w}:{H_R+4*w+3}], v{H_A} offset:{red_off + w*1024}")
    e("s_waitcnt lgkmcnt(0)")
    for k in range(4):
        e(f"v_add_f32 v{H_R+k}, v{H_R+k}, v{H_R+4+k}")
        e(f"v_add_f32 v{H_R+8+k}, v{H_R+8+k}, v{H_R+12+k}")
    for k in range(4):
        e(f"v_add_f32 v{H_R+k}, v{H_R+k}, v{H_R+8+k}")
    soff_emit()
    if skip_store_if:
        skip_store_if("L_skipst" + tag)
    e(f"buffer_store_dwordx4 v[{H_R}:{H_R+3}], v{H_B}, {srd(SRD_WS)}, s{S_T2} offen sc1")
    if skip_store_if:
        lab("L_skipst" + tag)
    e(f"v_mov_b32 v{H_A}, 0")
    lab("L_boot" + tag)
    e(f"buffer_load_dwordx4 v[{H_R+4}:{H_R+7}], v{H_A}, {srd(SRD_DBG)}, 0 offen sc1")
    e("s_waitcnt vmcnt(0)")
    e(f"v_and_b32 v{H_R+4}, v{H_R+4}, v{H_R+5}")
    e(f"v_and_b32 v{H_R+6}, v{H_R+6}, v{H_R+7}")
    e(f"v_and_b32 v{H_R+4}, v{H_R+4}, v{H_R+6}")
    e(f"v_cmp_eq_u32 vcc, 0, v{H_R+4}")
    e(f"s_cbranch_vccz L_bootd{tag}")
    e("s_sleep 8")
    e(f"s_sub_u32 s{S_SPIN}, s{S_SPIN}, 1")
    e(f"s_cmp_lg_u32 s{S_SPIN}, 0")
    e(f"s_cbranch_scc1 L_boot{tag}")
    e(f"s_mov_b32 s{S_SPIN}, 1")
    lab("L_bootd" + tag)
    cnt_off_emit()
    e(f"v_mov_b32 v{H_A}, 0")
    e(f"buffer_store_dword v{H_A}, v{H_B}, {srd(SRD_WS)}, s{S_T2} offen sc1")
    e("s_mov_b64 exec, -1")

c("publish q partial (helper 0)")
e(f"s_cmp_lg_u32 s{S_HW}, 0")
e("s_cbranch_scc1 L_h_noq")
def q_soff():
    e(f"v_and_b32 v{H_B}, 31, v0")
    e(f"v_lshlrev_b32 v{H_B}, 4, v{H_B}")
    e(f"v_lshrrev_b32 v{H_C}, 5, v0")
    e(f"v_lshl_add_u32 v{H_B}, v{H_C}, 14, v{H_B}")
    e(f"s_and_b32 s{S_T2}, s{S_WG}, 7")
    e(f"s_lshl_b32 s{S_T2}, s{S_T2}, 15")
    e(f"s_lshr_b32 s{S_T3}, s{S_WG}, 3")
    e(f"s_lshl_b32 s{S_T3}, s{S_T3}, 9")
    e(f"s_add_u32 s{S_T2}, s{S_T2}, s{S_T3}")
    if QPART:
        e(f"s_add_u32 s{S_T2}, s{S_T2}, {QPART}")
def q_cnt():
    e(f"s_lshl_b32 s{S_T2}, s{S_WG}, 2")
    e(f"s_add_u32 s{S_T2}, s{S_T2}, {QFLAG}")
    e(f"v_lshlrev_b32 v{H_B}, 10, v0")
    mask(0xFF)
red_publish(REDQ, q_soff, q_cnt, None, "q")
e("s_branch L_h_q2")
lab("L_h_noq")
e("s_waitcnt vmcnt(0)")
lab("L_h_q2")
stamp()
e("s_barrier")
c("publish gate/up partial (helper 1)")
e(f"s_cmp_lg_u32 s{S_HW}, 1")
e("s_cbranch_scc1 L_h_nog")
def g_soff():
    e(f"v_and_b32 v{H_B}, 31, v0")
    e(f"v_lshlrev_b32 v{H_B}, 4, v{H_B}")
    e(f"v_lshrrev_b32 v{H_C}, 5, v0")
    e(f"v_mul_u32_u24 v{H_C}, 14336, v{H_C}")
    e(f"v_add_u32 v{H_B}, v{H_C}, v{H_B}")
    e(f"s_lshr_b32 s{S_T3}, s{S_WG}, 2")
    e(f"s_cmp_ge_u32 s{S_T3}, 28")
    e(f"s_cselect_b32 s{S_T2}, 28, 0")
    e(f"s_sub_u32 s{S_T3}, s{S_T3}, s{S_T2}")
    e(f"s_lshr_b32 s{S_T2}, s{S_WG}, 2")
    e(f"s_cmp_ge_u32 s{S_T2}, 28")
    e(f"s_cselect_b32 s{S_T2}, 4, 0")
    e(f"s_and_b32 s{S_T4}, s{S_WG}, 3")
    e(f"s_add_u32 s{S_T2}, s{S_T2}, s{S_T4}")
    e(f"s_mul_i32 s{S_T2}, s{S_T2}, {2*14336}")
    e(f"s_lshl_b32 s{S_T3}, s{S_T3}, 9")
    e(f"s_add_u32 s{S_T2}, s{S_T2}, s{S_T3}")
    e(f"s_add_u32 s{S_T2}, s{S_T2}, {GUPART}")
def g_skip(l):
    e(f"s_cmp_ge_u32 s{S_WG}, 224")
    e(f"s_cbranch_scc1 {l}")
def g_cnt():
    e(f"s_lshl_b32 s{S_T2}, s{S_WG}, 2")
    e(f"s_add_u32 s{S_T2}, s{S_T2}, {HFLAG}")
    e(f"v_lshlrev_b32 v{H_B}, 10, v0")
    mask(0xF)
red_publish(REDG, g_soff, g_cnt, g_skip, "g")
lab("L_h_nog")

def lds_flag_wait(idx, name):
    lab(f"L_{name}_w")
    e(f"v_mov_b32 v{H_A}, 0")
    e(f"ds_read_b32 v{H_B}, v{H_A} offset:{FLG + 4*idx}")
    e("s_waitcnt lgkmcnt(0)")
    e(f"v_readfirstlane_b32 s{S_T2}, v{H_B}")
    e(f"s_cmp_lg_u32 s{S_T2}, 0")
    e(f"s_cbranch_scc1 L_{name}_d")
    e("s_sleep 1")
    e(f"s_sub_u32 s{S_SPIN}, s{S_SPIN}, 1")
    e(f"s_cmp_lg_u32 s{S_SPIN}, 0")
    e(f"s_cbranch_scc1 L_{name}_w")
    e(f"s_mov_b32 s{S_SPIN}, 1")
    e(f"s_branch L_{name}_d")

def lds_flag_set(idx):
    e(f"v_mov_b32 v{H_A}, 0")
    e(f"v_mov_b32 v{H_B}, 1")
    e(f"ds_write_b32 v{H_A}, v{H_B} offset:{FLG + 4*idx}")

c("wait for q counter")
e(f"s_cmp_lg_u32 s{S_HW}, 0")
e("s_cbranch_scc1 L_qf_w")
e(f"s_lshr_b32 s{S_T3}, s{S_WG}, 5")
e(f"s_and_b32 s{S_T3}, s{S_T3}, 3")
e(f"s_lshl_b32 s{S_T3}, s{S_T3}, 8")
e(f"s_and_b32 s{S_T2}, s{S_WG}, 7")
e(f"s_lshl_b32 s{S_T2}, s{S_T2}, 10")
e(f"s_add_u32 s{S_T3}, s{S_T3}, s{S_T2}")
e(f"s_add_u32 s{S_T3}, s{S_T3}, {QFLAG}")
e(f"v_lshlrev_b32 v{H_A}, 2, v0")
lab("L_qpoll")
e(f"buffer_load_dword v{H_B}, v{H_A}, {srd(SRD_WS)}, s{S_T3} offen sc1")
e("s_waitcnt vmcnt(0)")
e(f"v_cmp_eq_u32 vcc, -1, v{H_B}")
e("s_cbranch_vccz L_qpoll_d")
e("s_sleep 4")
e(f"s_sub_u32 s{S_SPIN}, s{S_SPIN}, 1")
e(f"s_cmp_lg_u32 s{S_SPIN}, 0")
e("s_cbranch_scc1 L_qpoll")
e(f"s_mov_b32 s{S_SPIN}, 1")
lab("L_qpoll_d")
lds_flag_set(0)
e("s_branch L_qf_d")
lds_flag_wait(0, "qf")
lab("L_qf_d")
stamp()
c("gather q")
e(f"s_lshr_b32 s{S_T2}, s{S_WG}, 5")
e(f"s_lshl_b32 s{S_T2}, s{S_T2}, 12")
e(f"v_lshlrev_b32 v{H_A}, 4, v{H_T}")
for ks in range(8):
    e(f"s_add_u32 s{S_T3}, s{S_T2}, {QPART + ks*32768}")
    e(f"buffer_load_dwordx4 v[{H_R+4*ks}:{H_R+4*ks+3}], v{H_A}, {srd(SRD_WS)}, s{S_T3} offen sc1")
e("s_waitcnt vmcnt(0)")
for ks in range(1, 8):
    for k in range(4):
        e(f"v_add_f32 v{H_R+k}, v{H_R+k}, v{H_R+4*ks+k}")
e(f"v_cvt_pk_bf16_f32 v{H_R}, v{H_R}, v{H_R+1}")
e(f"v_cvt_pk_bf16_f32 v{H_R+1}, v{H_R+2}, v{H_R+3}")
e(f"v_lshlrev_b32 v{H_A}, 3, v{H_T}")
e(f"ds_write_b64 v{H_A}, v[{H_R}:{H_R+1}] offset:{QL}")
e("s_waitcnt lgkmcnt(0)")
stamp()
e("s_barrier")
c("wait for h counter (helper 0), h gather (helper 1)")
e(f"s_cmp_eq_u32 s{S_HW}, 1")
e("s_cbranch_scc1 L_hf_w")
e(f"s_cmp_lg_u32 s{S_HW}, 0")
e("s_cbranch_scc1 L_h_b5")
e(f"v_lshlrev_b32 v{H_A}, 4, v0")
e(f"s_and_b32 s{S_T2}, s{S_WG}, 3")
e(f"s_lshl_b32 s{S_T2}, s{S_T2}, 10")
e(f"s_add_u32 s{S_T2}, s{S_T2}, {HFLAG}")
lab("L_hpoll")
e(f"buffer_load_dwordx4 v[{H_R}:{H_R+3}], v{H_A}, {srd(SRD_WS)}, s{S_T2} offen sc1")
e("s_waitcnt vmcnt(0)")
e(f"v_max3_u32 v{H_B}, v{H_R}, v{H_R+1}, v{H_R+2}")
e(f"v_max_u32 v{H_B}, v{H_B}, v{H_R+3}")
e(f"v_cmp_eq_u32 vcc, -1, v{H_B}")
e("s_cbranch_vccz L_hpoll_d")
e("s_sleep 16")
e(f"s_sub_u32 s{S_SPIN}, s{S_SPIN}, 1")
e(f"s_cmp_lg_u32 s{S_SPIN}, 0")
e("s_cbranch_scc1 L_hpoll")
e(f"s_mov_b32 s{S_SPIN}, 1")
lab("L_hpoll_d")
lds_flag_set(1)
e("s_branch L_h_b5")
lds_flag_wait(1, "hf")
lab("L_hf_d")
e(f"s_max_u32 s{S_T2}, s{S_WG}, 32")
e(f"s_sub_u32 s{S_T2}, s{S_T2}, 32")
e(f"s_lshr_b32 s{S_T2}, s{S_T2}, 1")
e(f"s_lshl_b32 s{S_T2}, s{S_T2}, 7")
e(f"v_and_b32 v{H_A}, 31, v0")
e(f"v_lshlrev_b32 v{H_A}, 2, v{H_A}")
e(f"v_lshrrev_b32 v{H_B}, 5, v0")
e(f"v_mul_u32_u24 v{H_B}, 14336, v{H_B}")
e(f"v_add_u32 v{H_A}, v{H_A}, v{H_B}")
for m in range(8):
    e(f"s_add_u32 s{S_T3}, s{S_T2}, {GUPART + m*2*14336}")
    e(f"buffer_load_dword v{H_R+m}, v{H_A}, {srd(SRD_WS)}, s{S_T3} offen sc1")
e("s_waitcnt vmcnt(0)")
for m in (0, 4):
    e(f"v_add_f32 v{H_R+m}, v{H_R+m}, v{H_R+m+1}")
    e(f"v_add_f32 v{H_R+m+2}, v{H_R+m+2}, v{H_R+m+3}")
    e(f"v_add_f32 v{H_R+m}, v{H_R+m}, v{H_R+m+2}")
    bf16r(H_R + m, H_R + m, H_B)
def silu(dst, src, t):
    e(f"v_mul_f32 v{t}, 0xbfb8aa3b, v{src}")
    e(f"v_exp_f32 v{t}, v{t}")
    e("s_nop 0")
    e(f"v_add_f32 v{t}, 1.0, v{t}")
    e(f"v_rcp_f32 v{t}, v{t}")
    e("s_nop 0")
    e(f"v_mul_f32 v{dst}, v{src}, v{t}")
silu(H_R, H_R, H_B)
bf16r(H_R, H_R, H_B)
e(f"v_mul_f32 v{H_R}, v{H_R}, v{H_R+4}")
e(f"v_cvt_pk_bf16_f32 v{H_R}, v{H_R}, v{H_R}")
e(f"v_lshlrev_b32 v{H_A}, 1, v0")
e(f"ds_write_b16 v{H_A}, v{H_R} offset:{HL}")
e("s_waitcnt lgkmcnt(0)")
lab("L_h_b5")
e("s_waitcnt lgkmcnt(0)")
stamp()
def spin_tail(back, sl=1):
    e(f"s_sleep {sl}")
    e(f"s_sub_u32 s{S_SPIN}, s{S_SPIN}, 1")
    e(f"s_cmp_lg_u32 s{S_SPIN}, 0")
    e(f"s_cbranch_scc1 {back}")
    e(f"s_mov_b32 s{S_SPIN}, 1")
def mailbox(region, name, sl):
    e(f"s_lshl_b32 s{S_T2}, s{S_WG}, 12")
    e(f"s_add_u32 s{S_T2}, s{S_T2}, {region}")
    e(f"v_lshlrev_b32 v{H_A}, 4, v0")
    lab(f"L_{name}")
    for k in range(4):
        e(f"buffer_load_dwordx4 v[{H_R+4*k}:{H_R+4*k+3}], v{H_A}, {srd(SRD_WS)}, s{S_T2} offen offset:{1024*k} sc1")
    e("s_waitcnt vmcnt(0)")
    e(f"v_max3_u32 v{H_D}, v{H_R}, v{H_R+1}, v{H_R+2}")
    e(f"v_max3_u32 v{H_E}, v{H_R+3}, v{H_R+4}, v{H_R+5}")
    e(f"v_max3_u32 v{H_D}, v{H_D}, v{H_R+6}, v{H_R+7}")
    e(f"v_max3_u32 v{H_E}, v{H_E}, v{H_R+8}, v{H_R+9}")
    e(f"v_max3_u32 v{H_D}, v{H_D}, v{H_R+10}, v{H_R+11}")
    e(f"v_max3_u32 v{H_E}, v{H_E}, v{H_R+12}, v{H_R+13}")
    e(f"v_max3_u32 v{H_D}, v{H_D}, v{H_R+14}, v{H_R+15}")
    e(f"v_max_u32 v{H_D}, v{H_D}, v{H_E}")
    e(f"v_cmp_eq_u32 vcc, -1, v{H_D}")
    e(f"s_cbranch_vccz L_{name}_d")
    spin_tail(f"L_{name}", sl)
    lab(f"L_{name}_d")
    for k in range(4):
        e(f"v_add_f32 v{H_R+k}, v{H_R+k}, v{H_R+4+k}")
        e(f"v_add_f32 v{H_R+8+k}, v{H_R+8+k}, v{H_R+12+k}")
    for k in range(4):
        e(f"v_add_f32 v{H_R+k}, v{H_R+k}, v{H_R+8+k}")
    regs = [H_R + k for k in range(4)]
    for pat in ["quad_perm:[2,3,0,1]", "row_ror:4", "row_ror:8"]:
        for r in regs:
            e(f"v_add_f32_dpp v{r}, v{r}, v{r} {pat} row_mask:0xf bank_mask:0xf")
    for sw in ["v_permlane16_swap_b32", "v_permlane32_swap_b32"]:
        for k, r in enumerate(regs):
            e(f"v_mov_b32 v{H_X+k}, v{r}")
        e("s_nop 1")
        for k, r in enumerate(regs):
            e(f"{sw} v{r}, v{H_X+k}")
        for k, r in enumerate(regs):
            e(f"v_add_f32 v{r}, v{r}, v{H_X+k}")
stamp()
e("s_barrier")
stamp()
c("combine 4 waves' attention partials, publish")
e(f"v_lshrrev_b32 v{H_A}, 5, v{H_T}")
e(f"v_lshlrev_b32 v{H_B}, 5, v{H_A}")
e(f"ds_read_b128 v[{H_X}:{H_X+3}], v{H_B} offset:{AMLL}")
e(f"ds_read_b128 v[{H_X+4}:{H_X+7}], v{H_B} offset:{AMLL+16}")
e(f"v_lshlrev_b32 v{H_C}, 4, v{H_T}")
for w in range(4):
    e(f"ds_read_b128 v[{H_R+4*w}:{H_R+4*w+3}], v{H_C} offset:{AO + w*4096}")
e(f"s_mov_b32 s{S_T3}, {LOG2E:#x}")
e("s_waitcnt lgkmcnt(4)")
e(f"v_max3_f32 v{H_D}, v{H_X}, v{H_X+2}, v{H_X+4}")
e(f"v_max_f32 v{H_D}, v{H_D}, v{H_X+6}")
for w in range(4):
    e(f"v_sub_f32 v{H_X+2*w}, v{H_X+2*w}, v{H_D}")
    e(f"v_mul_f32 v{H_X+2*w}, s{S_T3}, v{H_X+2*w}")
    e(f"v_exp_f32 v{H_X+2*w}, v{H_X+2*w}")
e("s_nop 0")
e(f"v_mul_f32 v{H_E}, v{H_X}, v{H_X+1}")
for w in range(1, 4):
    e(f"v_fmac_f32 v{H_E}, v{H_X+2*w}, v{H_X+2*w+1}")
e("s_waitcnt lgkmcnt(0)")
for k in range(4):
    e(f"v_mul_f32 v{H_R+k}, v{H_X}, v{H_R+k}")
for w in range(1, 4):
    for k in range(4):
        e(f"v_fmac_f32 v{H_R+k}, v{H_X+2*w}, v{H_R+4*w+k}")
for k in range(4):
    e(f"v_min_u32 v{H_R+k}, 0xfffffffe, v{H_R+k}")
e(f"v_min_u32 v{H_D}, 0xfffffffe, v{H_D}")
e(f"v_min_u32 v{H_E}, 0xfffffffe, v{H_E}")
e(f"s_lshl_b32 s{S_T2}, s{S_WG}, 12")
e(f"s_add_u32 s{S_T2}, s{S_T2}, {APART}")
e(f"buffer_store_dwordx4 v[{H_R}:{H_R+3}], v{H_C}, {srd(SRD_WS)}, s{S_T2} offen sc1")
e(f"s_lshr_b32 s{S_T2}, s{S_WG}, 5")
e(f"s_lshl_b32 s{S_T2}, s{S_T2}, 11")
e(f"s_and_b32 s{S_T3}, s{S_WG}, 31")
e(f"s_lshl_b32 s{S_T3}, s{S_T3}, 3")
e(f"s_add_u32 s{S_T2}, s{S_T2}, s{S_T3}")
e(f"s_add_u32 s{S_T2}, s{S_T2}, {AML}")
e(f"v_lshlrev_b32 v{H_B}, 8, v{H_A}")
assert H_E == H_D + 1
e(f"v_mov_b32 v{H_X+8}, v{H_D}")
e(f"v_mov_b32 v{H_X+9}, v{H_E}")
mask(0x0000000100000001)
e(f"buffer_store_dwordx2 v[{H_X+8}:{H_X+9}], v{H_B}, {srd(SRD_WS)}, s{S_T2} offen sc1")
e("s_mov_b64 exec, -1")
stamp()
c("level-1 gather")
e(f"s_lshr_b32 s{S_T0}, s{S_HW}, 1")
e(f"s_lshl_b32 s{S_T0}, s{S_T0}, 2")
e(f"s_lshr_b32 s{S_T1}, s{S_WG}, 6")
e(f"s_add_u32 s{S_T0}, s{S_T0}, s{S_T1}")
e(f"s_lshr_b32 s{S_T1}, s{S_WG}, 3")
e(f"s_and_b32 s{S_T1}, s{S_T1}, 7")
e(f"s_lshl_b32 s{S_T2}, s{S_T0}, 17")
e(f"s_lshl_b32 s{S_T3}, s{S_T1}, 9")
e(f"s_add_u32 s{S_T2}, s{S_T2}, s{S_T3}")
e(f"s_lshr_b32 s{S_T3}, s{S_WG}, 1")
e(f"s_and_b32 s{S_T3}, s{S_T3}, 3")
e(f"s_lshl_b32 s{S_T3}, s{S_T3}, 7")
e(f"s_add_u32 s{S_T2}, s{S_T2}, s{S_T3}")
e(f"s_and_b32 s{S_T3}, s{S_HW}, 1")
e(f"s_lshl_b32 s{S_T3}, s{S_T3}, 6")
e(f"s_add_u32 s{S_T2}, s{S_T2}, s{S_T3}")
e(f"s_add_u32 s{S_T2}, s{S_T2}, {APART}")
e(f"s_lshl_b32 s{S_T3}, s{S_T0}, 11")
e(f"s_lshl_b32 s{S_T1}, s{S_T1}, 8")
e(f"s_add_u32 s{S_T3}, s{S_T3}, s{S_T1}")
e(f"s_add_u32 s{S_T3}, s{S_T3}, {AML}")
e(f"v_and_b32 v{H_A}, 31, v0")
e(f"v_lshrrev_b32 v{H_B}, 5, v0")
e(f"v_lshlrev_b32 v{H_C}, 3, v{H_A}")
e(f"v_lshlrev_b32 v{H_B}, 5, v{H_B}")
e(f"v_lshl_add_u32 v{H_B}, v{H_A}, 12, v{H_B}")
lab("L_l1f")
e(f"buffer_load_dwordx2 v[{H_R+8}:{H_R+9}], v{H_C}, {srd(SRD_WS)}, s{S_T3} offen sc1")
e("s_waitcnt vmcnt(0)")
e(f"v_max_u32 v{H_D}, v{H_R+8}, v{H_R+9}")
e(f"v_cmp_eq_u32 vcc, -1, v{H_D}")
e(f"s_bcnt1_i32_b64 s{S_T1}, vcc")
e(f"s_cmp_le_u32 s{S_T1}, {cfg.L1TH}")
e("s_cbranch_scc1 L_l1poll")
spin_tail("L_l1f", 2)
lab("L_l1poll")
e(f"buffer_load_dwordx4 v[{H_R}:{H_R+3}], v{H_B}, {srd(SRD_WS)}, s{S_T2} offen sc1")
e(f"buffer_load_dwordx4 v[{H_R+4}:{H_R+7}], v{H_B}, {srd(SRD_WS)}, s{S_T2} offen offset:16 sc1")
e(f"buffer_load_dwordx2 v[{H_R+8}:{H_R+9}], v{H_C}, {srd(SRD_WS)}, s{S_T3} offen sc1")
e("s_waitcnt vmcnt(0)")
e(f"v_max3_u32 v{H_D}, v{H_R}, v{H_R+1}, v{H_R+2}")
e(f"v_max3_u32 v{H_E}, v{H_R+3}, v{H_R+4}, v{H_R+5}")
e(f"v_max3_u32 v{H_D}, v{H_D}, v{H_R+6}, v{H_R+7}")
e(f"v_max3_u32 v{H_E}, v{H_E}, v{H_R+8}, v{H_R+9}")
e(f"v_max_u32 v{H_D}, v{H_D}, v{H_E}")
e(f"v_cmp_eq_u32 vcc, -1, v{H_D}")
e("s_cbranch_vccz L_l1poll_d")
spin_tail("L_l1poll", 1)
lab("L_l1poll_d")
stamp()
e(f"v_mov_b32 v{H_D}, v{H_R+8}")
dpp_reduce("v_max_f32", [H_D], H_X, full=False)
e(f"s_mov_b32 s{S_T1}, {LOG2E:#x}")
e(f"v_sub_f32 v{H_D}, v{H_R+8}, v{H_D}")
e(f"v_mul_f32 v{H_D}, s{S_T1}, v{H_D}")
e(f"v_exp_f32 v{H_D}, v{H_D}")
e("s_nop 0")
for k in range(8):
    e(f"v_mul_f32 v{H_R+k}, v{H_D}, v{H_R+k}")
e(f"v_mul_f32 v{H_R+8}, v{H_D}, v{H_R+9}")
dpp_reduce("v_add_f32", [H_R + k for k in range(9)], H_X, full=False)
e(f"v_rcp_f32 v{H_D}, v{H_R+8}")
e("s_nop 0")
for k in range(8):
    e(f"v_mul_f32 v{H_R+k}, v{H_D}, v{H_R+k}")
for k in range(4):
    e(f"v_cvt_pk_bf16_f32 v{H_R+k}, v{H_R+2*k}, v{H_R+2*k+1}")
e(f"s_lshl_b32 s{S_T1}, s{S_HW}, 5")
e(f"v_lshrrev_b32 v{H_A}, 5, v0")
e(f"v_lshlrev_b32 v{H_A}, 4, v{H_A}")
e(f"v_add_u32 v{H_A}, s{S_T1}, v{H_A}")
mask(0x0000000100000001)
e(f"ds_write_b128 v{H_A}, v[{H_R}:{H_R+3}] offset:{OL}")
e("s_mov_b64 exec, -1")
e("s_waitcnt lgkmcnt(0)")
stamp()
e("s_barrier")
c("f gather (helper 2)")
e(f"s_cmp_lg_u32 s{S_HW}, 2")
e("s_cbranch_scc1 L_h_nof")
mailbox(FPART, "fmb", cfg.FSL)
for k in range(4):
    bf16r(H_R + k, H_R + k, H_B)
    silu(H_R + k, H_R + k, H_B)
    bf16r(H_R + k, H_R + k, H_B)
mask(0x3)
e(f"ds_write_b128 v{H_A}, v[{H_R}:{H_R+3}] offset:{G2L}")
e("s_mov_b64 exec, -1")
e("s_waitcnt lgkmcnt(0)")
lds_flag_set(2)
e("s_branch L_h_end")
lab("L_h_nof")
c("level-2")
e(f"s_cmp_lg_u32 s{S_HW}, 0")
e("s_cbranch_scc1 L_h_end")
e(f"v_and_b32 v{H_C}, 1, v0")
mailbox(SPART, "smb", 1)
stamp()
lds_flag_wait(2, "g2f")
lab("L_g2f_d")
e(f"v_lshlrev_b32 v{H_B}, 4, v{H_C}")
e(f"ds_read_b128 v[{H_X+8}:{H_X+11}], v{H_B} offset:{G2L}")
e(f"s_mov_b32 s{S_T2}, 0xffff0000")
e(f"v_lshlrev_b32 v{H_X}, 16, v{H_XF}")
e(f"v_and_b32 v{H_X+1}, s{S_T2}, v{H_XF}")
e(f"v_lshlrev_b32 v{H_X+2}, 16, v{H_XF+1}")
e(f"v_and_b32 v{H_X+3}, s{S_T2}, v{H_XF+1}")
e("s_waitcnt lgkmcnt(0)")
for k in range(4):
    bf16r(H_R + k, H_R + k, H_B)
    e(f"v_mul_f32 v{H_R+k}, v{H_R+k}, v{H_X+8+k}")
    bf16r(H_R + k, H_R + k, H_B)
    e(f"v_add_f32 v{H_R+k}, v{H_X+k}, v{H_R+k}")
e(f"v_cvt_pk_bf16_f32 v{H_R}, v{H_R}, v{H_R+1}")
e(f"v_cvt_pk_bf16_f32 v{H_R+1}, v{H_R+2}, v{H_R+3}")
e(f"s_lshl_b32 s{S_T0}, s{S_WG}, 3")
e(f"v_lshlrev_b32 v{H_A}, 11, v{H_C}")
mask(0x3)
e(f"buffer_store_dwordx2 v[{H_R}:{H_R+1}], v{H_A}, {srd(SRD_OUT)}, s{S_T0} offen")
e("s_mov_b64 exec, -1")
stamp()
if cfg.DIAG == 2:
    stamp_flush(H_A, H_B, [(4,12,0),(9,13,0),(11,14,0),(12,15,0)])
if cfg.DIAG == 3 and cfg.PROBE >= 0:
    e(f"s_cmp_lg_u32 s{S_WG}, {cfg.PWG}")
    e("s_cbranch_scc1 L_h_end")
    e(f"s_sub_u32 s{S_T0}, s{S_STAMP0+cfg.PROBE}, s100")
    e(f"s_add_u32 s{S_T0}, s{S_T0}, s{S_STAMP0+12}")
    lab("L_probe")
    e("s_memrealtime s[30:31]")
    e("s_waitcnt lgkmcnt(0)")
    e(f"s_sub_u32 s{S_T1}, s30, s{S_T0}")
    e(f"s_cmp_lt_i32 s{S_T1}, 0")
    e("s_cbranch_scc1 L_probe")
lab("L_h_end")
if cfg.DIAG == 1:
    stamp_flush(H_A, H_B)
lab("L_end")
e("s_endpgm")

L.append('.section .rodata,"a"')
L.append(".p2align 6")
L.append(f".amdhsa_kernel {KNAME}")
L.append(f"  .amdhsa_next_free_vgpr {NV_STREAM}")
L.append("  .amdhsa_next_free_sgpr 102")
L.append(f"  .amdhsa_accum_offset {NV_STREAM}")
L.append("  .amdhsa_group_segment_fixed_size 0")
L.append("  .amdhsa_kernarg_size 96")
L.append("  .amdhsa_user_sgpr_count 2")
L.append("  .amdhsa_user_sgpr_kernarg_segment_ptr 1")
L.append("  .amdhsa_system_sgpr_workgroup_id_x 1")
L.append(".end_amdhsa_kernel")
open(sys.argv[1], "w").write("\n".join(L) + "\n")
print("wrote", sys.argv[1], len(L), "lines; LDS", LDS_BYTES)
```

```python
import sys

KNAME = "recurrent_scan__gqa_block_cached__swiglu_ffn__decode_kernel"

class Cfg:
    R = 4
    NT = False
    DIAG = False
    SPIN = 1 << 22
    D = 2
    PAT = 2
    DH = 0
    L1TH = 8
    VS = 0
    FSL = 2
    D2 = 0
    U2 = 14
    TLB = 0
    PRIO = 2
    PROBE = -1
    PWG = 0
    CPF = 0
    NS = 6
    ND = 4
    NP = 4

cfg = Cfg()
for a in sys.argv[2:]:
    k, v = a.split("=")
    setattr(cfg, k, int(v))

R = cfg.R
L = []
def e(s): L.append("    " + s)
def lab(s): L.append(s + ":")
def c(s): L.append("    ; " + s)

QPART = 0x000000
GUPART = 0x040000
APART = 0x080000
AML = 0x180000
SPART = 0x200000
FPART = 0x300000
SFLAG = 0x190000
QFLAG = 0x1A0000
HFLAG = 0x1A2000
CNT = 0x1A3000
TSOFF = 0x400000
WS_BYTES = 0x500000

XN = 0
REDQ = XN + 4096
REDG = REDQ + 4096
QL = REDG + 4096
AO = QL + 2048
AMLL = AO + 16384
HL = AMLL + 256
OL = HL + 128
G2L = OL + 128
FLG = G2L + 64
RING = 32768
assert FLG + 64 <= RING
LDS_BYTES = RING + 4 * R * 8192
assert LDS_BYTES <= 163840, LDS_BYTES

S_WG = 2
S_WAVE = 3
SRD_X, SRD_K, SRD_V, SRD_WQ, SRD_WO, SRD_GU, SRD_WD, SRD_OUT, SRD_DBG, SRD_WS, SRD_FP = \
    [56 + 4 * i for i in range(11)]
def srd(b): return f"s[{b}:{b+3}]"
S_WB = 4
S_T0, S_T1, S_T2, S_T3 = 5, 6, 7, 8
S_BQ, S_BG, S_BKV, S_BD, S_BO = 9, 10, 11, 12, 13
S_SPIN = 14
S_T4 = 15
S_STAMP0 = 36
nstamp = [0]
in_stream = [True]

def stamp(kind=0):
    if not cfg.DIAG:
        return
    if in_stream[0] and cfg.VS != kind and kind != 2:
        return
    if in_stream[0] and cfg.DIAG == 3:
        return
    i = nstamp[0]
    assert i < 14
    e("s_memrealtime s[30:31]")
    e("s_waitcnt lgkmcnt(0)")
    e(f"s_mov_b32 s{S_STAMP0+i}, s30")
    nstamp[0] += 1

def stamp_flush(vtmp0, vtmp1, dbgmap=None):
    if not cfg.DIAG:
        return
    n = nstamp[0]
    if cfg.DIAG == 3:
        nstamp[0] = 0
        return
    if cfg.DIAG == 2:
        e("s_mov_b64 exec, 1")
        e(f"v_mov_b32 v{vtmp0}, 0")
        for (i, word, inv) in dbgmap:
            if inv:
                e(f"s_not_b32 s30, s{S_STAMP0+i}")
            else:
                e(f"s_mov_b32 s30, s{S_STAMP0+i}")
            e(f"v_mov_b32 v{vtmp1}, s30")
            e(f"buffer_atomic_umax v{vtmp1}, v{vtmp0}, {srd(SRD_DBG)}, 0 offen offset:{4*word} sc1")
            e("s_nop 1")
        e("s_mov_b64 exec, -1")
        nstamp[0] = 0
        return
    e(f"s_lshl_b32 s30, s{S_WG}, 3")
    e(f"s_add_u32 s30, s30, s{S_WAVE}")
    e("s_lshl_b32 s30, s30, 6")
    e(f"s_add_u32 s30, s30, {TSOFF}")
    e("s_mov_b64 exec, 1")
    e(f"v_mov_b32 v{vtmp0}, 0")
    for i in range(n):
        e(f"v_mov_b32 v{vtmp1}, s{S_STAMP0+i}")
        e(f"buffer_store_dword v{vtmp1}, v{vtmp0}, {srd(SRD_WS)}, s30 offen offset:{4*i}")
        e("s_nop 1")
    e("s_mov_b64 exec, -1")
    nstamp[0] = 0

NTF = " nt" if cfg.NT else ""

LOG2E = 0x3fb8aa3b
SCALE = 0x3db504f3

L.append(f"; @launch grid=(256,1,1) block=(512,1,1) lds={LDS_BYTES}")
L.append('.amdgcn_target "amdgcn-amd-amdhsa--gfx950"')
L.append(".text")
L.append(f".globl {KNAME}")
L.append(".p2align 8")
L.append(f".type {KNAME},@function")
lab(KNAME)
e(f"s_cmp_ge_u32 s{S_WG}, 256")
e("s_cbranch_scc1 L_end")
if cfg.DIAG == 3:
    e("s_memrealtime s[100:101]")
e("s_load_dwordx16 s[32:47], s[0:1], 0")
e("s_load_dwordx8 s[48:55], s[0:1], 64")
e("v_lshrrev_b32 v1, 6, v0")
e("v_and_b32 v0, 63, v0")
e(f"v_readfirstlane_b32 s{S_WAVE}, v1")
e(f"s_mov_b32 s{S_SPIN}, {cfg.SPIN}")
e("s_waitcnt lgkmcnt(0)")
def mk_srd(b, plo, nbytes):
    e(f"s_mov_b32 s{b}, s{plo}")
    e(f"s_mov_b32 s{b+1}, s{plo+1}")
    e(f"s_mov_b32 s{b+2}, {nbytes}")
    e(f"s_mov_b32 s{b+3}, 0x00020000")
mk_srd(SRD_X, 32, 4096)
mk_srd(SRD_K, 34, 0x4000000)
mk_srd(SRD_V, 36, 0x4000000)
mk_srd(SRD_WQ, 38, 0x800000)
mk_srd(SRD_WO, 40, 0x800000)
e(f"s_cmp_ge_u32 s{S_WG}, 112")
e(f"s_cselect_b32 s{SRD_GU}, s46, s44")
e(f"s_cselect_b32 s{SRD_GU+1}, s47, s45")
e(f"s_cmp_lt_u32 s{S_WG}, 224")
e(f"s_cselect_b32 s{SRD_GU+2}, 0x700000, 0")
e(f"s_mov_b32 s{SRD_GU+3}, 0x00020000")
mk_srd(SRD_WD, 48, 0x700000)
e(f"s_cmp_ge_u32 s{S_WG}, 32")
e(f"s_cselect_b32 s{SRD_WD+2}, 0x700000, 0")
mk_srd(SRD_OUT, 50, 4096)
mk_srd(SRD_DBG, 52, 256)
mk_srd(SRD_WS, 54, WS_BYTES)
e(f"s_add_u32 s{SRD_FP}, s54, {FPART}")
e(f"s_addc_u32 s{SRD_FP+1}, s55, 0")
e(f"s_mov_b32 s{SRD_FP+2}, {112*8192}")
e(f"s_mov_b32 s{SRD_FP+3}, 0x00020000")
e(f"s_cmp_ge_u32 s{S_WAVE}, 4")
e("s_cbranch_scc1 L_helper")

c("================ stream waves ================")
V_L = 0
V_G, V_I, V_T0, V_T1, V_T2, V_T3 = 1, 2, 3, 4, 5, 6
V_CV = 7
V_OWQ = 9
V_OGU = 11
V_OW2 = 13
V_OV = 15
V_OK = 17
V_KA = 21
V_VA = 25
V_XB = 33
V_RED = 34
V_ST = 35
V_MX = 36
V_LS = 37
V_MC = 38
V_T4 = 39
V_B = 40
V_A = 56
V_O = 88
NKU = cfg.NS
V_S = 120
V_X = V_S + 8*NKU
V_X2 = V_X + 32
V_CL = V_X2 + 32
V_AL = V_CL + 1
NV_STREAM = (V_CL + 6 + 7) // 8 * 8
assert NV_STREAM <= 256
POOL = (8 - cfg.NS) * 32
S_DYN = 18
S_GB = 24
S_CNT = 25

outstanding = []
def vm_issue(tag): outstanding.append(tag)
def vm_wait(tag):
    if tag not in outstanding:
        return
    idx = max(i for i, t in enumerate(outstanding) if t == tag)
    n = len(outstanding) - 1 - idx
    assert n <= 63
    e(f"s_waitcnt vmcnt({n})")
    del outstanding[:idx + 1]

e(f"v_lshrrev_b32 v{V_G}, 4, v{V_L}")
e(f"v_and_b32 v{V_I}, 15, v{V_L}")
e(f"s_mul_i32 s{S_WB}, s{S_WAVE}, {R*8192}")
e(f"s_add_u32 s{S_WB}, s{S_WB}, {RING}")
e(f"v_lshlrev_b32 v{V_T0}, 1, v{V_G}")
e(f"v_xor_b32 v{V_T0}, v{V_T0}, v{V_I}")
e(f"v_lshlrev_b32 v{V_CV}, 4, v{V_T0}")
e(f"v_xor_b32 v{V_CV+1}, 0x80, v{V_CV}")
def mk_off(dst, rs):
    e(f"v_mul_u32_u24 v{V_T0}, {rs}, v{V_G}")
    e(f"v_add_u32 v{dst}, v{V_T0}, v{V_CV}")
    e(f"v_add_u32 v{dst+1}, v{V_T0}, v{V_CV+1}")
mk_off(V_OWQ, 8192)
e(f"s_and_b32 s{S_T0}, s{S_WG}, 7")
e(f"s_lshl_b32 s{S_T0}, s{S_T0}, 2")
e(f"s_add_u32 s{S_T0}, s{S_T0}, s{S_WAVE}")
e(f"s_lshl_b32 s{S_BQ}, s{S_T0}, 18")
e(f"s_lshl_b32 s{S_T4}, s{S_T0}, 6")
e(f"s_lshr_b32 s{S_T1}, s{S_WG}, 3")
e(f"s_lshl_b32 s{S_T1}, s{S_T1}, 8")
e(f"s_add_u32 s{S_BQ}, s{S_BQ}, s{S_T1}")

def half_throttle():
    if cfg.DH > 0:
        keep = (cfg.DH - 1) * 4
        if len(outstanding) > keep:
            e(f"s_waitcnt vmcnt({keep})")
            del outstanding[:len(outstanding) - keep]
def dma_w(u, srd_b, sbase, extra, rs, voff):
    slot = u % R
    for jj in range(8):
        if jj % 4 == 0:
            half_throttle()
            e(f"s_add_u32 m0, s{S_WB}, {slot*8192 + (jj//4)*4096}")
        e(f"s_add_u32 s{S_T3}, s{sbase}, {extra + jj*4*rs - (jj&3)*1024}")
        e(f"buffer_load_dwordx4 v{voff + (jj&1)}, {srd(srd_b)}, s{S_T3} offen offset:{(jj&3)*1024}{NTF} lds")
        vm_issue(u)

def dma_kv(u, is_k, idx):
    slot = u % R
    for half in range(2):
        half_throttle()
        e(f"s_add_u32 m0, s{S_WB}, {slot*8192 + half*4096}")
        if idx < cfg.NS:
            e(f"s_add_u32 s{S_T3}, s{S_BKV}, {idx*KVSTRIDE + half*4096}")
        else:
            e(f"s_add_u32 s{S_T3}, s{S_DYN}, {half*4096}")
        for j4 in range(4):
            if is_k:
                e(f"buffer_load_dwordx4 v{V_OK + j4}, {srd(SRD_K)}, s{S_T3} offen offset:{j4*1024}{NTF} lds")
            else:
                e(f"buffer_load_dwordx4 v{V_OV + (j4&1)}, {srd(SRD_V)}, s{S_T3} offen offset:{j4*1024}{NTF} lds")
            vm_issue(u)

U_K0 = 3
U_V0 = U_K0 + NKU
U_VL = U_V0 + NKU - 1
NUNITS = U_VL + 1
SLOT_B = U_VL % R
SLOT_A = (SLOT_B + 1) % R
U_KD = U_VL + 1
U_WD = U_VL + 2
U_WO = U_VL + 3
U_VD = U_VL + 4
def claim():
    e(f"v_mov_b32 v{V_CL}, 1")
    e(f"v_mov_b32 v{V_CL+2}, 0")
    e("s_mov_b64 exec, 1")
    e(f"buffer_atomic_add v{V_CL}, v{V_CL+2}, {srd(SRD_WS)}, s{S_CNT} offen sc0 sc1")
    e("s_mov_b64 exec, -1")
    vm_issue("cl")
def issue_unit(u):
    if u >= NUNITS:
        return
    dd = cfg.D2 if (cfg.D2 and u >= cfg.U2) else cfg.D
    if (u - dd) in outstanding:
        vm_wait(u - dd)
    if u == 0:
        dma_w(u, SRD_WQ, S_BQ, 0, 8192, V_OWQ)
    elif u in (1, 2):
        dma_w(u, SRD_GU, S_BG, (u - 1) * 32 * 7168, 7168, V_OGU)
    elif u < U_V0:
        dma_kv(u, True, u - U_K0)
    else:
        dma_kv(u, False, u - U_V0)
        if u == U_VL:
            claim()

issue_unit(0)
mk_off(V_OGU, 7168)
e(f"s_and_b32 s{S_T0}, s{S_WG}, 3")
e(f"s_lshl_b32 s{S_T0}, s{S_T0}, 2")
e(f"s_add_u32 s{S_T0}, s{S_T0}, s{S_WAVE}")
e(f"s_mul_i32 s{S_BG}, s{S_T0}, {64*7168}")
e(f"s_lshl_b32 s{S_T2}, s{S_T0}, 7")
e(f"s_lshr_b32 s{S_T1}, s{S_WG}, 2")
e(f"s_cmp_ge_u32 s{S_T1}, 28")
e(f"s_cselect_b32 s{S_T0}, 28, 0")
e(f"s_sub_u32 s{S_T1}, s{S_T1}, s{S_T0}")
e(f"s_lshl_b32 s{S_T1}, s{S_T1}, 8")
e(f"s_add_u32 s{S_BG}, s{S_BG}, s{S_T1}")
S_XG = S_T2
S_XQ = S_T4
issue_unit(1)
if cfg.PAT == 0:
    e(f"s_lshl_b32 s{S_BKV}, s{S_WG}, 18")
    e(f"s_lshl_b32 s{S_T0}, s{S_WAVE}, 16")
    e(f"s_add_u32 s{S_BKV}, s{S_BKV}, s{S_T0}")
    KVSTRIDE = 8192
elif cfg.PAT == 1:
    e(f"s_lshl_b32 s{S_BKV}, s{S_WG}, 18")
    e(f"s_lshl_b32 s{S_T0}, s{S_WAVE}, 13")
    e(f"s_add_u32 s{S_BKV}, s{S_BKV}, s{S_T0}")
    KVSTRIDE = 32768
else:
    e(f"s_lshr_b32 s{S_BKV}, s{S_WG}, 5")
    e(f"s_lshl_b32 s{S_BKV}, s{S_BKV}, 23")
    e(f"s_and_b32 s{S_T0}, s{S_WG}, 31")
    e(f"s_lshl_b32 s{S_T0}, s{S_T0}, 2")
    e(f"s_add_u32 s{S_T0}, s{S_T0}, s{S_WAVE}")
    e(f"s_lshl_b32 s{S_T0}, s{S_T0}, 13")
    e(f"s_add_u32 s{S_BKV}, s{S_BKV}, s{S_T0}")
    KVSTRIDE = 1 << 20
e(f"s_lshr_b32 s{S_GB}, s{S_WG}, 5")
e(f"s_lshl_b32 s{S_GB}, s{S_GB}, 23")
e(f"s_lshr_b32 s{S_T0}, s{S_WG}, 3")
e(f"s_lshl_b32 s{S_CNT}, s{S_T0}, 7")
e(f"s_add_u32 s{S_CNT}, s{S_CNT}, {CNT}")
e(f"s_and_b32 s{S_T0}, s{S_T0}, 3")
e(f"s_mul_i32 s{S_T0}, s{S_T0}, {POOL*8192}")
e(f"s_add_u32 s{S_GB}, s{S_GB}, s{S_T0}")
e(f"s_add_u32 s{S_GB}, s{S_GB}, {cfg.NS*128*8192}")
assert cfg.PAT == 2
e(f"v_xor_b32 v{V_T0}, v{V_I}, v{V_G}")
e(f"v_lshlrev_b32 v{V_T1}, 8, v{V_G}")
for j4 in range(4):
    e(f"v_xor_b32 v{V_T2}, {4*j4}, v{V_T0}")
    e(f"v_lshl_add_u32 v{V_OK+j4}, v{V_T2}, 4, v{V_T1}")
mk_off(V_OV, 256)
mk_off(V_OW2, 2048)
e(f"s_max_u32 s{S_T0}, s{S_WG}, 32")
e(f"s_sub_u32 s{S_T0}, s{S_T0}, 32")
def mk_base2(dst, src):
    e(f"s_lshr_b32 s{S_T1}, s{src}, 1")
    e(f"s_lshl_b32 s{dst}, s{S_T1}, 16")
    e(f"s_and_b32 s{S_T1}, s{src}, 1")
    e(f"s_lshl_b32 s{S_T1}, s{S_T1}, 10")
    e(f"s_add_u32 s{dst}, s{dst}, s{S_T1}")
    e(f"s_lshl_b32 s{S_T1}, s{S_WAVE}, 8")
    e(f"s_add_u32 s{dst}, s{dst}, s{S_T1}")
mk_base2(S_BD, S_T0)
mk_base2(S_BO, S_WG)
e(f"v_xor_b32 v{V_T0}, v{V_I}, v{V_G}")
e(f"v_lshlrev_b32 v{V_T1}, 8, v{V_I}")
e(f"v_add_u32 v{V_T1}, s{S_WB}, v{V_T1}")
for ks in range(4):
    e(f"v_xor_b32 v{V_T2}, {4*ks}, v{V_T0}")
    e(f"v_lshl_add_u32 v{V_KA+ks}, v{V_T2}, 4, v{V_T1}")
e(f"v_lshrrev_b32 v{V_T0}, 2, v{V_L}")
e(f"v_lshlrev_b32 v{V_T1}, 8, v{V_T0}")
e(f"v_add_u32 v{V_T1}, s{S_WB}, v{V_T1}")
e(f"v_and_b32 v{V_T2}, 3, v{V_L}")
e(f"v_lshl_add_u32 v{V_T1}, v{V_T2}, 3, v{V_T1}")
e(f"v_and_b32 v{V_T0}, 7, v{V_T0}")
for t in range(8):
    e(f"v_xor_b32 v{V_T2}, {t}, v{V_T0}")
    e(f"v_lshl_add_u32 v{V_VA+t}, v{V_T2}, 5, v{V_T1}")
e(f"v_and_b32 v{V_T0}, 1, v{V_I}")
e(f"v_lshlrev_b32 v{V_T1}, 3, v{V_G}")
e(f"v_lshl_add_u32 v{V_XB}, v{V_T0}, 11, v{V_T1}")
e(f"v_lshlrev_b32 v{V_T1}, 4, v{V_G}")
e(f"v_lshl_add_u32 v{V_RED}, v{V_I}, 9, v{V_T1}")
e(f"v_lshlrev_b32 v{V_T1}, 4, v{V_I}")
e(f"v_lshl_add_u32 v{V_ST}, v{V_G}, 12, v{V_T1}")

def mask(m):
    e(f"s_mov_b32 exec_lo, {m & 0xffffffff:#x}")
    e(f"s_mov_b32 exec_hi, {(m >> 32) & 0xffffffff:#x}")
M_N2 = 0x0003000300030003
M_N8 = 0x00FF00FF00FF00FF

def gemv_unit(u, first, nxt=True):
    slot = u % R
    vm_wait(u)
    for t in range(8):
        e(f"ds_read_b64_tr_b16 v[{V_A+4*t}:{V_A+4*t+1}], v{V_VA+t} offset:{slot*8192}")
        e(f"ds_read_b64_tr_b16 v[{V_A+4*t+2}:{V_A+4*t+3}], v{V_VA+t} offset:{slot*8192+4096}")
        if t == 3:
            pass
    for t in range(8):
        if t % 2 == 0:
            e(f"s_waitcnt lgkmcnt({16 - 2*t - 4})")
        cc = "0" if first else f"v[{V_O+4*t}:{V_O+4*t+3}]"
        e(f"v_mfma_f32_16x16x32_bf16 v[{V_O+4*t}:{V_O+4*t+3}], v[{V_A+4*t}:{V_A+4*t+3}], v[{V_B}:{V_B+3}], {cc}")
    if nxt:
        issue_unit(u + R)

def read_b(vaddr_s, base):
    pass

for u in range(2, cfg.D):
    issue_unit(u)
nxt_issue = [max(2, cfg.D)]
def pump(upto):
    while nxt_issue[0] <= upto:
        issue_unit(nxt_issue[0]); nxt_issue[0] += 1
stamp(2)
e("s_barrier")
c("---- q-proj unit ----")
e(f"v_add_u32 v{V_T3}, s{S_XQ}, v{V_XB}")
e(f"ds_read_b64 v[{V_B}:{V_B+1}], v{V_T3} offset:{XN}")
e(f"ds_read_b64 v[{V_B+2}:{V_B+3}], v{V_T3} offset:{XN+32}")
e(f"v_add_u32 v{V_T3}, s{S_XG}, v{V_XB}")
e(f"ds_read_b64 v[{V_B+4}:{V_B+5}], v{V_T3} offset:{XN}")
e(f"ds_read_b64 v[{V_B+6}:{V_B+7}], v{V_T3} offset:{XN+32}")
e(f"ds_read_b64 v[{V_B+8}:{V_B+9}], v{V_T3} offset:{XN+64}")
e(f"ds_read_b64 v[{V_B+10}:{V_B+11}], v{V_T3} offset:{XN+96}")
e("s_waitcnt lgkmcnt(0)")
gemv_unit(0, True, nxt=False)
e(f"s_lshl_b32 s{S_T0}, s{S_WAVE}, 10")
e(f"v_add_u32 v{V_T3}, s{S_T0}, v{V_RED}")
e("s_nop 7")
mask(M_N2)
for t in range(8):
    e(f"ds_write_b128 v{V_T3}, v[{V_O+4*t}:{V_O+4*t+3}] offset:{REDQ + t*64}")
e("s_mov_b64 exec, -1")
e("s_waitcnt lgkmcnt(0)")
stamp()
e("s_barrier")
pump(cfg.D)
c("---- gate/up units ----")
for k in range(4):
    e(f"v_mov_b32 v{V_B+k}, v{V_B+4+k}")
e("s_nop 1")
gemv_unit(1, True, nxt=False)
pump(1 + cfg.D)
e("s_nop 7")
for k in range(4):
    e(f"v_mov_b32 v{V_B+k}, v{V_B+8+k}")
e("s_nop 1")
gemv_unit(2, False, nxt=False)
e("s_nop 7")
mask(M_N2)
for t in range(8):
    e(f"ds_write_b128 v{V_T3}, v[{V_O+4*t}:{V_O+4*t+3}] offset:{REDG + t*64}")
e("s_mov_b64 exec, -1")
e("s_waitcnt lgkmcnt(0)")
e("s_barrier")
pump(2 + R)
PARK = [V_O, V_X, V_X2, V_A][:cfg.NP]
def k_frags(u, base):
    slot = u % R
    vm_wait(u)
    for tile in range(2):
        for ks in range(4):
            a = base + 16*tile + 4*ks
            e(f"ds_read_b128 v[{a}:{a+3}], v{V_KA+ks} offset:{slot*8192 + tile*4096}")
for ku in range(cfg.NP):
    k_frags(3 + ku, PARK[ku])
    e("s_waitcnt lgkmcnt(0)")
    pump(3 + ku + R)
stamp()
e("s_barrier")
stamp(2)
c("---- load q fragments ----")
e(f"v_and_b32 v{V_T0}, 7, v{V_I}")
e(f"v_lshlrev_b32 v{V_T1}, 4, v{V_G}")
e(f"v_lshl_add_u32 v{V_T0}, v{V_T0}, 8, v{V_T1}")
for ks in range(4):
    e(f"ds_read_b128 v[{V_B+4*ks}:{V_B+4*ks+3}], v{V_T0} offset:{QL + ks*64}")
e(f"s_mov_b32 s{S_T0}, {SCALE:#x}")
e(f"s_mov_b32 s{S_T1}, 0xffff0000")
e(f"v_mov_b32 v{V_MX}, 0xff800000")
e("s_waitcnt lgkmcnt(0)")

def score_post(base):
    for h in range(2):
        a, b = base + 2*h, base + 2*h + 1
        e(f"v_cvt_pk_bf16_f32 v{V_T2}, v{a}, v{b}")
        e(f"v_lshlrev_b32 v{a}, 16, v{V_T2}")
        e(f"v_and_b32 v{b}, s{S_T1}, v{V_T2}")
        e(f"v_mul_f32 v{a}, s{S_T0}, v{a}")
        e(f"v_mul_f32 v{b}, s{S_T0}, v{b}")
        e(f"v_cvt_pk_bf16_f32 v{V_T2}, v{a}, v{b}")
        e(f"v_lshlrev_b32 v{a}, 16, v{V_T2}")
        e(f"v_and_b32 v{b}, s{S_T1}, v{V_T2}")
        e(f"v_max3_f32 v{V_MX}, v{a}, v{b}, v{V_MX}")

c("---- K phase ----")
def k_mfma(base, d0, wait):
    for tile in range(2):
        d = d0 + tile * 4
        if wait:
            e(f"s_waitcnt lgkmcnt({4 - 4*tile})")
        for ks in range(4):
            a = base + 16*tile + 4*ks
            cc = "0" if ks == 0 else f"v[{d}:{d+3}]"
            e(f"v_mfma_f32_16x16x32_bf16 v[{d}:{d+3}], v[{a}:{a+3}], v[{V_B+4*ks}:{V_B+4*ks+3}], {cc}")
for ku in range(NKU):
    u = 3 + ku
    parked = ku < cfg.NP
    base = PARK[ku] if parked else V_A
    if not parked:
        k_frags(u, V_A)
    k_mfma(base, V_S + 8*ku, not parked)
    if not parked:
        pump(u + R)
    e("s_nop 7")
    score_post(V_S + (2*ku) * 4)
    score_post(V_S + (2*ku + 1) * 4)
stamp(2)
c("---- softmax ----")
def xswap(op, v, tmp):
    e(f"v_mov_b32 v{tmp}, v{v}")
    e("s_nop 1")
    e(f"v_permlane16_swap_b32 v{v}, v{tmp}")
    e(f"{op} v{v}, v{v}, v{tmp}")
    e(f"v_mov_b32 v{tmp}, v{v}")
    e("s_nop 1")
    e(f"v_permlane32_swap_b32 v{v}, v{tmp}")
    e(f"{op} v{v}, v{v}, v{tmp}")
xswap("v_max_f32", V_MX, V_T2)
e(f"s_mov_b32 s{S_T2}, {LOG2E:#x}")
e(f"v_mul_f32 v{V_MC}, s{S_T2}, v{V_MX}")
e(f"v_mov_b32 v{V_LS}, 0")
e(f"v_mov_b32 v{V_T4}, 0")
def exp_block(r0, n):
    for r in range(r0, r0 + n, 2):
        a, b = V_S + r, V_S + r + 1
        e(f"v_fma_f32 v{a}, v{a}, s{S_T2}, -v{V_MC}")
        e(f"v_fma_f32 v{b}, v{b}, s{S_T2}, -v{V_MC}")
        e(f"v_exp_f32 v{a}, v{a}")
        e(f"v_exp_f32 v{b}, v{b}")
        e("s_nop 0")
        e(f"v_add_f32 v{V_LS}, v{V_LS}, v{a}")
        e(f"v_add_f32 v{V_T4}, v{V_T4}, v{b}")
        e(f"v_cvt_pk_bf16_f32 v{V_S + (r//8)*8 + (r%8)//2}, v{a}, v{b}")
exp_block(0, 8*NKU)
e(f"v_add_f32 v{V_LS}, v{V_LS}, v{V_T4}")
stamp()
c("---- V phase ----")
def v_consume(slot, preg, first):
    for t in range(8):
        e(f"ds_read_b64_tr_b16 v[{V_A+4*t}:{V_A+4*t+1}], v{V_VA+t} offset:{slot*8192}")
        e(f"ds_read_b64_tr_b16 v[{V_A+4*t+2}:{V_A+4*t+3}], v{V_VA+t} offset:{slot*8192+4096}")
    for t in range(8):
        if t % 2 == 0:
            e(f"s_waitcnt lgkmcnt({16 - 2*t - 4})")
        cc = "0" if first else f"v[{V_O+4*t}:{V_O+4*t+3}]"
        e(f"v_mfma_f32_16x16x32_bf16 v[{V_O+4*t}:{V_O+4*t+3}], v[{V_A+4*t}:{V_A+4*t+3}], v[{preg}:{preg+3}], {cc}")
for vu in range(NKU - 1):
    u = U_V0 + vu
    vm_wait(u)
    v_consume(u % R, V_S + 8*vu, vu == 0)
    pump(u + R)
    stamp(1)
assert outstanding == [U_VL]*8 + ["cl"], outstanding
PD = V_S + 8*(NKU - 1)
e("s_waitcnt vmcnt(1)")
v_consume(SLOT_B, PD, False)
lab("L_dyn")
e("s_waitcnt vmcnt(0)")
del outstanding[:]
e(f"v_readfirstlane_b32 s{S_T3}, v{V_CL}")
e(f"s_add_u32 s{S_T3}, s{S_T3}, 1")
e(f"s_cmp_ge_u32 s{S_T3}, {POOL}")
e("s_cbranch_scc1 L_dyn_exit")
e(f"s_lshl_b32 s{S_T3}, s{S_T3}, 13")
e(f"s_add_u32 s{S_DYN}, s{S_T3}, s{S_GB}")
dma_kv(U_KD, True, 99)
dma_kv(U_VD, False, 99)
e("s_waitcnt vmcnt(8)")
claim()
del outstanding[:]
for tile in range(2):
    for ks in range(4):
        a = V_A + 16*tile + 4*ks
        e(f"ds_read_b128 v[{a}:{a+3}], v{V_KA+ks} offset:{SLOT_A*8192 + tile*4096}")
k_mfma(V_A, PD, True)
e("s_nop 7")
score_post(PD)
score_post(PD + 4)
xswap("v_max_f32", V_MX, V_T2)
e(f"v_mul_f32 v{V_T4}, s{S_T2}, v{V_MX}")
e(f"v_sub_f32 v{V_AL}, v{V_MC}, v{V_T4}")
e(f"v_exp_f32 v{V_AL}, v{V_AL}")
e(f"v_mov_b32 v{V_MC}, v{V_T4}")
e(f"v_mov_b32 v{V_T4}, 0")
e(f"v_mul_f32 v{V_LS}, v{V_LS}, v{V_AL}")
for r in range(32):
    e(f"v_mul_f32 v{V_O+r}, v{V_O+r}, v{V_AL}")
exp_block(8*(NKU - 1), 8)
e(f"v_add_f32 v{V_LS}, v{V_LS}, v{V_T4}")
e("s_waitcnt vmcnt(1)")
v_consume(SLOT_B, PD, False)
e("s_branch L_dyn")
lab("L_dyn_exit")
dma_w(U_WD, SRD_WD, S_BD, 0, 2048, V_OW2)
dma_w(U_WO, SRD_WO, S_BO, 0, 2048, V_OW2)
xswap("v_add_f32", V_LS, V_T2)
c("---- write attention partial to LDS ----")
e(f"s_lshl_b32 s{S_T0}, s{S_WAVE}, 12")
e(f"v_add_u32 v{V_T3}, s{S_T0}, v{V_RED}")
e(f"s_lshl_b32 s{S_T0}, s{S_WAVE}, 3")
e(f"v_lshlrev_b32 v{V_T2}, 5, v{V_I}")
e(f"v_add_u32 v{V_T2}, s{S_T0}, v{V_T2}")
e(f"v_mov_b32 v{V_MX+1}, v{V_LS}") if V_LS != V_MX + 1 else None
e("s_nop 7")
mask(M_N8)
for t in range(8):
    e(f"ds_write_b128 v{V_T3}, v[{V_O+4*t}:{V_O+4*t+3}] offset:{AO + t*64}")
mask(0xFF)
e(f"ds_write_b64 v{V_T2}, v[{V_MX}:{V_MX+1}] offset:{AMLL}")
e("s_mov_b64 exec, -1")
e("s_waitcnt lgkmcnt(0)")
stamp()
e("s_barrier")
c("---- down-proj unit ----")
e(f"v_and_b32 v{V_T0}, 1, v{V_I}")
e(f"v_lshlrev_b32 v{V_T1}, 3, v{V_G}")
e(f"v_lshl_add_u32 v{V_T3}, v{V_T0}, 6, v{V_T1}")
e(f"ds_read_b64 v[{V_B}:{V_B+1}], v{V_T3} offset:{HL}")
e(f"ds_read_b64 v[{V_B+2}:{V_B+3}], v{V_T3} offset:{HL+32}")
e("s_waitcnt lgkmcnt(0)")
gemv_unit(U_WD, True, nxt=False)
def store_part(sb, region, oob_lt32):
    e("s_nop 7")
    for r in range(32):
        e(f"v_min_u32 v{V_O+r}, 0xfffffffe, v{V_O+r}")
    e(f"s_lshr_b32 s{S_T0}, s{sb}, 16")
    e(f"s_lshl_b32 s{S_T0}, s{S_T0}, 5")
    e(f"s_and_b32 s{S_T1}, s{sb}, 0xffff")
    e(f"s_lshl_b32 s{S_T1}, s{S_T1}, 9")
    e(f"s_add_u32 s{S_T0}, s{S_T0}, s{S_T1}")
    e(f"s_add_u32 s{S_T0}, s{S_T0}, {region}")
    if oob_lt32:
        e(f"s_cmp_lt_u32 s{S_WG}, 32")
        e(f"s_cselect_b32 s{S_T0}, 0x40000000, s{S_T0}")
    mask(M_N2)
    for t in range(8):
        e(f"buffer_store_dwordx4 v[{V_O+4*t}:{V_O+4*t+3}], v{V_ST}, {srd(SRD_WS)}, s{S_T0} offen sc1")
        vm_issue("st")
        if t < 7:
            e(f"s_add_u32 s{S_T0}, s{S_T0}, 16384")
    e("s_mov_b64 exec, -1")
store_part(S_BD, FPART, True)
stamp()
e("s_barrier")
stamp()
c("---- wo unit ----")
e(f"v_and_b32 v{V_T0}, 1, v{V_I}")
e(f"v_lshlrev_b32 v{V_T1}, 3, v{V_G}")
e(f"v_lshl_add_u32 v{V_T3}, v{V_T0}, 6, v{V_T1}")
e(f"ds_read_b64 v[{V_B}:{V_B+1}], v{V_T3} offset:{OL}")
e(f"ds_read_b64 v[{V_B+2}:{V_B+3}], v{V_T3} offset:{OL+32}")
e("s_waitcnt lgkmcnt(0)")
gemv_unit(U_WO, True, nxt=False)
stamp()
store_part(S_BO, SPART, False)
stamp()
if cfg.DIAG:
    e("s_waitcnt vmcnt(0)")
stamp()
stamp_flush(V_T0, V_T1, [(0,4,1),(0,5,0),(3,6,0),(4,7,0),(6,8,1),(6,9,0),(8,10,0),(11,11,0)])
e("s_endpgm")

in_stream[0] = False
lab("L_helper")
if cfg.PRIO:
    e(f"s_setprio {cfg.PRIO}")
c("================ helper waves ================")
S_HW = 4
H_T = 1
H_A, H_B, H_C, H_D, H_E = 2, 3, 4, 5, 6
H_XF = 8
H_NEG = 12
H_X = 16
H_R = 32
e(f"s_sub_u32 s{S_HW}, s{S_WAVE}, 4")
e(f"s_and_b32 s{S_T0}, s{S_HW}, 1")
e(f"s_lshl_b32 s{S_T1}, s{S_T0}, 11")
e(f"v_lshlrev_b32 v{H_A}, 5, v0")
e(f"buffer_load_dwordx4 v[{H_R}:{H_R+3}], v{H_A}, {srd(SRD_X)}, s{S_T1} offen")
e(f"buffer_load_dwordx4 v[{H_R+4}:{H_R+7}], v{H_A}, {srd(SRD_X)}, s{S_T1} offen offset:16")
e(f"s_lshl_b32 s{S_T2}, s{S_WG}, 3")
e(f"v_and_b32 v{H_B}, 1, v0")
e(f"v_lshlrev_b32 v{H_B}, 11, v{H_B}")
e(f"buffer_load_dwordx2 v[{H_XF}:{H_XF+1}], v{H_B}, {srd(SRD_X)}, s{S_T2} offen")
e(f"s_lshl_b32 s{S_T2}, s{S_HW}, 6")
e(f"v_add_u32 v{H_T}, s{S_T2}, v0")
for k in range(4):
    e(f"v_mov_b32 v{H_NEG+k}, -1")
e(f"v_mov_b32 v{H_C}, 0")
e(f"v_lshlrev_b32 v{H_D}, 2, v0")
e(f"v_and_b32 v{H_D}, 63, v{H_D}")
e(f"ds_write_b32 v{H_D}, v{H_C} offset:{FLG}")
if cfg.TLB:
    c("page pre-touch (helper 3)")
    e(f"s_cmp_lg_u32 s{S_HW}, 3")
    e("s_cbranch_scc1 L_h_notlb")
    e(f"v_lshlrev_b32 v{H_C}, {cfg.TLB}, v0")
    per = 64 << cfg.TLB
    k = 0
    for sr, nb in ((SRD_WQ, 8<<20), (SRD_GU, 7<<20), (SRD_K, 64<<20), (SRD_V, 64<<20), (SRD_WD, 7<<20), (SRD_WO, 8<<20), (SRD_WS, WS_BYTES)):
        for off in range(0, nb, per):
            e(f"s_mov_b32 s{S_T2}, {off}")
            e(f"buffer_load_dword v{H_R+16+(k%16)}, v{H_C}, {srd(sr)}, s{S_T2} offen")
            k += 1
    lab("L_h_notlb")
if cfg.CPF:
    c("code prefetch into L2 (helper 3)")
    e(f"s_cmp_lg_u32 s{S_HW}, 3")
    e("s_cbranch_scc1 L_h_nocpf")
    e("s_getpc_b64 s[30:31]")
    lab("L_pcref")
    e(f"s_sub_u32 s30, s30, L_pcref-{KNAME}")
    e("s_subb_u32 s31, s31, 0")
    e(f"v_lshlrev_b32 v{H_C}, 6, v0")
    for k in range(cfg.CPF):
        e(f"v_min_u32 v{H_D}, L_end-{KNAME}, v{H_C}")
        e(f"global_load_dword v{H_R+16+(k%16)}, v{H_D}, s[30:31]")
        e(f"v_add_u32 v{H_C}, 4096, v{H_C}")
    lab("L_h_nocpf")
c("bootstrap: WG 0 clears the flag area, then raises d_debug[0]")
e(f"v_lshlrev_b32 v{H_B}, 4, v{H_T}")
e(f"s_cmp_lg_u32 s{S_WG}, 0")
e("s_cbranch_scc1 L_h_noboot")
for k in range(4):
    e(f"s_mov_b32 s{S_T2}, {QFLAG + k*4096}")
    e(f"buffer_store_dwordx4 v[{H_NEG}:{H_NEG+3}], v{H_B}, {srd(SRD_WS)}, s{S_T2} offen sc1")
e("s_waitcnt vmcnt(0)")
e(f"s_lshl_b32 s{S_T2}, s{S_HW}, 2")
e(f"v_mov_b32 v{H_C}, 1")
e(f"v_mov_b32 v{H_D}, 0")
e("s_mov_b64 exec, 1")
e(f"buffer_store_dword v{H_C}, v{H_D}, {srd(SRD_DBG)}, s{S_T2} offen sc1")
e("s_mov_b64 exec, -1")
lab("L_h_noboot")
c("clear sentinels")
e(f"v_lshlrev_b32 v{H_B}, 4, v{H_T}")
e(f"s_lshl_b32 s{S_T2}, s{S_WG}, 12")
e(f"s_add_u32 s{S_T2}, s{S_T2}, {APART}")
e(f"buffer_store_dwordx4 v[{H_NEG}:{H_NEG+3}], v{H_B}, {srd(SRD_WS)}, s{S_T2} offen sc1")
e(f"s_lshl_b32 s{S_T2}, s{S_WG}, 12")
e(f"s_add_u32 s{S_T3}, s{S_T2}, {SPART}")
e(f"buffer_store_dwordx4 v[{H_NEG}:{H_NEG+3}], v{H_B}, {srd(SRD_WS)}, s{S_T3} offen sc1")
e(f"v_cmp_gt_u32 vcc, 224, v{H_T}")
e("s_nop 1")
for k in range(4):
    e(f"v_cndmask_b32 v{H_X+k}, 0, v{H_NEG}, vcc")
e(f"s_add_u32 s{S_T3}, s{S_T2}, {FPART}")
e(f"buffer_store_dwordx4 v[{H_X}:{H_X+3}], v{H_B}, {srd(SRD_WS)}, s{S_T3} offen sc1")
e(f"s_cmp_lg_u32 s{S_HW}, 0")
e("s_cbranch_scc1 L_h_skipml")
e(f"s_lshr_b32 s{S_T2}, s{S_WG}, 5")
e(f"s_lshl_b32 s{S_T2}, s{S_T2}, 11")
e(f"s_and_b32 s{S_T3}, s{S_WG}, 31")
e(f"s_lshl_b32 s{S_T3}, s{S_T3}, 3")
e(f"s_add_u32 s{S_T2}, s{S_T2}, s{S_T3}")
e(f"s_add_u32 s{S_T2}, s{S_T2}, {AML}")
e(f"v_lshlrev_b32 v{H_C}, 8, v0")
mask(0xFF)
e(f"buffer_store_dwordx2 v[{H_NEG}:{H_NEG+1}], v{H_C}, {srd(SRD_WS)}, s{S_T2} offen sc1")
e("s_mov_b64 exec, -1")
lab("L_h_skipml")

def dpp_reduce(op, regs, tmpbase, full=True):
    for pat in ["quad_perm:[1,0,3,2]", "quad_perm:[2,3,0,1]", "row_half_mirror", "row_mirror"]:
        if len(regs) < 3:
            e("s_nop 1")
        for r in regs:
            e(f"{op}_dpp v{r}, v{r}, v{r} {pat} row_mask:0xf bank_mask:0xf")
    swaps = ["v_permlane16_swap_b32"] + (["v_permlane32_swap_b32"] if full else [])
    for sw in swaps:
        for k, r in enumerate(regs):
            e(f"v_mov_b32 v{tmpbase+k}, v{r}")
        e("s_nop 1")
        for k, r in enumerate(regs):
            e(f"{sw} v{r}, v{tmpbase+k}")
        for k, r in enumerate(regs):
            e(f"{op} v{r}, v{r}, v{tmpbase+k}")

def bf16r(dst, src, tmp):
    e(f"v_cvt_pk_bf16_f32 v{tmp}, v{src}, v{src}")
    e(f"v_lshlrev_b32 v{dst}, 16, v{tmp}")

c("layernorm")
e("s_waitcnt vmcnt(3)")
e(f"s_mov_b32 s{S_T2}, 0xffff0000")
for k in range(8):
    e(f"v_lshlrev_b32 v{H_X+2*k}, 16, v{H_R+k}")
    e(f"v_and_b32 v{H_X+2*k+1}, s{S_T2}, v{H_R+k}")
e(f"v_add_f32 v{H_A}, v{H_X}, v{H_X+1}")
for k in range(2, 16):
    e(f"v_add_f32 v{H_A}, v{H_A}, v{H_X+k}")
dpp_reduce("v_add_f32", [H_A], H_B)
e(f"v_mul_f32 v{H_A}, 0x3a800000, v{H_A}")
e(f"v_mov_b32 v{H_C}, 0")
for k in range(16):
    e(f"v_sub_f32 v{H_D}, v{H_X+k}, v{H_A}")
    e(f"v_fmac_f32 v{H_C}, v{H_D}, v{H_D}")
dpp_reduce("v_add_f32", [H_C], H_B)
e(f"v_mul_f32 v{H_C}, 0x3a800000, v{H_C}")
bf16r(H_A, H_A, H_B)
bf16r(H_C, H_C, H_B)
e(f"v_add_f32 v{H_C}, 0x3727c5ac, v{H_C}")
bf16r(H_C, H_C, H_B)
e(f"v_sqrt_f32 v{H_C}, v{H_C}")
e("s_nop 0")
bf16r(H_C, H_C, H_B)
e(f"v_rcp_f32 v{H_D}, v{H_C}")
e("s_nop 0")
for k in range(0, 16, 2):
    a, b = H_X + k, H_X + k + 1
    e(f"v_sub_f32 v{a}, v{a}, v{H_A}")
    e(f"v_sub_f32 v{b}, v{b}, v{H_A}")
    e(f"v_cvt_pk_bf16_f32 v{H_B}, v{a}, v{b}")
    e(f"v_lshlrev_b32 v{a}, 16, v{H_B}")
    e(f"v_and_b32 v{b}, s{S_T2}, v{H_B}")
    for x in (a, b):
        e(f"v_mul_f32 v{H_E}, v{x}, v{H_D}")
        e(f"v_fma_f32 v{x}, -v{H_E}, v{H_C}, v{x}")
        e(f"v_fma_f32 v{x}, v{x}, v{H_D}, v{H_E}")
    e(f"v_cvt_pk_bf16_f32 v{H_R+k//2}, v{a}, v{b}")
e(f"v_lshlrev_b32 v{H_A}, 5, v0")
e(f"v_add_u32 v{H_A}, s{S_T1}, v{H_A}")
e(f"ds_write_b128 v{H_A}, v[{H_R}:{H_R+3}] offset:{XN}")
e(f"ds_write_b128 v{H_A}, v[{H_R+4}:{H_R+7}] offset:{XN+16}")
e("s_waitcnt lgkmcnt(0)")
stamp()
e("s_barrier")
e("s_barrier")
stamp()

def red_publish(red_off, soff_emit, cnt_off_emit, skip_store_if=None, tag=""):
    e(f"v_lshlrev_b32 v{H_A}, 4, v0")
    for w in range(4):
        e(f"ds_read_b128 v[{H_R+4*w}:{H_R+4*w+3}], v{H_A} offset:{red_off + w*1024}")
    e("s_waitcnt lgkmcnt(0)")
    for k in range(4):
        e(f"v_add_f32 v{H_R+k}, v{H_R+k}, v{H_R+4+k}")
        e(f"v_add_f32 v{H_R+8+k}, v{H_R+8+k}, v{H_R+12+k}")
    for k in range(4):
        e(f"v_add_f32 v{H_R+k}, v{H_R+k}, v{H_R+8+k}")
    soff_emit()
    if skip_store_if:
        skip_store_if("L_skipst" + tag)
    e(f"buffer_store_dwordx4 v[{H_R}:{H_R+3}], v{H_B}, {srd(SRD_WS)}, s{S_T2} offen sc1")
    if skip_store_if:
        lab("L_skipst" + tag)
    e(f"v_mov_b32 v{H_A}, 0")
    lab("L_boot" + tag)
    e(f"buffer_load_dwordx4 v[{H_R+4}:{H_R+7}], v{H_A}, {srd(SRD_DBG)}, 0 offen sc1")
    e("s_waitcnt vmcnt(0)")
    e(f"v_and_b32 v{H_R+4}, v{H_R+4}, v{H_R+5}")
    e(f"v_and_b32 v{H_R+6}, v{H_R+6}, v{H_R+7}")
    e(f"v_and_b32 v{H_R+4}, v{H_R+4}, v{H_R+6}")
    e(f"v_cmp_eq_u32 vcc, 0, v{H_R+4}")
    e(f"s_cbranch_vccz L_bootd{tag}")
    e("s_sleep 8")
    e(f"s_sub_u32 s{S_SPIN}, s{S_SPIN}, 1")
    e(f"s_cmp_lg_u32 s{S_SPIN}, 0")
    e(f"s_cbranch_scc1 L_boot{tag}")
    e(f"s_mov_b32 s{S_SPIN}, 1")
    lab("L_bootd" + tag)
    cnt_off_emit()
    e(f"v_mov_b32 v{H_A}, 0")
    e(f"buffer_store_dword v{H_A}, v{H_B}, {srd(SRD_WS)}, s{S_T2} offen sc1")
    e("s_mov_b64 exec, -1")

c("publish q partial (helper 0)")
e(f"s_cmp_lg_u32 s{S_HW}, 0")
e("s_cbranch_scc1 L_h_noq")
def q_soff():
    e(f"v_and_b32 v{H_B}, 31, v0")
    e(f"v_lshlrev_b32 v{H_B}, 4, v{H_B}")
    e(f"v_lshrrev_b32 v{H_C}, 5, v0")
    e(f"v_lshl_add_u32 v{H_B}, v{H_C}, 14, v{H_B}")
    e(f"s_and_b32 s{S_T2}, s{S_WG}, 7")
    e(f"s_lshl_b32 s{S_T2}, s{S_T2}, 15")
    e(f"s_lshr_b32 s{S_T3}, s{S_WG}, 3")
    e(f"s_lshl_b32 s{S_T3}, s{S_T3}, 9")
    e(f"s_add_u32 s{S_T2}, s{S_T2}, s{S_T3}")
    if QPART:
        e(f"s_add_u32 s{S_T2}, s{S_T2}, {QPART}")
def q_cnt():
    e(f"s_lshl_b32 s{S_T2}, s{S_WG}, 2")
    e(f"s_add_u32 s{S_T2}, s{S_T2}, {QFLAG}")
    e(f"v_lshlrev_b32 v{H_B}, 10, v0")
    mask(0xFF)
red_publish(REDQ, q_soff, q_cnt, None, "q")
e("s_branch L_h_q2")
lab("L_h_noq")
e("s_waitcnt vmcnt(0)")
lab("L_h_q2")
stamp()
e("s_barrier")
c("publish gate/up partial (helper 1)")
e(f"s_cmp_lg_u32 s{S_HW}, 1")
e("s_cbranch_scc1 L_h_nog")
def g_soff():
    e(f"v_and_b32 v{H_B}, 31, v0")
    e(f"v_lshlrev_b32 v{H_B}, 4, v{H_B}")
    e(f"v_lshrrev_b32 v{H_C}, 5, v0")
    e(f"v_mul_u32_u24 v{H_C}, 14336, v{H_C}")
    e(f"v_add_u32 v{H_B}, v{H_C}, v{H_B}")
    e(f"s_lshr_b32 s{S_T3}, s{S_WG}, 2")
    e(f"s_cmp_ge_u32 s{S_T3}, 28")
    e(f"s_cselect_b32 s{S_T2}, 28, 0")
    e(f"s_sub_u32 s{S_T3}, s{S_T3}, s{S_T2}")
    e(f"s_lshr_b32 s{S_T2}, s{S_WG}, 2")
    e(f"s_cmp_ge_u32 s{S_T2}, 28")
    e(f"s_cselect_b32 s{S_T2}, 4, 0")
    e(f"s_and_b32 s{S_T4}, s{S_WG}, 3")
    e(f"s_add_u32 s{S_T2}, s{S_T2}, s{S_T4}")
    e(f"s_mul_i32 s{S_T2}, s{S_T2}, {2*14336}")
    e(f"s_lshl_b32 s{S_T3}, s{S_T3}, 9")
    e(f"s_add_u32 s{S_T2}, s{S_T2}, s{S_T3}")
    e(f"s_add_u32 s{S_T2}, s{S_T2}, {GUPART}")
def g_skip(l):
    e(f"s_cmp_ge_u32 s{S_WG}, 224")
    e(f"s_cbranch_scc1 {l}")
def g_cnt():
    e(f"s_lshl_b32 s{S_T2}, s{S_WG}, 2")
    e(f"s_add_u32 s{S_T2}, s{S_T2}, {HFLAG}")
    e(f"v_lshlrev_b32 v{H_B}, 10, v0")
    mask(0xF)
red_publish(REDG, g_soff, g_cnt, g_skip, "g")
lab("L_h_nog")

def lds_flag_wait(idx, name):
    lab(f"L_{name}_w")
    e(f"v_mov_b32 v{H_A}, 0")
    e(f"ds_read_b32 v{H_B}, v{H_A} offset:{FLG + 4*idx}")
    e("s_waitcnt lgkmcnt(0)")
    e(f"v_readfirstlane_b32 s{S_T2}, v{H_B}")
    e(f"s_cmp_lg_u32 s{S_T2}, 0")
    e(f"s_cbranch_scc1 L_{name}_d")
    e("s_sleep 1")
    e(f"s_sub_u32 s{S_SPIN}, s{S_SPIN}, 1")
    e(f"s_cmp_lg_u32 s{S_SPIN}, 0")
    e(f"s_cbranch_scc1 L_{name}_w")
    e(f"s_mov_b32 s{S_SPIN}, 1")
    e(f"s_branch L_{name}_d")

def lds_flag_set(idx):
    e(f"v_mov_b32 v{H_A}, 0")
    e(f"v_mov_b32 v{H_B}, 1")
    e(f"ds_write_b32 v{H_A}, v{H_B} offset:{FLG + 4*idx}")

c("wait for q counter")
e(f"s_cmp_lg_u32 s{S_HW}, 0")
e("s_cbranch_scc1 L_qf_w")
e(f"s_lshr_b32 s{S_T3}, s{S_WG}, 5")
e(f"s_and_b32 s{S_T3}, s{S_T3}, 3")
e(f"s_lshl_b32 s{S_T3}, s{S_T3}, 8")
e(f"s_and_b32 s{S_T2}, s{S_WG}, 7")
e(f"s_lshl_b32 s{S_T2}, s{S_T2}, 10")
e(f"s_add_u32 s{S_T3}, s{S_T3}, s{S_T2}")
e(f"s_add_u32 s{S_T3}, s{S_T3}, {QFLAG}")
e(f"v_lshlrev_b32 v{H_A}, 2, v0")
lab("L_qpoll")
e(f"buffer_load_dword v{H_B}, v{H_A}, {srd(SRD_WS)}, s{S_T3} offen sc1")
e("s_waitcnt vmcnt(0)")
e(f"v_cmp_eq_u32 vcc, -1, v{H_B}")
e("s_cbranch_vccz L_qpoll_d")
e("s_sleep 4")
e(f"s_sub_u32 s{S_SPIN}, s{S_SPIN}, 1")
e(f"s_cmp_lg_u32 s{S_SPIN}, 0")
e("s_cbranch_scc1 L_qpoll")
e(f"s_mov_b32 s{S_SPIN}, 1")
lab("L_qpoll_d")
lds_flag_set(0)
e("s_branch L_qf_d")
lds_flag_wait(0, "qf")
lab("L_qf_d")
stamp()
c("gather q")
e(f"s_lshr_b32 s{S_T2}, s{S_WG}, 5")
e(f"s_lshl_b32 s{S_T2}, s{S_T2}, 12")
e(f"v_lshlrev_b32 v{H_A}, 4, v{H_T}")
for ks in range(8):
    e(f"s_add_u32 s{S_T3}, s{S_T2}, {QPART + ks*32768}")
    e(f"buffer_load_dwordx4 v[{H_R+4*ks}:{H_R+4*ks+3}], v{H_A}, {srd(SRD_WS)}, s{S_T3} offen sc1")
e("s_waitcnt vmcnt(0)")
for ks in range(1, 8):
    for k in range(4):
        e(f"v_add_f32 v{H_R+k}, v{H_R+k}, v{H_R+4*ks+k}")
e(f"v_cvt_pk_bf16_f32 v{H_R}, v{H_R}, v{H_R+1}")
e(f"v_cvt_pk_bf16_f32 v{H_R+1}, v{H_R+2}, v{H_R+3}")
e(f"v_lshlrev_b32 v{H_A}, 3, v{H_T}")
e(f"ds_write_b64 v{H_A}, v[{H_R}:{H_R+1}] offset:{QL}")
e("s_waitcnt lgkmcnt(0)")
stamp()
e("s_barrier")
c("wait for h counter (helper 0), h gather (helper 1)")
e(f"s_cmp_eq_u32 s{S_HW}, 1")
e("s_cbranch_scc1 L_hf_w")
e(f"s_cmp_lg_u32 s{S_HW}, 0")
e("s_cbranch_scc1 L_h_b5")
e(f"v_lshlrev_b32 v{H_A}, 4, v0")
e(f"s_and_b32 s{S_T2}, s{S_WG}, 3")
e(f"s_lshl_b32 s{S_T2}, s{S_T2}, 10")
e(f"s_add_u32 s{S_T2}, s{S_T2}, {HFLAG}")
lab("L_hpoll")
e(f"buffer_load_dwordx4 v[{H_R}:{H_R+3}], v{H_A}, {srd(SRD_WS)}, s{S_T2} offen sc1")
e("s_waitcnt vmcnt(0)")
e(f"v_max3_u32 v{H_B}, v{H_R}, v{H_R+1}, v{H_R+2}")
e(f"v_max_u32 v{H_B}, v{H_B}, v{H_R+3}")
e(f"v_cmp_eq_u32 vcc, -1, v{H_B}")
e("s_cbranch_vccz L_hpoll_d")
e("s_sleep 16")
e(f"s_sub_u32 s{S_SPIN}, s{S_SPIN}, 1")
e(f"s_cmp_lg_u32 s{S_SPIN}, 0")
e("s_cbranch_scc1 L_hpoll")
e(f"s_mov_b32 s{S_SPIN}, 1")
lab("L_hpoll_d")
lds_flag_set(1)
e("s_branch L_h_b5")
lds_flag_wait(1, "hf")
lab("L_hf_d")
e(f"s_max_u32 s{S_T2}, s{S_WG}, 32")
e(f"s_sub_u32 s{S_T2}, s{S_T2}, 32")
e(f"s_lshr_b32 s{S_T2}, s{S_T2}, 1")
e(f"s_lshl_b32 s{S_T2}, s{S_T2}, 7")
e(f"v_and_b32 v{H_A}, 31, v0")
e(f"v_lshlrev_b32 v{H_A}, 2, v{H_A}")
e(f"v_lshrrev_b32 v{H_B}, 5, v0")
e(f"v_mul_u32_u24 v{H_B}, 14336, v{H_B}")
e(f"v_add_u32 v{H_A}, v{H_A}, v{H_B}")
for m in range(8):
    e(f"s_add_u32 s{S_T3}, s{S_T2}, {GUPART + m*2*14336}")
    e(f"buffer_load_dword v{H_R+m}, v{H_A}, {srd(SRD_WS)}, s{S_T3} offen sc1")
e("s_waitcnt vmcnt(0)")
for m in (0, 4):
    e(f"v_add_f32 v{H_R+m}, v{H_R+m}, v{H_R+m+1}")
    e(f"v_add_f32 v{H_R+m+2}, v{H_R+m+2}, v{H_R+m+3}")
    e(f"v_add_f32 v{H_R+m}, v{H_R+m}, v{H_R+m+2}")
    bf16r(H_R + m, H_R + m, H_B)
def silu(dst, src, t):
    e(f"v_mul_f32 v{t}, 0xbfb8aa3b, v{src}")
    e(f"v_exp_f32 v{t}, v{t}")
    e("s_nop 0")
    e(f"v_add_f32 v{t}, 1.0, v{t}")
    e(f"v_rcp_f32 v{t}, v{t}")
    e("s_nop 0")
    e(f"v_mul_f32 v{dst}, v{src}, v{t}")
silu(H_R, H_R, H_B)
bf16r(H_R, H_R, H_B)
e(f"v_mul_f32 v{H_R}, v{H_R}, v{H_R+4}")
e(f"v_cvt_pk_bf16_f32 v{H_R}, v{H_R}, v{H_R}")
e(f"v_lshlrev_b32 v{H_A}, 1, v0")
e(f"ds_write_b16 v{H_A}, v{H_R} offset:{HL}")
e("s_waitcnt lgkmcnt(0)")
lab("L_h_b5")
e("s_waitcnt lgkmcnt(0)")
stamp()
def spin_tail(back, sl=1):
    e(f"s_sleep {sl}")
    e(f"s_sub_u32 s{S_SPIN}, s{S_SPIN}, 1")
    e(f"s_cmp_lg_u32 s{S_SPIN}, 0")
    e(f"s_cbranch_scc1 {back}")
    e(f"s_mov_b32 s{S_SPIN}, 1")
def mailbox(region, name, sl):
    e(f"s_lshl_b32 s{S_T2}, s{S_WG}, 12")
    e(f"s_add_u32 s{S_T2}, s{S_T2}, {region}")
    e(f"v_lshlrev_b32 v{H_A}, 4, v0")
    lab(f"L_{name}")
    for k in range(4):
        e(f"buffer_load_dwordx4 v[{H_R+4*k}:{H_R+4*k+3}], v{H_A}, {srd(SRD_WS)}, s{S_T2} offen offset:{1024*k} sc1")
    e("s_waitcnt vmcnt(0)")
    e(f"v_max3_u32 v{H_D}, v{H_R}, v{H_R+1}, v{H_R+2}")
    e(f"v_max3_u32 v{H_E}, v{H_R+3}, v{H_R+4}, v{H_R+5}")
    e(f"v_max3_u32 v{H_D}, v{H_D}, v{H_R+6}, v{H_R+7}")
    e(f"v_max3_u32 v{H_E}, v{H_E}, v{H_R+8}, v{H_R+9}")
    e(f"v_max3_u32 v{H_D}, v{H_D}, v{H_R+10}, v{H_R+11}")
    e(f"v_max3_u32 v{H_E}, v{H_E}, v{H_R+12}, v{H_R+13}")
    e(f"v_max3_u32 v{H_D}, v{H_D}, v{H_R+14}, v{H_R+15}")
    e(f"v_max_u32 v{H_D}, v{H_D}, v{H_E}")
    e(f"v_cmp_eq_u32 vcc, -1, v{H_D}")
    e(f"s_cbranch_vccz L_{name}_d")
    spin_tail(f"L_{name}", sl)
    lab(f"L_{name}_d")
    for k in range(4):
        e(f"v_add_f32 v{H_R+k}, v{H_R+k}, v{H_R+4+k}")
        e(f"v_add_f32 v{H_R+8+k}, v{H_R+8+k}, v{H_R+12+k}")
    for k in range(4):
        e(f"v_add_f32 v{H_R+k}, v{H_R+k}, v{H_R+8+k}")
    regs = [H_R + k for k in range(4)]
    for pat in ["quad_perm:[2,3,0,1]", "row_ror:4", "row_ror:8"]:
        for r in regs:
            e(f"v_add_f32_dpp v{r}, v{r}, v{r} {pat} row_mask:0xf bank_mask:0xf")
    for sw in ["v_permlane16_swap_b32", "v_permlane32_swap_b32"]:
        for k, r in enumerate(regs):
            e(f"v_mov_b32 v{H_X+k}, v{r}")
        e("s_nop 1")
        for k, r in enumerate(regs):
            e(f"{sw} v{r}, v{H_X+k}")
        for k, r in enumerate(regs):
            e(f"v_add_f32 v{r}, v{r}, v{H_X+k}")
stamp()
e("s_barrier")
stamp()
c("combine 4 waves' attention partials, publish")
e(f"v_lshrrev_b32 v{H_A}, 5, v{H_T}")
e(f"v_lshlrev_b32 v{H_B}, 5, v{H_A}")
e(f"ds_read_b128 v[{H_X}:{H_X+3}], v{H_B} offset:{AMLL}")
e(f"ds_read_b128 v[{H_X+4}:{H_X+7}], v{H_B} offset:{AMLL+16}")
e(f"v_lshlrev_b32 v{H_C}, 4, v{H_T}")
for w in range(4):
    e(f"ds_read_b128 v[{H_R+4*w}:{H_R+4*w+3}], v{H_C} offset:{AO + w*4096}")
e(f"s_mov_b32 s{S_T3}, {LOG2E:#x}")
e("s_waitcnt lgkmcnt(4)")
e(f"v_max3_f32 v{H_D}, v{H_X}, v{H_X+2}, v{H_X+4}")
e(f"v_max_f32 v{H_D}, v{H_D}, v{H_X+6}")
for w in range(4):
    e(f"v_sub_f32 v{H_X+2*w}, v{H_X+2*w}, v{H_D}")
    e(f"v_mul_f32 v{H_X+2*w}, s{S_T3}, v{H_X+2*w}")
    e(f"v_exp_f32 v{H_X+2*w}, v{H_X+2*w}")
e("s_nop 0")
e(f"v_mul_f32 v{H_E}, v{H_X}, v{H_X+1}")
for w in range(1, 4):
    e(f"v_fmac_f32 v{H_E}, v{H_X+2*w}, v{H_X+2*w+1}")
e("s_waitcnt lgkmcnt(0)")
for k in range(4):
    e(f"v_mul_f32 v{H_R+k}, v{H_X}, v{H_R+k}")
for w in range(1, 4):
    for k in range(4):
        e(f"v_fmac_f32 v{H_R+k}, v{H_X+2*w}, v{H_R+4*w+k}")
for k in range(4):
    e(f"v_min_u32 v{H_R+k}, 0xfffffffe, v{H_R+k}")
e(f"v_min_u32 v{H_D}, 0xfffffffe, v{H_D}")
e(f"v_min_u32 v{H_E}, 0xfffffffe, v{H_E}")
e(f"s_lshl_b32 s{S_T2}, s{S_WG}, 12")
e(f"s_add_u32 s{S_T2}, s{S_T2}, {APART}")
e(f"buffer_store_dwordx4 v[{H_R}:{H_R+3}], v{H_C}, {srd(SRD_WS)}, s{S_T2} offen sc1")
e(f"s_lshr_b32 s{S_T2}, s{S_WG}, 5")
e(f"s_lshl_b32 s{S_T2}, s{S_T2}, 11")
e(f"s_and_b32 s{S_T3}, s{S_WG}, 31")
e(f"s_lshl_b32 s{S_T3}, s{S_T3}, 3")
e(f"s_add_u32 s{S_T2}, s{S_T2}, s{S_T3}")
e(f"s_add_u32 s{S_T2}, s{S_T2}, {AML}")
e(f"v_lshlrev_b32 v{H_B}, 8, v{H_A}")
assert H_E == H_D + 1
e(f"v_mov_b32 v{H_X+8}, v{H_D}")
e(f"v_mov_b32 v{H_X+9}, v{H_E}")
mask(0x0000000100000001)
e(f"buffer_store_dwordx2 v[{H_X+8}:{H_X+9}], v{H_B}, {srd(SRD_WS)}, s{S_T2} offen sc1")
e("s_mov_b64 exec, -1")
stamp()
c("level-1 gather")
e(f"s_lshr_b32 s{S_T0}, s{S_HW}, 1")
e(f"s_lshl_b32 s{S_T0}, s{S_T0}, 2")
e(f"s_lshr_b32 s{S_T1}, s{S_WG}, 6")
e(f"s_add_u32 s{S_T0}, s{S_T0}, s{S_T1}")
e(f"s_lshr_b32 s{S_T1}, s{S_WG}, 3")
e(f"s_and_b32 s{S_T1}, s{S_T1}, 7")
e(f"s_lshl_b32 s{S_T2}, s{S_T0}, 17")
e(f"s_lshl_b32 s{S_T3}, s{S_T1}, 9")
e(f"s_add_u32 s{S_T2}, s{S_T2}, s{S_T3}")
e(f"s_lshr_b32 s{S_T3}, s{S_WG}, 1")
e(f"s_and_b32 s{S_T3}, s{S_T3}, 3")
e(f"s_lshl_b32 s{S_T3}, s{S_T3}, 7")
e(f"s_add_u32 s{S_T2}, s{S_T2}, s{S_T3}")
e(f"s_and_b32 s{S_T3}, s{S_HW}, 1")
e(f"s_lshl_b32 s{S_T3}, s{S_T3}, 6")
e(f"s_add_u32 s{S_T2}, s{S_T2}, s{S_T3}")
e(f"s_add_u32 s{S_T2}, s{S_T2}, {APART}")
e(f"s_lshl_b32 s{S_T3}, s{S_T0}, 11")
e(f"s_lshl_b32 s{S_T1}, s{S_T1}, 8")
e(f"s_add_u32 s{S_T3}, s{S_T3}, s{S_T1}")
e(f"s_add_u32 s{S_T3}, s{S_T3}, {AML}")
e(f"v_and_b32 v{H_A}, 31, v0")
e(f"v_lshrrev_b32 v{H_B}, 5, v0")
e(f"v_lshlrev_b32 v{H_C}, 3, v{H_A}")
e(f"v_lshlrev_b32 v{H_B}, 5, v{H_B}")
e(f"v_lshl_add_u32 v{H_B}, v{H_A}, 12, v{H_B}")
lab("L_l1f")
e(f"buffer_load_dwordx2 v[{H_R+8}:{H_R+9}], v{H_C}, {srd(SRD_WS)}, s{S_T3} offen sc1")
e("s_waitcnt vmcnt(0)")
e(f"v_max_u32 v{H_D}, v{H_R+8}, v{H_R+9}")
e(f"v_cmp_eq_u32 vcc, -1, v{H_D}")
e(f"s_bcnt1_i32_b64 s{S_T1}, vcc")
e(f"s_cmp_le_u32 s{S_T1}, {cfg.L1TH}")
e("s_cbranch_scc1 L_l1poll")
spin_tail("L_l1f", 2)
lab("L_l1poll")
e(f"buffer_load_dwordx4 v[{H_R}:{H_R+3}], v{H_B}, {srd(SRD_WS)}, s{S_T2} offen sc1")
e(f"buffer_load_dwordx4 v[{H_R+4}:{H_R+7}], v{H_B}, {srd(SRD_WS)}, s{S_T2} offen offset:16 sc1")
e(f"buffer_load_dwordx2 v[{H_R+8}:{H_R+9}], v{H_C}, {srd(SRD_WS)}, s{S_T3} offen sc1")
e("s_waitcnt vmcnt(0)")
e(f"v_max3_u32 v{H_D}, v{H_R}, v{H_R+1}, v{H_R+2}")
e(f"v_max3_u32 v{H_E}, v{H_R+3}, v{H_R+4}, v{H_R+5}")
e(f"v_max3_u32 v{H_D}, v{H_D}, v{H_R+6}, v{H_R+7}")
e(f"v_max3_u32 v{H_E}, v{H_E}, v{H_R+8}, v{H_R+9}")
e(f"v_max_u32 v{H_D}, v{H_D}, v{H_E}")
e(f"v_cmp_eq_u32 vcc, -1, v{H_D}")
e("s_cbranch_vccz L_l1poll_d")
spin_tail("L_l1poll", 1)
lab("L_l1poll_d")
stamp()
e(f"v_mov_b32 v{H_D}, v{H_R+8}")
dpp_reduce("v_max_f32", [H_D], H_X, full=False)
e(f"s_mov_b32 s{S_T1}, {LOG2E:#x}")
e(f"v_sub_f32 v{H_D}, v{H_R+8}, v{H_D}")
e(f"v_mul_f32 v{H_D}, s{S_T1}, v{H_D}")
e(f"v_exp_f32 v{H_D}, v{H_D}")
e("s_nop 0")
for k in range(8):
    e(f"v_mul_f32 v{H_R+k}, v{H_D}, v{H_R+k}")
e(f"v_mul_f32 v{H_R+8}, v{H_D}, v{H_R+9}")
dpp_reduce("v_add_f32", [H_R + k for k in range(9)], H_X, full=False)
e(f"v_rcp_f32 v{H_D}, v{H_R+8}")
e("s_nop 0")
for k in range(8):
    e(f"v_mul_f32 v{H_R+k}, v{H_D}, v{H_R+k}")
for k in range(4):
    e(f"v_cvt_pk_bf16_f32 v{H_R+k}, v{H_R+2*k}, v{H_R+2*k+1}")
e(f"s_lshl_b32 s{S_T1}, s{S_HW}, 5")
e(f"v_lshrrev_b32 v{H_A}, 5, v0")
e(f"v_lshlrev_b32 v{H_A}, 4, v{H_A}")
e(f"v_add_u32 v{H_A}, s{S_T1}, v{H_A}")
mask(0x0000000100000001)
e(f"ds_write_b128 v{H_A}, v[{H_R}:{H_R+3}] offset:{OL}")
e("s_mov_b64 exec, -1")
e("s_waitcnt lgkmcnt(0)")
stamp()
e("s_barrier")
c("f gather (helper 2)")
e(f"s_cmp_lg_u32 s{S_HW}, 2")
e("s_cbranch_scc1 L_h_nof")
mailbox(FPART, "fmb", cfg.FSL)
for k in range(4):
    bf16r(H_R + k, H_R + k, H_B)
    silu(H_R + k, H_R + k, H_B)
    bf16r(H_R + k, H_R + k, H_B)
mask(0x3)
e(f"ds_write_b128 v{H_A}, v[{H_R}:{H_R+3}] offset:{G2L}")
e("s_mov_b64 exec, -1")
e("s_waitcnt lgkmcnt(0)")
lds_flag_set(2)
e("s_branch L_h_end")
lab("L_h_nof")
c("level-2")
e(f"s_cmp_lg_u32 s{S_HW}, 0")
e("s_cbranch_scc1 L_h_end")
e(f"v_and_b32 v{H_C}, 1, v0")
mailbox(SPART, "smb", 1)
stamp()
lds_flag_wait(2, "g2f")
lab("L_g2f_d")
e(f"v_lshlrev_b32 v{H_B}, 4, v{H_C}")
e(f"ds_read_b128 v[{H_X+8}:{H_X+11}], v{H_B} offset:{G2L}")
e(f"s_mov_b32 s{S_T2}, 0xffff0000")
e(f"v_lshlrev_b32 v{H_X}, 16, v{H_XF}")
e(f"v_and_b32 v{H_X+1}, s{S_T2}, v{H_XF}")
e(f"v_lshlrev_b32 v{H_X+2}, 16, v{H_XF+1}")
e(f"v_and_b32 v{H_X+3}, s{S_T2}, v{H_XF+1}")
e("s_waitcnt lgkmcnt(0)")
for k in range(4):
    bf16r(H_R + k, H_R + k, H_B)
    e(f"v_mul_f32 v{H_R+k}, v{H_R+k}, v{H_X+8+k}")
    bf16r(H_R + k, H_R + k, H_B)
    e(f"v_add_f32 v{H_R+k}, v{H_X+k}, v{H_R+k}")
e(f"v_cvt_pk_bf16_f32 v{H_R}, v{H_R}, v{H_R+1}")
e(f"v_cvt_pk_bf16_f32 v{H_R+1}, v{H_R+2}, v{H_R+3}")
e(f"s_lshl_b32 s{S_T0}, s{S_WG}, 3")
e(f"v_lshlrev_b32 v{H_A}, 11, v{H_C}")
mask(0x3)
e(f"buffer_store_dwordx2 v[{H_R}:{H_R+1}], v{H_A}, {srd(SRD_OUT)}, s{S_T0} offen")
e("s_mov_b64 exec, -1")
stamp()
if cfg.DIAG == 2:
    stamp_flush(H_A, H_B, [(4,12,0),(9,13,0),(11,14,0),(12,15,0)])
if cfg.DIAG == 3 and cfg.PROBE >= 0:
    e(f"s_cmp_lg_u32 s{S_WG}, {cfg.PWG}")
    e("s_cbranch_scc1 L_h_end")
    e(f"s_sub_u32 s{S_T0}, s{S_STAMP0+cfg.PROBE}, s100")
    e(f"s_add_u32 s{S_T0}, s{S_T0}, s{S_STAMP0+12}")
    lab("L_probe")
    e("s_memrealtime s[30:31]")
    e("s_waitcnt lgkmcnt(0)")
    e(f"s_sub_u32 s{S_T1}, s30, s{S_T0}")
    e(f"s_cmp_lt_i32 s{S_T1}, 0")
    e("s_cbranch_scc1 L_probe")
lab("L_h_end")
if cfg.DIAG == 1:
    stamp_flush(H_A, H_B)
lab("L_end")
e("s_endpgm")

L.append('.section .rodata,"a"')
L.append(".p2align 6")
L.append(f".amdhsa_kernel {KNAME}")
L.append(f"  .amdhsa_next_free_vgpr {NV_STREAM}")
L.append("  .amdhsa_next_free_sgpr 102")
L.append(f"  .amdhsa_accum_offset {NV_STREAM}")
L.append("  .amdhsa_group_segment_fixed_size 0")
L.append("  .amdhsa_kernarg_size 96")
L.append("  .amdhsa_user_sgpr_count 2")
L.append("  .amdhsa_user_sgpr_kernarg_segment_ptr 1")
L.append("  .amdhsa_system_sgpr_workgroup_id_x 1")
L.append(".end_amdhsa_kernel")
open(sys.argv[1], "w").write("\n".join(L) + "\n")
print("wrote", sys.argv[1], len(L), "lines; LDS", LDS_BYTES)
```

```python
import sys

KNAME = "recurrent_scan__gqa_block_cached__swiglu_ffn__decode_kernel"

class Cfg:
    R = 4
    NT = False
    DIAG = False
    SPIN = 1 << 22
    D = 2
    PAT = 2
    DH = 0
    L1TH = 8
    VS = 0
    FSL = 2
    D2 = 0
    U2 = 14
    TLB = 0
    PRIO = 2
    PROBE = -1
    PWG = 0
    CPF = 0
    ROT = 1
    LATE = 0
    NS = 6
    ND = 4
    NP = 4

cfg = Cfg()
for a in sys.argv[2:]:
    k, v = a.split("=")
    setattr(cfg, k, int(v))

R = cfg.R
L = []
def e(s): L.append("    " + s)
def lab(s): L.append(s + ":")
def c(s): L.append("    ; " + s)

QPART = 0x000000
GUPART = 0x040000
APART = 0x080000
AML = 0x180000
SPART = 0x200000
FPART = 0x300000
SFLAG = 0x190000
QFLAG = 0x1A0000
HFLAG = 0x1A2000
CNT = 0x1A3000
TSOFF = 0x400000
WS_BYTES = 0x500000

XN = 0
REDQ = XN + 4096
REDG = REDQ + 4096
QL = REDG + 4096
AO = QL + 2048
AMLL = AO + 16384
HL = AMLL + 256
OL = HL + 128
G2L = OL + 128
FLG = G2L + 64
RING = 32768
assert FLG + 64 <= RING
LDS_BYTES = RING + 4 * R * 8192
assert LDS_BYTES <= 163840, LDS_BYTES

S_WG = 2
S_WAVE = 3
SRD_X, SRD_K, SRD_V, SRD_WQ, SRD_WO, SRD_GU, SRD_WD, SRD_OUT, SRD_DBG, SRD_WS, SRD_FP = \
    [56 + 4 * i for i in range(11)]
def srd(b): return f"s[{b}:{b+3}]"
S_WB = 4
S_T0, S_T1, S_T2, S_T3 = 5, 6, 7, 8
S_BQ, S_BG, S_BKV, S_BD, S_BO = 9, 10, 11, 12, 13
S_SPIN = 14
S_T4 = 15
S_STAMP0 = 36
nstamp = [0]
in_stream = [True]

def stamp(kind=0):
    if not cfg.DIAG:
        return
    if in_stream[0] and cfg.VS != kind and kind != 2:
        return
    if in_stream[0] and cfg.DIAG == 3:
        return
    i = nstamp[0]
    assert i < 14
    e("s_memrealtime s[30:31]")
    e("s_waitcnt lgkmcnt(0)")
    e(f"s_mov_b32 s{S_STAMP0+i}, s30")
    nstamp[0] += 1

def stamp_flush(vtmp0, vtmp1, dbgmap=None):
    if not cfg.DIAG:
        return
    n = nstamp[0]
    if cfg.DIAG == 3:
        nstamp[0] = 0
        return
    if cfg.DIAG == 2:
        e("s_mov_b64 exec, 1")
        e(f"v_mov_b32 v{vtmp0}, 0")
        for (i, word, inv) in dbgmap:
            if inv:
                e(f"s_not_b32 s30, s{S_STAMP0+i}")
            else:
                e(f"s_mov_b32 s30, s{S_STAMP0+i}")
            e(f"v_mov_b32 v{vtmp1}, s30")
            e(f"buffer_atomic_umax v{vtmp1}, v{vtmp0}, {srd(SRD_DBG)}, 0 offen offset:{4*word} sc1")
            e("s_nop 1")
        e("s_mov_b64 exec, -1")
        nstamp[0] = 0
        return
    e(f"s_lshl_b32 s30, s{S_WG}, 3")
    e(f"s_add_u32 s30, s30, s{S_WAVE}")
    e("s_lshl_b32 s30, s30, 6")
    e(f"s_add_u32 s30, s30, {TSOFF}")
    e("s_mov_b64 exec, 1")
    e(f"v_mov_b32 v{vtmp0}, 0")
    for i in range(n):
        e(f"v_mov_b32 v{vtmp1}, s{S_STAMP0+i}")
        e(f"buffer_store_dword v{vtmp1}, v{vtmp0}, {srd(SRD_WS)}, s30 offen offset:{4*i}")
        e("s_nop 1")
    e("s_mov_b64 exec, -1")
    nstamp[0] = 0

NTF = " nt" if cfg.NT else ""

LOG2E = 0x3fb8aa3b
SCALE = 0x3db504f3

L.append(f"; @launch grid=(256,1,1) block=(512,1,1) lds={LDS_BYTES}")
L.append('.amdgcn_target "amdgcn-amd-amdhsa--gfx950"')
L.append(".text")
L.append(f".globl {KNAME}")
L.append(".p2align 8")
L.append(f".type {KNAME},@function")
lab(KNAME)
e(f"s_cmp_ge_u32 s{S_WG}, 256")
e("s_cbranch_scc1 L_end")
if cfg.DIAG == 3:
    e("s_memrealtime s[100:101]")
e("s_load_dwordx16 s[32:47], s[0:1], 0")
e("s_load_dwordx8 s[48:55], s[0:1], 64")
e("v_lshrrev_b32 v1, 6, v0")
e("v_and_b32 v0, 63, v0")
e(f"v_readfirstlane_b32 s{S_WAVE}, v1")
e(f"s_mov_b32 s{S_SPIN}, {cfg.SPIN}")
e("s_waitcnt lgkmcnt(0)")
def mk_srd(b, plo, nbytes):
    e(f"s_mov_b32 s{b}, s{plo}")
    e(f"s_mov_b32 s{b+1}, s{plo+1}")
    e(f"s_mov_b32 s{b+2}, {nbytes}")
    e(f"s_mov_b32 s{b+3}, 0x00020000")
mk_srd(SRD_X, 32, 4096)
mk_srd(SRD_K, 34, 0x4000000)
mk_srd(SRD_V, 36, 0x4000000)
mk_srd(SRD_WQ, 38, 0x800000)
mk_srd(SRD_WO, 40, 0x800000)
e(f"s_cmp_ge_u32 s{S_WG}, 112")
e(f"s_cselect_b32 s{SRD_GU}, s46, s44")
e(f"s_cselect_b32 s{SRD_GU+1}, s47, s45")
e(f"s_cmp_lt_u32 s{S_WG}, 224")
e(f"s_cselect_b32 s{SRD_GU+2}, 0x700000, 0")
e(f"s_mov_b32 s{SRD_GU+3}, 0x00020000")
mk_srd(SRD_WD, 48, 0x700000)
e(f"s_cmp_ge_u32 s{S_WG}, 32")
e(f"s_cselect_b32 s{SRD_WD+2}, 0x700000, 0")
mk_srd(SRD_OUT, 50, 4096)
mk_srd(SRD_DBG, 52, 256)
mk_srd(SRD_WS, 54, WS_BYTES)
e(f"s_add_u32 s{SRD_FP}, s54, {FPART}")
e(f"s_addc_u32 s{SRD_FP+1}, s55, 0")
e(f"s_mov_b32 s{SRD_FP+2}, {112*8192}")
e(f"s_mov_b32 s{SRD_FP+3}, 0x00020000")
e(f"s_cmp_ge_u32 s{S_WAVE}, 4")
e("s_cbranch_scc1 L_helper")

c("================ stream waves ================")
V_L = 0
V_G, V_I, V_T0, V_T1, V_T2, V_T3 = 1, 2, 3, 4, 5, 6
V_CV = 7
V_OWQ = 9
V_OGU = 11
V_OW2 = 13
V_OV = 15
V_OK = 17
V_KA = 21
V_VA = 25
V_XB = 33
V_RED = 34
V_ST = 35
V_MX = 36
V_LS = 37
V_MC = 38
V_T4 = 39
V_B = 40
V_A = 56
V_O = 88
NKU = cfg.NS
V_S = 120
V_X = V_S + 8*NKU
V_X2 = V_X + 32
V_CL = V_X2 + 32
V_AL = V_CL + 1
NV_STREAM = (V_CL + 6 + 7) // 8 * 8
assert NV_STREAM <= 256
POOL = (8 - cfg.NS) * 32
S_DYN = 18
S_GB = 24
S_CNT = 25

outstanding = []
def vm_issue(tag): outstanding.append(tag)
def vm_wait(tag):
    if tag not in outstanding:
        return
    idx = max(i for i, t in enumerate(outstanding) if t == tag)
    n = len(outstanding) - 1 - idx
    assert n <= 63
    e(f"s_waitcnt vmcnt({n})")
    del outstanding[:idx + 1]

e(f"v_lshrrev_b32 v{V_G}, 4, v{V_L}")
e(f"v_and_b32 v{V_I}, 15, v{V_L}")
e(f"s_mul_i32 s{S_WB}, s{S_WAVE}, {R*8192}")
e(f"s_add_u32 s{S_WB}, s{S_WB}, {RING}")
e(f"v_lshlrev_b32 v{V_T0}, 1, v{V_G}")
e(f"v_xor_b32 v{V_T0}, v{V_T0}, v{V_I}")
e(f"v_lshlrev_b32 v{V_CV}, 4, v{V_T0}")
e(f"v_xor_b32 v{V_CV+1}, 0x80, v{V_CV}")
def mk_off(dst, rs):
    e(f"v_mul_u32_u24 v{V_T0}, {rs}, v{V_G}")
    e(f"v_add_u32 v{dst}, v{V_T0}, v{V_CV}")
    e(f"v_add_u32 v{dst+1}, v{V_T0}, v{V_CV+1}")
mk_off(V_OWQ, 8192)
e(f"s_and_b32 s{S_T0}, s{S_WG}, 7")
e(f"s_lshl_b32 s{S_T0}, s{S_T0}, 2")
e(f"s_add_u32 s{S_T0}, s{S_T0}, s{S_WAVE}")
e(f"s_lshl_b32 s{S_BQ}, s{S_T0}, 18")
e(f"s_lshl_b32 s{S_T4}, s{S_T0}, 6")
e(f"s_lshr_b32 s{S_T1}, s{S_WG}, 3")
e(f"s_lshl_b32 s{S_T1}, s{S_T1}, 8")
e(f"s_add_u32 s{S_BQ}, s{S_BQ}, s{S_T1}")

def half_throttle():
    if cfg.DH > 0:
        keep = (cfg.DH - 1) * 4
        if len(outstanding) > keep:
            e(f"s_waitcnt vmcnt({keep})")
            del outstanding[:len(outstanding) - keep]
def dma_w(u, srd_b, sbase, extra, rs, voff):
    slot = u % R
    for jj in range(8):
        if jj % 4 == 0:
            half_throttle()
            e(f"s_add_u32 m0, s{S_WB}, {slot*8192 + (jj//4)*4096}")
        e(f"s_add_u32 s{S_T3}, s{sbase}, {extra + jj*4*rs - (jj&3)*1024}")
        e(f"buffer_load_dwordx4 v{voff + (jj&1)}, {srd(srd_b)}, s{S_T3} offen offset:{(jj&3)*1024}{NTF} lds")
        vm_issue(u)

def dma_kv(u, is_k, idx):
    slot = u % R
    for half in range(2):
        half_throttle()
        e(f"s_add_u32 m0, s{S_WB}, {slot*8192 + half*4096}")
        if idx < cfg.NS:
            e(f"s_add_u32 s{S_T3}, s{S_WIN[idx]}, {half*4096}")
        else:
            e(f"s_add_u32 s{S_T3}, s{S_DYN}, {half*4096}")
        for j4 in range(4):
            if is_k:
                e(f"buffer_load_dwordx4 v{V_OK + j4}, {srd(SRD_K)}, s{S_T3} offen offset:{j4*1024}{NTF} lds")
            else:
                e(f"buffer_load_dwordx4 v{V_OV + (j4&1)}, {srd(SRD_V)}, s{S_T3} offen offset:{j4*1024}{NTF} lds")
            vm_issue(u)

U_K0 = 3
U_V0 = U_K0 + NKU
U_VL = U_V0 + NKU - 1
NUNITS = U_VL + 1
SLOT_B = U_VL % R
SLOT_A = (SLOT_B + 1) % R
U_KD = U_VL + 1
U_WD = U_VL + 2
U_WO = U_VL + 3
U_VD = U_VL + 4
def claim():
    e(f"v_mov_b32 v{V_CL}, 1")
    e(f"v_mov_b32 v{V_CL+2}, 0")
    e("s_mov_b64 exec, 1")
    e(f"buffer_atomic_add v{V_CL}, v{V_CL+2}, {srd(SRD_WS)}, s{S_CNT} offen sc0 sc1")
    e("s_mov_b64 exec, -1")
    vm_issue("cl")
def issue_unit(u):
    if u >= NUNITS:
        return
    dd = cfg.D2 if (cfg.D2 and u >= cfg.U2) else cfg.D
    if (u - dd) in outstanding:
        vm_wait(u - dd)
    if u == 0:
        dma_w(u, SRD_WQ, S_BQ, 0, 8192, V_OWQ)
    elif u in (1, 2):
        dma_w(u, SRD_GU, S_BG, (u - 1) * 32 * 7168, 7168, V_OGU)
    elif u < U_V0:
        dma_kv(u, True, u - U_K0)
    else:
        dma_kv(u, False, u - U_V0)
        if u == U_VL:
            claim()

issue_unit(0)
mk_off(V_OGU, 7168)
e(f"s_and_b32 s{S_T0}, s{S_WG}, 3")
e(f"s_lshl_b32 s{S_T0}, s{S_T0}, 2")
e(f"s_add_u32 s{S_T0}, s{S_T0}, s{S_WAVE}")
e(f"s_mul_i32 s{S_BG}, s{S_T0}, {64*7168}")
e(f"s_lshl_b32 s{S_T2}, s{S_T0}, 7")
e(f"s_lshr_b32 s{S_T1}, s{S_WG}, 2")
e(f"s_cmp_ge_u32 s{S_T1}, 28")
e(f"s_cselect_b32 s{S_T0}, 28, 0")
e(f"s_sub_u32 s{S_T1}, s{S_T1}, s{S_T0}")
e(f"s_lshl_b32 s{S_T1}, s{S_T1}, 8")
e(f"s_add_u32 s{S_BG}, s{S_BG}, s{S_T1}")
S_XG = S_T2
S_XQ = S_T4
issue_unit(1)
if cfg.PAT == 0:
    e(f"s_lshl_b32 s{S_BKV}, s{S_WG}, 18")
    e(f"s_lshl_b32 s{S_T0}, s{S_WAVE}, 16")
    e(f"s_add_u32 s{S_BKV}, s{S_BKV}, s{S_T0}")
    KVSTRIDE = 8192
elif cfg.PAT == 1:
    e(f"s_lshl_b32 s{S_BKV}, s{S_WG}, 18")
    e(f"s_lshl_b32 s{S_T0}, s{S_WAVE}, 13")
    e(f"s_add_u32 s{S_BKV}, s{S_BKV}, s{S_T0}")
    KVSTRIDE = 32768
else:
    e(f"s_lshr_b32 s{S_BKV}, s{S_WG}, 5")
    e(f"s_lshl_b32 s{S_BKV}, s{S_BKV}, 23")
    e(f"s_and_b32 s{S_T0}, s{S_WG}, 31")
    e(f"s_lshl_b32 s{S_T0}, s{S_T0}, 2")
    e(f"s_add_u32 s{S_T0}, s{S_T0}, s{S_WAVE}")
    e(f"s_lshl_b32 s{S_T0}, s{S_T0}, 13")
    e(f"s_add_u32 s{S_BKV}, s{S_BKV}, s{S_T0}")
    KVSTRIDE = 1 << 20
S_WIN = [50, 51, 52, 53, 54, 55, 32, 33]
e(f"s_lshr_b32 s{S_T1}, s{S_WG}, 5")
e(f"s_mul_i32 s{S_T1}, s{S_T1}, {cfg.ROT}")
for idx in range(cfg.NS):
    e(f"s_add_u32 s{S_T0}, s{S_T1}, {idx}")
    e(f"s_and_b32 s{S_T0}, s{S_T0}, 7")
    e(f"s_lshl_b32 s{S_T0}, s{S_T0}, 20")
    e(f"s_add_u32 s{S_WIN[idx]}, s{S_BKV}, s{S_T0}")
e(f"s_lshr_b32 s{S_GB}, s{S_WG}, 5")
e(f"s_lshl_b32 s{S_GB}, s{S_GB}, 23")
e(f"s_lshr_b32 s{S_T0}, s{S_WG}, 3")
e(f"s_lshl_b32 s{S_CNT}, s{S_T0}, 7")
e(f"s_add_u32 s{S_CNT}, s{S_CNT}, {CNT}")
e(f"s_and_b32 s{S_T0}, s{S_T0}, 3")
e(f"s_mul_i32 s{S_T0}, s{S_T0}, {POOL}")
e(f"s_lshr_b32 s{S_T3}, s{S_T0}, 7")
e(f"s_add_u32 s{S_T1}, s{S_T1}, s{S_T3}")
e(f"s_add_u32 s{S_T1}, s{S_T1}, {cfg.NS}")
e(f"s_and_b32 s{S_T1}, s{S_T1}, 7")
e(f"s_lshl_b32 s{S_T1}, s{S_T1}, 20")
e(f"s_add_u32 s{S_GB}, s{S_GB}, s{S_T1}")
e(f"s_and_b32 s{S_T0}, s{S_T0}, 127")
e(f"s_lshl_b32 s{S_T0}, s{S_T0}, 13")
e(f"s_add_u32 s{S_GB}, s{S_GB}, s{S_T0}")
assert 128 % POOL == 0
assert cfg.PAT == 2
e(f"v_xor_b32 v{V_T0}, v{V_I}, v{V_G}")
e(f"v_lshlrev_b32 v{V_T1}, 8, v{V_G}")
for j4 in range(4):
    e(f"v_xor_b32 v{V_T2}, {4*j4}, v{V_T0}")
    e(f"v_lshl_add_u32 v{V_OK+j4}, v{V_T2}, 4, v{V_T1}")
mk_off(V_OV, 256)
mk_off(V_OW2, 2048)
e(f"s_max_u32 s{S_T0}, s{S_WG}, 32")
e(f"s_sub_u32 s{S_T0}, s{S_T0}, 32")
def mk_base2(dst, src):
    e(f"s_lshr_b32 s{S_T1}, s{src}, 1")
    e(f"s_lshl_b32 s{dst}, s{S_T1}, 16")
    e(f"s_and_b32 s{S_T1}, s{src}, 1")
    e(f"s_lshl_b32 s{S_T1}, s{S_T1}, 10")
    e(f"s_add_u32 s{dst}, s{dst}, s{S_T1}")
    e(f"s_lshl_b32 s{S_T1}, s{S_WAVE}, 8")
    e(f"s_add_u32 s{dst}, s{dst}, s{S_T1}")
mk_base2(S_BD, S_T0)
mk_base2(S_BO, S_WG)
e(f"v_xor_b32 v{V_T0}, v{V_I}, v{V_G}")
e(f"v_lshlrev_b32 v{V_T1}, 8, v{V_I}")
e(f"v_add_u32 v{V_T1}, s{S_WB}, v{V_T1}")
for ks in range(4):
    e(f"v_xor_b32 v{V_T2}, {4*ks}, v{V_T0}")
    e(f"v_lshl_add_u32 v{V_KA+ks}, v{V_T2}, 4, v{V_T1}")
e(f"v_lshrrev_b32 v{V_T0}, 2, v{V_L}")
e(f"v_lshlrev_b32 v{V_T1}, 8, v{V_T0}")
e(f"v_add_u32 v{V_T1}, s{S_WB}, v{V_T1}")
e(f"v_and_b32 v{V_T2}, 3, v{V_L}")
e(f"v_lshl_add_u32 v{V_T1}, v{V_T2}, 3, v{V_T1}")
e(f"v_and_b32 v{V_T0}, 7, v{V_T0}")
for t in range(8):
    e(f"v_xor_b32 v{V_T2}, {t}, v{V_T0}")
    e(f"v_lshl_add_u32 v{V_VA+t}, v{V_T2}, 5, v{V_T1}")
e(f"v_and_b32 v{V_T0}, 1, v{V_I}")
e(f"v_lshlrev_b32 v{V_T1}, 3, v{V_G}")
e(f"v_lshl_add_u32 v{V_XB}, v{V_T0}, 11, v{V_T1}")
e(f"v_lshlrev_b32 v{V_T1}, 4, v{V_G}")
e(f"v_lshl_add_u32 v{V_RED}, v{V_I}, 9, v{V_T1}")
e(f"v_lshlrev_b32 v{V_T1}, 4, v{V_I}")
e(f"v_lshl_add_u32 v{V_ST}, v{V_G}, 12, v{V_T1}")

def mask(m):
    e(f"s_mov_b32 exec_lo, {m & 0xffffffff:#x}")
    e(f"s_mov_b32 exec_hi, {(m >> 32) & 0xffffffff:#x}")
M_N2 = 0x0003000300030003
M_N8 = 0x00FF00FF00FF00FF

def gemv_unit(u, first, nxt=True):
    slot = u % R
    vm_wait(u)
    for t in range(8):
        e(f"ds_read_b64_tr_b16 v[{V_A+4*t}:{V_A+4*t+1}], v{V_VA+t} offset:{slot*8192}")
        e(f"ds_read_b64_tr_b16 v[{V_A+4*t+2}:{V_A+4*t+3}], v{V_VA+t} offset:{slot*8192+4096}")
        if t == 3:
            pass
    for t in range(8):
        if t % 2 == 0:
            e(f"s_waitcnt lgkmcnt({16 - 2*t - 4})")
        cc = "0" if first else f"v[{V_O+4*t}:{V_O+4*t+3}]"
        e(f"v_mfma_f32_16x16x32_bf16 v[{V_O+4*t}:{V_O+4*t+3}], v[{V_A+4*t}:{V_A+4*t+3}], v[{V_B}:{V_B+3}], {cc}")
    if nxt:
        issue_unit(u + R)

def read_b(vaddr_s, base):
    pass

for u in range(2, cfg.D):
    issue_unit(u)
nxt_issue = [max(2, cfg.D)]
def pump(upto):
    while nxt_issue[0] <= upto:
        issue_unit(nxt_issue[0]); nxt_issue[0] += 1
stamp(2)
e("s_barrier")
c("---- q-proj unit ----")
e(f"v_add_u32 v{V_T3}, s{S_XQ}, v{V_XB}")
e(f"ds_read_b64 v[{V_B}:{V_B+1}], v{V_T3} offset:{XN}")
e(f"ds_read_b64 v[{V_B+2}:{V_B+3}], v{V_T3} offset:{XN+32}")
e(f"v_add_u32 v{V_T3}, s{S_XG}, v{V_XB}")
e(f"ds_read_b64 v[{V_B+4}:{V_B+5}], v{V_T3} offset:{XN}")
e(f"ds_read_b64 v[{V_B+6}:{V_B+7}], v{V_T3} offset:{XN+32}")
e(f"ds_read_b64 v[{V_B+8}:{V_B+9}], v{V_T3} offset:{XN+64}")
e(f"ds_read_b64 v[{V_B+10}:{V_B+11}], v{V_T3} offset:{XN+96}")
e("s_waitcnt lgkmcnt(0)")
gemv_unit(0, True, nxt=False)
e(f"s_lshl_b32 s{S_T0}, s{S_WAVE}, 10")
e(f"v_add_u32 v{V_T3}, s{S_T0}, v{V_RED}")
e("s_nop 7")
mask(M_N2)
for t in range(8):
    e(f"ds_write_b128 v{V_T3}, v[{V_O+4*t}:{V_O+4*t+3}] offset:{REDQ + t*64}")
e("s_mov_b64 exec, -1")
e("s_waitcnt lgkmcnt(0)")
stamp()
e("s_barrier")
pump(cfg.D)
c("---- gate/up units ----")
for k in range(4):
    e(f"v_mov_b32 v{V_B+k}, v{V_B+4+k}")
e("s_nop 1")
gemv_unit(1, True, nxt=False)
pump(1 + cfg.D)
e("s_nop 7")
for k in range(4):
    e(f"v_mov_b32 v{V_B+k}, v{V_B+8+k}")
e("s_nop 1")
gemv_unit(2, False, nxt=False)
e("s_nop 7")
mask(M_N2)
for t in range(8):
    e(f"ds_write_b128 v{V_T3}, v[{V_O+4*t}:{V_O+4*t+3}] offset:{REDG + t*64}")
e("s_mov_b64 exec, -1")
e("s_waitcnt lgkmcnt(0)")
e("s_barrier")
pump(2 + R)
PARK = [V_O, V_X, V_X2, V_A][:cfg.NP]
def k_frags(u, base):
    slot = u % R
    vm_wait(u)
    for tile in range(2):
        for ks in range(4):
            a = base + 16*tile + 4*ks
            e(f"ds_read_b128 v[{a}:{a+3}], v{V_KA+ks} offset:{slot*8192 + tile*4096}")
for ku in range(cfg.NP):
    k_frags(3 + ku, PARK[ku])
    e("s_waitcnt lgkmcnt(0)")
    pump(3 + ku + R)
stamp()
e("s_barrier")
stamp(2)
c("---- load q fragments ----")
e(f"v_and_b32 v{V_T0}, 7, v{V_I}")
e(f"v_lshlrev_b32 v{V_T1}, 4, v{V_G}")
e(f"v_lshl_add_u32 v{V_T0}, v{V_T0}, 8, v{V_T1}")
for ks in range(4):
    e(f"ds_read_b128 v[{V_B+4*ks}:{V_B+4*ks+3}], v{V_T0} offset:{QL + ks*64}")
e(f"s_mov_b32 s{S_T0}, {SCALE:#x}")
e(f"s_mov_b32 s{S_T1}, 0xffff0000")
e(f"v_mov_b32 v{V_MX}, 0xff800000")
e("s_waitcnt lgkmcnt(0)")

def score_post(base):
    for h in range(2):
        a, b = base + 2*h, base + 2*h + 1
        e(f"v_cvt_pk_bf16_f32 v{V_T2}, v{a}, v{b}")
        e(f"v_lshlrev_b32 v{a}, 16, v{V_T2}")
        e(f"v_and_b32 v{b}, s{S_T1}, v{V_T2}")
        e(f"v_mul_f32 v{a}, s{S_T0}, v{a}")
        e(f"v_mul_f32 v{b}, s{S_T0}, v{b}")
        e(f"v_cvt_pk_bf16_f32 v{V_T2}, v{a}, v{b}")
        e(f"v_lshlrev_b32 v{a}, 16, v{V_T2}")
        e(f"v_and_b32 v{b}, s{S_T1}, v{V_T2}")
        e(f"v_max3_f32 v{V_MX}, v{a}, v{b}, v{V_MX}")

c("---- K phase ----")
def k_mfma(base, d0, wait):
    for tile in range(2):
        d = d0 + tile * 4
        if wait:
            e(f"s_waitcnt lgkmcnt({4 - 4*tile})")
        for ks in range(4):
            a = base + 16*tile + 4*ks
            cc = "0" if ks == 0 else f"v[{d}:{d+3}]"
            e(f"v_mfma_f32_16x16x32_bf16 v[{d}:{d+3}], v[{a}:{a+3}], v[{V_B+4*ks}:{V_B+4*ks+3}], {cc}")
for ku in range(NKU):
    u = 3 + ku
    parked = ku < cfg.NP
    base = PARK[ku] if parked else V_A
    if not parked:
        k_frags(u, V_A)
    k_mfma(base, V_S + 8*ku, not parked)
    if not parked:
        pump(u + R)
    e("s_nop 7")
    score_post(V_S + (2*ku) * 4)
    score_post(V_S + (2*ku + 1) * 4)
stamp(2)
c("---- softmax ----")
def xswap(op, v, tmp):
    e(f"v_mov_b32 v{tmp}, v{v}")
    e("s_nop 1")
    e(f"v_permlane16_swap_b32 v{v}, v{tmp}")
    e(f"{op} v{v}, v{v}, v{tmp}")
    e(f"v_mov_b32 v{tmp}, v{v}")
    e("s_nop 1")
    e(f"v_permlane32_swap_b32 v{v}, v{tmp}")
    e(f"{op} v{v}, v{v}, v{tmp}")
xswap("v_max_f32", V_MX, V_T2)
e(f"s_mov_b32 s{S_T2}, {LOG2E:#x}")
e(f"v_mul_f32 v{V_MC}, s{S_T2}, v{V_MX}")
e(f"v_mov_b32 v{V_LS}, 0")
e(f"v_mov_b32 v{V_T4}, 0")
def exp_block(r0, n):
    for r in range(r0, r0 + n, 2):
        a, b = V_S + r, V_S + r + 1
        e(f"v_fma_f32 v{a}, v{a}, s{S_T2}, -v{V_MC}")
        e(f"v_fma_f32 v{b}, v{b}, s{S_T2}, -v{V_MC}")
        e(f"v_exp_f32 v{a}, v{a}")
        e(f"v_exp_f32 v{b}, v{b}")
        e("s_nop 0")
        e(f"v_add_f32 v{V_LS}, v{V_LS}, v{a}")
        e(f"v_add_f32 v{V_T4}, v{V_T4}, v{b}")
        e(f"v_cvt_pk_bf16_f32 v{V_S + (r//8)*8 + (r%8)//2}, v{a}, v{b}")
exp_block(0, 8*NKU)
e(f"v_add_f32 v{V_LS}, v{V_LS}, v{V_T4}")
stamp()
c("---- V phase ----")
def v_consume(slot, preg, first):
    for t in range(8):
        e(f"ds_read_b64_tr_b16 v[{V_A+4*t}:{V_A+4*t+1}], v{V_VA+t} offset:{slot*8192}")
        e(f"ds_read_b64_tr_b16 v[{V_A+4*t+2}:{V_A+4*t+3}], v{V_VA+t} offset:{slot*8192+4096}")
    for t in range(8):
        if t % 2 == 0:
            e(f"s_waitcnt lgkmcnt({16 - 2*t - 4})")
        cc = "0" if first else f"v[{V_O+4*t}:{V_O+4*t+3}]"
        e(f"v_mfma_f32_16x16x32_bf16 v[{V_O+4*t}:{V_O+4*t+3}], v[{V_A+4*t}:{V_A+4*t+3}], v[{preg}:{preg+3}], {cc}")
for vu in range(NKU - 1):
    u = U_V0 + vu
    vm_wait(u)
    v_consume(u % R, V_S + 8*vu, vu == 0)
    pump(u + R)
    stamp(1)
assert outstanding == [U_VL]*8 + ["cl"], outstanding
PD = V_S + 8*(NKU - 1)
e("s_waitcnt vmcnt(1)")
v_consume(SLOT_B, PD, False)
lab("L_dyn")
e("s_waitcnt vmcnt(0)")
del outstanding[:]
e(f"v_readfirstlane_b32 s{S_T3}, v{V_CL}")
e(f"s_add_u32 s{S_T3}, s{S_T3}, 1")
e(f"s_cmp_ge_u32 s{S_T3}, {POOL}")
e("s_cbranch_scc1 L_dyn_exit")
e(f"s_lshl_b32 s{S_T3}, s{S_T3}, 13")
e(f"s_add_u32 s{S_DYN}, s{S_T3}, s{S_GB}")
dma_kv(U_KD, True, 99)
dma_kv(U_VD, False, 99)
e("s_waitcnt vmcnt(8)")
claim()
del outstanding[:]
for tile in range(2):
    for ks in range(4):
        a = V_A + 16*tile + 4*ks
        e(f"ds_read_b128 v[{a}:{a+3}], v{V_KA+ks} offset:{SLOT_A*8192 + tile*4096}")
k_mfma(V_A, PD, True)
e("s_nop 7")
score_post(PD)
score_post(PD + 4)
xswap("v_max_f32", V_MX, V_T2)
e(f"v_mul_f32 v{V_T4}, s{S_T2}, v{V_MX}")
e(f"v_sub_f32 v{V_AL}, v{V_MC}, v{V_T4}")
e(f"v_exp_f32 v{V_AL}, v{V_AL}")
e(f"v_mov_b32 v{V_MC}, v{V_T4}")
e(f"v_mov_b32 v{V_T4}, 0")
e(f"v_mul_f32 v{V_LS}, v{V_LS}, v{V_AL}")
for r in range(32):
    e(f"v_mul_f32 v{V_O+r}, v{V_O+r}, v{V_AL}")
exp_block(8*(NKU - 1), 8)
e(f"v_add_f32 v{V_LS}, v{V_LS}, v{V_T4}")
e("s_waitcnt vmcnt(1)")
v_consume(SLOT_B, PD, False)
e("s_branch L_dyn")
lab("L_dyn_exit")
if cfg.LATE == 0:
    dma_w(U_WD, SRD_WD, S_BD, 0, 2048, V_OW2)
    dma_w(U_WO, SRD_WO, S_BO, 0, 2048, V_OW2)
if cfg.LATE == 3:
    dma_w(U_WD, SRD_WD, S_BD, 0, 2048, V_OW2)
xswap("v_add_f32", V_LS, V_T2)
c("---- write attention partial to LDS ----")
e(f"s_lshl_b32 s{S_T0}, s{S_WAVE}, 12")
e(f"v_add_u32 v{V_T3}, s{S_T0}, v{V_RED}")
e(f"s_lshl_b32 s{S_T0}, s{S_WAVE}, 3")
e(f"v_lshlrev_b32 v{V_T2}, 5, v{V_I}")
e(f"v_add_u32 v{V_T2}, s{S_T0}, v{V_T2}")
e(f"v_mov_b32 v{V_MX+1}, v{V_LS}") if V_LS != V_MX + 1 else None
e("s_nop 7")
mask(M_N8)
for t in range(8):
    e(f"ds_write_b128 v{V_T3}, v[{V_O+4*t}:{V_O+4*t+3}] offset:{AO + t*64}")
mask(0xFF)
e(f"ds_write_b64 v{V_T2}, v[{V_MX}:{V_MX+1}] offset:{AMLL}")
e("s_mov_b64 exec, -1")
e("s_waitcnt lgkmcnt(0)")
stamp()
e("s_barrier")
if cfg.LATE == 1:
    dma_w(U_WD, SRD_WD, S_BD, 0, 2048, V_OW2)
    dma_w(U_WO, SRD_WO, S_BO, 0, 2048, V_OW2)
if cfg.LATE == 2:
    dma_w(U_WD, SRD_WD, S_BD, 0, 2048, V_OW2)
    vm_wait(U_WD)
    dma_w(U_WO, SRD_WO, S_BO, 0, 2048, V_OW2)
if cfg.LATE == 3:
    vm_wait(U_WD)
    dma_w(U_WO, SRD_WO, S_BO, 0, 2048, V_OW2)
c("---- down-proj unit ----")
e(f"v_and_b32 v{V_T0}, 1, v{V_I}")
e(f"v_lshlrev_b32 v{V_T1}, 3, v{V_G}")
e(f"v_lshl_add_u32 v{V_T3}, v{V_T0}, 6, v{V_T1}")
e(f"ds_read_b64 v[{V_B}:{V_B+1}], v{V_T3} offset:{HL}")
e(f"ds_read_b64 v[{V_B+2}:{V_B+3}], v{V_T3} offset:{HL+32}")
e("s_waitcnt lgkmcnt(0)")
gemv_unit(U_WD, True, nxt=False)
def store_part(sb, region, oob_lt32):
    e("s_nop 7")
    for r in range(32):
        e(f"v_min_u32 v{V_O+r}, 0xfffffffe, v{V_O+r}")
    e(f"s_lshr_b32 s{S_T0}, s{sb}, 16")
    e(f"s_lshl_b32 s{S_T0}, s{S_T0}, 5")
    e(f"s_and_b32 s{S_T1}, s{sb}, 0xffff")
    e(f"s_lshl_b32 s{S_T1}, s{S_T1}, 9")
    e(f"s_add_u32 s{S_T0}, s{S_T0}, s{S_T1}")
    e(f"s_add_u32 s{S_T0}, s{S_T0}, {region}")
    if oob_lt32:
        e(f"s_cmp_lt_u32 s{S_WG}, 32")
        e(f"s_cselect_b32 s{S_T0}, 0x40000000, s{S_T0}")
    mask(M_N2)
    for t in range(8):
        e(f"buffer_store_dwordx4 v[{V_O+4*t}:{V_O+4*t+3}], v{V_ST}, {srd(SRD_WS)}, s{S_T0} offen sc1")
        vm_issue("st")
        if t < 7:
            e(f"s_add_u32 s{S_T0}, s{S_T0}, 16384")
    e("s_mov_b64 exec, -1")
store_part(S_BD, FPART, True)
stamp()
e("s_barrier")
stamp()
c("---- wo unit ----")
e(f"v_and_b32 v{V_T0}, 1, v{V_I}")
e(f"v_lshlrev_b32 v{V_T1}, 3, v{V_G}")
e(f"v_lshl_add_u32 v{V_T3}, v{V_T0}, 6, v{V_T1}")
e(f"ds_read_b64 v[{V_B}:{V_B+1}], v{V_T3} offset:{OL}")
e(f"ds_read_b64 v[{V_B+2}:{V_B+3}], v{V_T3} offset:{OL+32}")
e("s_waitcnt lgkmcnt(0)")
gemv_unit(U_WO, True, nxt=False)
stamp()
store_part(S_BO, SPART, False)
stamp()
if cfg.DIAG:
    e("s_waitcnt vmcnt(0)")
stamp()
stamp_flush(V_T0, V_T1, [(0,4,1),(0,5,0),(3,6,0),(4,7,0),(6,8,1),(6,9,0),(8,10,0),(11,11,0)])
e("s_endpgm")

in_stream[0] = False
lab("L_helper")
if cfg.PRIO:
    e(f"s_setprio {cfg.PRIO}")
c("================ helper waves ================")
S_HW = 4
H_T = 1
H_A, H_B, H_C, H_D, H_E = 2, 3, 4, 5, 6
H_XF = 8
H_NEG = 12
H_X = 16
H_R = 32
e(f"s_sub_u32 s{S_HW}, s{S_WAVE}, 4")
e(f"s_and_b32 s{S_T0}, s{S_HW}, 1")
e(f"s_lshl_b32 s{S_T1}, s{S_T0}, 11")
e(f"v_lshlrev_b32 v{H_A}, 5, v0")
e(f"buffer_load_dwordx4 v[{H_R}:{H_R+3}], v{H_A}, {srd(SRD_X)}, s{S_T1} offen")
e(f"buffer_load_dwordx4 v[{H_R+4}:{H_R+7}], v{H_A}, {srd(SRD_X)}, s{S_T1} offen offset:16")
e(f"s_lshl_b32 s{S_T2}, s{S_WG}, 3")
e(f"v_and_b32 v{H_B}, 1, v0")
e(f"v_lshlrev_b32 v{H_B}, 11, v{H_B}")
e(f"buffer_load_dwordx2 v[{H_XF}:{H_XF+1}], v{H_B}, {srd(SRD_X)}, s{S_T2} offen")
e(f"s_lshl_b32 s{S_T2}, s{S_HW}, 6")
e(f"v_add_u32 v{H_T}, s{S_T2}, v0")
for k in range(4):
    e(f"v_mov_b32 v{H_NEG+k}, -1")
e(f"v_mov_b32 v{H_C}, 0")
e(f"v_lshlrev_b32 v{H_D}, 2, v0")
e(f"v_and_b32 v{H_D}, 63, v{H_D}")
e(f"ds_write_b32 v{H_D}, v{H_C} offset:{FLG}")
if cfg.TLB:
    c("page pre-touch (helper 3)")
    e(f"s_cmp_lg_u32 s{S_HW}, 3")
    e("s_cbranch_scc1 L_h_notlb")
    e(f"v_lshlrev_b32 v{H_C}, {cfg.TLB}, v0")
    per = 64 << cfg.TLB
    k = 0
    for sr, nb in ((SRD_WQ, 8<<20), (SRD_GU, 7<<20), (SRD_K, 64<<20), (SRD_V, 64<<20), (SRD_WD, 7<<20), (SRD_WO, 8<<20), (SRD_WS, WS_BYTES)):
        for off in range(0, nb, per):
            e(f"s_mov_b32 s{S_T2}, {off}")
            e(f"buffer_load_dword v{H_R+16+(k%16)}, v{H_C}, {srd(sr)}, s{S_T2} offen")
            k += 1
    lab("L_h_notlb")
if cfg.CPF:
    c("code prefetch into L2 (helper 3)")
    e(f"s_cmp_lg_u32 s{S_HW}, 3")
    e("s_cbranch_scc1 L_h_nocpf")
    e("s_getpc_b64 s[30:31]")
    lab("L_pcref")
    e(f"s_sub_u32 s30, s30, L_pcref-{KNAME}")
    e("s_subb_u32 s31, s31, 0")
    e(f"v_lshlrev_b32 v{H_C}, 6, v0")
    for k in range(cfg.CPF):
        e(f"v_min_u32 v{H_D}, L_end-{KNAME}, v{H_C}")
        e(f"global_load_dword v{H_R+16+(k%16)}, v{H_D}, s[30:31]")
        e(f"v_add_u32 v{H_C}, 4096, v{H_C}")
    lab("L_h_nocpf")
c("bootstrap: WG 0 clears the flag area, then raises d_debug[0]")
e(f"v_lshlrev_b32 v{H_B}, 4, v{H_T}")
e(f"s_cmp_lg_u32 s{S_WG}, 0")
e("s_cbranch_scc1 L_h_noboot")
for k in range(4):
    e(f"s_mov_b32 s{S_T2}, {QFLAG + k*4096}")
    e(f"buffer_store_dwordx4 v[{H_NEG}:{H_NEG+3}], v{H_B}, {srd(SRD_WS)}, s{S_T2} offen sc1")
e("s_waitcnt vmcnt(0)")
e(f"s_lshl_b32 s{S_T2}, s{S_HW}, 2")
e(f"v_mov_b32 v{H_C}, 1")
e(f"v_mov_b32 v{H_D}, 0")
e("s_mov_b64 exec, 1")
e(f"buffer_store_dword v{H_C}, v{H_D}, {srd(SRD_DBG)}, s{S_T2} offen sc1")
e("s_mov_b64 exec, -1")
lab("L_h_noboot")
c("clear sentinels")
e(f"v_lshlrev_b32 v{H_B}, 4, v{H_T}")
e(f"s_lshl_b32 s{S_T2}, s{S_WG}, 12")
e(f"s_add_u32 s{S_T2}, s{S_T2}, {APART}")
e(f"buffer_store_dwordx4 v[{H_NEG}:{H_NEG+3}], v{H_B}, {srd(SRD_WS)}, s{S_T2} offen sc1")
e(f"s_lshl_b32 s{S_T2}, s{S_WG}, 12")
e(f"s_add_u32 s{S_T3}, s{S_T2}, {SPART}")
e(f"buffer_store_dwordx4 v[{H_NEG}:{H_NEG+3}], v{H_B}, {srd(SRD_WS)}, s{S_T3} offen sc1")
e(f"v_cmp_gt_u32 vcc, 224, v{H_T}")
e("s_nop 1")
for k in range(4):
    e(f"v_cndmask_b32 v{H_X+k}, 0, v{H_NEG}, vcc")
e(f"s_add_u32 s{S_T3}, s{S_T2}, {FPART}")
e(f"buffer_store_dwordx4 v[{H_X}:{H_X+3}], v{H_B}, {srd(SRD_WS)}, s{S_T3} offen sc1")
e(f"s_cmp_lg_u32 s{S_HW}, 0")
e("s_cbranch_scc1 L_h_skipml")
e(f"s_lshr_b32 s{S_T2}, s{S_WG}, 5")
e(f"s_lshl_b32 s{S_T2}, s{S_T2}, 11")
e(f"s_and_b32 s{S_T3}, s{S_WG}, 31")
e(f"s_lshl_b32 s{S_T3}, s{S_T3}, 3")
e(f"s_add_u32 s{S_T2}, s{S_T2}, s{S_T3}")
e(f"s_add_u32 s{S_T2}, s{S_T2}, {AML}")
e(f"v_lshlrev_b32 v{H_C}, 8, v0")
mask(0xFF)
e(f"buffer_store_dwordx2 v[{H_NEG}:{H_NEG+1}], v{H_C}, {srd(SRD_WS)}, s{S_T2} offen sc1")
e("s_mov_b64 exec, -1")
lab("L_h_skipml")

def dpp_reduce(op, regs, tmpbase, full=True):
    for pat in ["quad_perm:[1,0,3,2]", "quad_perm:[2,3,0,1]", "row_half_mirror", "row_mirror"]:
        if len(regs) < 3:
            e("s_nop 1")
        for r in regs:
            e(f"{op}_dpp v{r}, v{r}, v{r} {pat} row_mask:0xf bank_mask:0xf")
    swaps = ["v_permlane16_swap_b32"] + (["v_permlane32_swap_b32"] if full else [])
    for sw in swaps:
        for k, r in enumerate(regs):
            e(f"v_mov_b32 v{tmpbase+k}, v{r}")
        e("s_nop 1")
        for k, r in enumerate(regs):
            e(f"{sw} v{r}, v{tmpbase+k}")
        for k, r in enumerate(regs):
            e(f"{op} v{r}, v{r}, v{tmpbase+k}")

def bf16r(dst, src, tmp):
    e(f"v_cvt_pk_bf16_f32 v{tmp}, v{src}, v{src}")
    e(f"v_lshlrev_b32 v{dst}, 16, v{tmp}")

c("layernorm")
e("s_waitcnt vmcnt(3)")
e(f"s_mov_b32 s{S_T2}, 0xffff0000")
for k in range(8):
    e(f"v_lshlrev_b32 v{H_X+2*k}, 16, v{H_R+k}")
    e(f"v_and_b32 v{H_X+2*k+1}, s{S_T2}, v{H_R+k}")
e(f"v_add_f32 v{H_A}, v{H_X}, v{H_X+1}")
for k in range(2, 16):
    e(f"v_add_f32 v{H_A}, v{H_A}, v{H_X+k}")
dpp_reduce("v_add_f32", [H_A], H_B)
e(f"v_mul_f32 v{H_A}, 0x3a800000, v{H_A}")
e(f"v_mov_b32 v{H_C}, 0")
for k in range(16):
    e(f"v_sub_f32 v{H_D}, v{H_X+k}, v{H_A}")
    e(f"v_fmac_f32 v{H_C}, v{H_D}, v{H_D}")
dpp_reduce("v_add_f32", [H_C], H_B)
e(f"v_mul_f32 v{H_C}, 0x3a800000, v{H_C}")
bf16r(H_A, H_A, H_B)
bf16r(H_C, H_C, H_B)
e(f"v_add_f32 v{H_C}, 0x3727c5ac, v{H_C}")
bf16r(H_C, H_C, H_B)
e(f"v_sqrt_f32 v{H_C}, v{H_C}")
e("s_nop 0")
bf16r(H_C, H_C, H_B)
e(f"v_rcp_f32 v{H_D}, v{H_C}")
e("s_nop 0")
for k in range(0, 16, 2):
    a, b = H_X + k, H_X + k + 1
    e(f"v_sub_f32 v{a}, v{a}, v{H_A}")
    e(f"v_sub_f32 v{b}, v{b}, v{H_A}")
    e(f"v_cvt_pk_bf16_f32 v{H_B}, v{a}, v{b}")
    e(f"v_lshlrev_b32 v{a}, 16, v{H_B}")
    e(f"v_and_b32 v{b}, s{S_T2}, v{H_B}")
    for x in (a, b):
        e(f"v_mul_f32 v{H_E}, v{x}, v{H_D}")
        e(f"v_fma_f32 v{x}, -v{H_E}, v{H_C}, v{x}")
        e(f"v_fma_f32 v{x}, v{x}, v{H_D}, v{H_E}")
    e(f"v_cvt_pk_bf16_f32 v{H_R+k//2}, v{a}, v{b}")
e(f"v_lshlrev_b32 v{H_A}, 5, v0")
e(f"v_add_u32 v{H_A}, s{S_T1}, v{H_A}")
e(f"ds_write_b128 v{H_A}, v[{H_R}:{H_R+3}] offset:{XN}")
e(f"ds_write_b128 v{H_A}, v[{H_R+4}:{H_R+7}] offset:{XN+16}")
e("s_waitcnt lgkmcnt(0)")
stamp()
e("s_barrier")
e("s_barrier")
stamp()

def red_publish(red_off, soff_emit, cnt_off_emit, skip_store_if=None, tag=""):
    e(f"v_lshlrev_b32 v{H_A}, 4, v0")
    for w in range(4):
        e(f"ds_read_b128 v[{H_R+4*w}:{H_R+4*w+3}], v{H_A} offset:{red_off + w*1024}")
    e("s_waitcnt lgkmcnt(0)")
    for k in range(4):
        e(f"v_add_f32 v{H_R+k}, v{H_R+k}, v{H_R+4+k}")
        e(f"v_add_f32 v{H_R+8+k}, v{H_R+8+k}, v{H_R+12+k}")
    for k in range(4):
        e(f"v_add_f32 v{H_R+k}, v{H_R+k}, v{H_R+8+k}")
    soff_emit()
    if skip_store_if:
        skip_store_if("L_skipst" + tag)
    e(f"buffer_store_dwordx4 v[{H_R}:{H_R+3}], v{H_B}, {srd(SRD_WS)}, s{S_T2} offen sc1")
    if skip_store_if:
        lab("L_skipst" + tag)
    e(f"v_mov_b32 v{H_A}, 0")
    lab("L_boot" + tag)
    e(f"buffer_load_dwordx4 v[{H_R+4}:{H_R+7}], v{H_A}, {srd(SRD_DBG)}, 0 offen sc1")
    e("s_waitcnt vmcnt(0)")
    e(f"v_and_b32 v{H_R+4}, v{H_R+4}, v{H_R+5}")
    e(f"v_and_b32 v{H_R+6}, v{H_R+6}, v{H_R+7}")
    e(f"v_and_b32 v{H_R+4}, v{H_R+4}, v{H_R+6}")
    e(f"v_cmp_eq_u32 vcc, 0, v{H_R+4}")
    e(f"s_cbranch_vccz L_bootd{tag}")
    e("s_sleep 8")
    e(f"s_sub_u32 s{S_SPIN}, s{S_SPIN}, 1")
    e(f"s_cmp_lg_u32 s{S_SPIN}, 0")
    e(f"s_cbranch_scc1 L_boot{tag}")
    e(f"s_mov_b32 s{S_SPIN}, 1")
    lab("L_bootd" + tag)
    cnt_off_emit()
    e(f"v_mov_b32 v{H_A}, 0")
    e(f"buffer_store_dword v{H_A}, v{H_B}, {srd(SRD_WS)}, s{S_T2} offen sc1")
    e("s_mov_b64 exec, -1")

c("publish q partial (helper 0)")
e(f"s_cmp_lg_u32 s{S_HW}, 0")
e("s_cbranch_scc1 L_h_noq")
def q_soff():
    e(f"v_and_b32 v{H_B}, 31, v0")
    e(f"v_lshlrev_b32 v{H_B}, 4, v{H_B}")
    e(f"v_lshrrev_b32 v{H_C}, 5, v0")
    e(f"v_lshl_add_u32 v{H_B}, v{H_C}, 14, v{H_B}")
    e(f"s_and_b32 s{S_T2}, s{S_WG}, 7")
    e(f"s_lshl_b32 s{S_T2}, s{S_T2}, 15")
    e(f"s_lshr_b32 s{S_T3}, s{S_WG}, 3")
    e(f"s_lshl_b32 s{S_T3}, s{S_T3}, 9")
    e(f"s_add_u32 s{S_T2}, s{S_T2}, s{S_T3}")
    if QPART:
        e(f"s_add_u32 s{S_T2}, s{S_T2}, {QPART}")
def q_cnt():
    e(f"s_lshl_b32 s{S_T2}, s{S_WG}, 2")
    e(f"s_add_u32 s{S_T2}, s{S_T2}, {QFLAG}")
    e(f"v_lshlrev_b32 v{H_B}, 10, v0")
    mask(0xFF)
red_publish(REDQ, q_soff, q_cnt, None, "q")
e("s_branch L_h_q2")
lab("L_h_noq")
e("s_waitcnt vmcnt(0)")
lab("L_h_q2")
stamp()
e("s_barrier")
c("publish gate/up partial (helper 1)")
e(f"s_cmp_lg_u32 s{S_HW}, 1")
e("s_cbranch_scc1 L_h_nog")
def g_soff():
    e(f"v_and_b32 v{H_B}, 31, v0")
    e(f"v_lshlrev_b32 v{H_B}, 4, v{H_B}")
    e(f"v_lshrrev_b32 v{H_C}, 5, v0")
    e(f"v_mul_u32_u24 v{H_C}, 14336, v{H_C}")
    e(f"v_add_u32 v{H_B}, v{H_C}, v{H_B}")
    e(f"s_lshr_b32 s{S_T3}, s{S_WG}, 2")
    e(f"s_cmp_ge_u32 s{S_T3}, 28")
    e(f"s_cselect_b32 s{S_T2}, 28, 0")
    e(f"s_sub_u32 s{S_T3}, s{S_T3}, s{S_T2}")
    e(f"s_lshr_b32 s{S_T2}, s{S_WG}, 2")
    e(f"s_cmp_ge_u32 s{S_T2}, 28")
    e(f"s_cselect_b32 s{S_T2}, 4, 0")
    e(f"s_and_b32 s{S_T4}, s{S_WG}, 3")
    e(f"s_add_u32 s{S_T2}, s{S_T2}, s{S_T4}")
    e(f"s_mul_i32 s{S_T2}, s{S_T2}, {2*14336}")
    e(f"s_lshl_b32 s{S_T3}, s{S_T3}, 9")
    e(f"s_add_u32 s{S_T2}, s{S_T2}, s{S_T3}")
    e(f"s_add_u32 s{S_T2}, s{S_T2}, {GUPART}")
def g_skip(l):
    e(f"s_cmp_ge_u32 s{S_WG}, 224")
    e(f"s_cbranch_scc1 {l}")
def g_cnt():
    e(f"s_lshl_b32 s{S_T2}, s{S_WG}, 2")
    e(f"s_add_u32 s{S_T2}, s{S_T2}, {HFLAG}")
    e(f"v_lshlrev_b32 v{H_B}, 10, v0")
    mask(0xF)
red_publish(REDG, g_soff, g_cnt, g_skip, "g")
lab("L_h_nog")

def lds_flag_wait(idx, name):
    lab(f"L_{name}_w")
    e(f"v_mov_b32 v{H_A}, 0")
    e(f"ds_read_b32 v{H_B}, v{H_A} offset:{FLG + 4*idx}")
    e("s_waitcnt lgkmcnt(0)")
    e(f"v_readfirstlane_b32 s{S_T2}, v{H_B}")
    e(f"s_cmp_lg_u32 s{S_T2}, 0")
    e(f"s_cbranch_scc1 L_{name}_d")
    e("s_sleep 1")
    e(f"s_sub_u32 s{S_SPIN}, s{S_SPIN}, 1")
    e(f"s_cmp_lg_u32 s{S_SPIN}, 0")
    e(f"s_cbranch_scc1 L_{name}_w")
    e(f"s_mov_b32 s{S_SPIN}, 1")
    e(f"s_branch L_{name}_d")

def lds_flag_set(idx):
    e(f"v_mov_b32 v{H_A}, 0")
    e(f"v_mov_b32 v{H_B}, 1")
    e(f"ds_write_b32 v{H_A}, v{H_B} offset:{FLG + 4*idx}")

c("wait for q counter")
e(f"s_cmp_lg_u32 s{S_HW}, 0")
e("s_cbranch_scc1 L_qf_w")
e(f"s_lshr_b32 s{S_T3}, s{S_WG}, 5")
e(f"s_and_b32 s{S_T3}, s{S_T3}, 3")
e(f"s_lshl_b32 s{S_T3}, s{S_T3}, 8")
e(f"s_and_b32 s{S_T2}, s{S_WG}, 7")
e(f"s_lshl_b32 s{S_T2}, s{S_T2}, 10")
e(f"s_add_u32 s{S_T3}, s{S_T3}, s{S_T2}")
e(f"s_add_u32 s{S_T3}, s{S_T3}, {QFLAG}")
e(f"v_lshlrev_b32 v{H_A}, 2, v0")
lab("L_qpoll")
e(f"buffer_load_dword v{H_B}, v{H_A}, {srd(SRD_WS)}, s{S_T3} offen sc1")
e("s_waitcnt vmcnt(0)")
e(f"v_cmp_eq_u32 vcc, -1, v{H_B}")
e("s_cbranch_vccz L_qpoll_d")
e("s_sleep 4")
e(f"s_sub_u32 s{S_SPIN}, s{S_SPIN}, 1")
e(f"s_cmp_lg_u32 s{S_SPIN}, 0")
e("s_cbranch_scc1 L_qpoll")
e(f"s_mov_b32 s{S_SPIN}, 1")
lab("L_qpoll_d")
lds_flag_set(0)
e("s_branch L_qf_d")
lds_flag_wait(0, "qf")
lab("L_qf_d")
stamp()
c("gather q")
e(f"s_lshr_b32 s{S_T2}, s{S_WG}, 5")
e(f"s_lshl_b32 s{S_T2}, s{S_T2}, 12")
e(f"v_lshlrev_b32 v{H_A}, 4, v{H_T}")
for ks in range(8):
    e(f"s_add_u32 s{S_T3}, s{S_T2}, {QPART + ks*32768}")
    e(f"buffer_load_dwordx4 v[{H_R+4*ks}:{H_R+4*ks+3}], v{H_A}, {srd(SRD_WS)}, s{S_T3} offen sc1")
e("s_waitcnt vmcnt(0)")
for ks in range(1, 8):
    for k in range(4):
        e(f"v_add_f32 v{H_R+k}, v{H_R+k}, v{H_R+4*ks+k}")
e(f"v_cvt_pk_bf16_f32 v{H_R}, v{H_R}, v{H_R+1}")
e(f"v_cvt_pk_bf16_f32 v{H_R+1}, v{H_R+2}, v{H_R+3}")
e(f"v_lshlrev_b32 v{H_A}, 3, v{H_T}")
e(f"ds_write_b64 v{H_A}, v[{H_R}:{H_R+1}] offset:{QL}")
e("s_waitcnt lgkmcnt(0)")
stamp()
e("s_barrier")
c("wait for h counter (helper 0), h gather (helper 1)")
e(f"s_cmp_eq_u32 s{S_HW}, 1")
e("s_cbranch_scc1 L_hf_w")
e(f"s_cmp_lg_u32 s{S_HW}, 0")
e("s_cbranch_scc1 L_h_b5")
e(f"v_lshlrev_b32 v{H_A}, 4, v0")
e(f"s_and_b32 s{S_T2}, s{S_WG}, 3")
e(f"s_lshl_b32 s{S_T2}, s{S_T2}, 10")
e(f"s_add_u32 s{S_T2}, s{S_T2}, {HFLAG}")
lab("L_hpoll")
e(f"buffer_load_dwordx4 v[{H_R}:{H_R+3}], v{H_A}, {srd(SRD_WS)}, s{S_T2} offen sc1")
e("s_waitcnt vmcnt(0)")
e(f"v_max3_u32 v{H_B}, v{H_R}, v{H_R+1}, v{H_R+2}")
e(f"v_max_u32 v{H_B}, v{H_B}, v{H_R+3}")
e(f"v_cmp_eq_u32 vcc, -1, v{H_B}")
e("s_cbranch_vccz L_hpoll_d")
e("s_sleep 16")
e(f"s_sub_u32 s{S_SPIN}, s{S_SPIN}, 1")
e(f"s_cmp_lg_u32 s{S_SPIN}, 0")
e("s_cbranch_scc1 L_hpoll")
e(f"s_mov_b32 s{S_SPIN}, 1")
lab("L_hpoll_d")
lds_flag_set(1)
e("s_branch L_h_b5")
lds_flag_wait(1, "hf")
lab("L_hf_d")
e(f"s_max_u32 s{S_T2}, s{S_WG}, 32")
e(f"s_sub_u32 s{S_T2}, s{S_T2}, 32")
e(f"s_lshr_b32 s{S_T2}, s{S_T2}, 1")
e(f"s_lshl_b32 s{S_T2}, s{S_T2}, 7")
e(f"v_and_b32 v{H_A}, 31, v0")
e(f"v_lshlrev_b32 v{H_A}, 2, v{H_A}")
e(f"v_lshrrev_b32 v{H_B}, 5, v0")
e(f"v_mul_u32_u24 v{H_B}, 14336, v{H_B}")
e(f"v_add_u32 v{H_A}, v{H_A}, v{H_B}")
for m in range(8):
    e(f"s_add_u32 s{S_T3}, s{S_T2}, {GUPART + m*2*14336}")
    e(f"buffer_load_dword v{H_R+m}, v{H_A}, {srd(SRD_WS)}, s{S_T3} offen sc1")
e("s_waitcnt vmcnt(0)")
for m in (0, 4):
    e(f"v_add_f32 v{H_R+m}, v{H_R+m}, v{H_R+m+1}")
    e(f"v_add_f32 v{H_R+m+2}, v{H_R+m+2}, v{H_R+m+3}")
    e(f"v_add_f32 v{H_R+m}, v{H_R+m}, v{H_R+m+2}")
    bf16r(H_R + m, H_R + m, H_B)
def silu(dst, src, t):
    e(f"v_mul_f32 v{t}, 0xbfb8aa3b, v{src}")
    e(f"v_exp_f32 v{t}, v{t}")
    e("s_nop 0")
    e(f"v_add_f32 v{t}, 1.0, v{t}")
    e(f"v_rcp_f32 v{t}, v{t}")
    e("s_nop 0")
    e(f"v_mul_f32 v{dst}, v{src}, v{t}")
silu(H_R, H_R, H_B)
bf16r(H_R, H_R, H_B)
e(f"v_mul_f32 v{H_R}, v{H_R}, v{H_R+4}")
e(f"v_cvt_pk_bf16_f32 v{H_R}, v{H_R}, v{H_R}")
e(f"v_lshlrev_b32 v{H_A}, 1, v0")
e(f"ds_write_b16 v{H_A}, v{H_R} offset:{HL}")
e("s_waitcnt lgkmcnt(0)")
lab("L_h_b5")
e("s_waitcnt lgkmcnt(0)")
stamp()
def spin_tail(back, sl=1):
    e(f"s_sleep {sl}")
    e(f"s_sub_u32 s{S_SPIN}, s{S_SPIN}, 1")
    e(f"s_cmp_lg_u32 s{S_SPIN}, 0")
    e(f"s_cbranch_scc1 {back}")
    e(f"s_mov_b32 s{S_SPIN}, 1")
def mailbox(region, name, sl):
    e(f"s_lshl_b32 s{S_T2}, s{S_WG}, 12")
    e(f"s_add_u32 s{S_T2}, s{S_T2}, {region}")
    e(f"v_lshlrev_b32 v{H_A}, 4, v0")
    lab(f"L_{name}")
    for k in range(4):
        e(f"buffer_load_dwordx4 v[{H_R+4*k}:{H_R+4*k+3}], v{H_A}, {srd(SRD_WS)}, s{S_T2} offen offset:{1024*k} sc1")
    e("s_waitcnt vmcnt(0)")
    e(f"v_max3_u32 v{H_D}, v{H_R}, v{H_R+1}, v{H_R+2}")
    e(f"v_max3_u32 v{H_E}, v{H_R+3}, v{H_R+4}, v{H_R+5}")
    e(f"v_max3_u32 v{H_D}, v{H_D}, v{H_R+6}, v{H_R+7}")
    e(f"v_max3_u32 v{H_E}, v{H_E}, v{H_R+8}, v{H_R+9}")
    e(f"v_max3_u32 v{H_D}, v{H_D}, v{H_R+10}, v{H_R+11}")
    e(f"v_max3_u32 v{H_E}, v{H_E}, v{H_R+12}, v{H_R+13}")
    e(f"v_max3_u32 v{H_D}, v{H_D}, v{H_R+14}, v{H_R+15}")
    e(f"v_max_u32 v{H_D}, v{H_D}, v{H_E}")
    e(f"v_cmp_eq_u32 vcc, -1, v{H_D}")
    e(f"s_cbranch_vccz L_{name}_d")
    spin_tail(f"L_{name}", sl)
    lab(f"L_{name}_d")
    for k in range(4):
        e(f"v_add_f32 v{H_R+k}, v{H_R+k}, v{H_R+4+k}")
        e(f"v_add_f32 v{H_R+8+k}, v{H_R+8+k}, v{H_R+12+k}")
    for k in range(4):
        e(f"v_add_f32 v{H_R+k}, v{H_R+k}, v{H_R+8+k}")
    regs = [H_R + k for k in range(4)]
    for pat in ["quad_perm:[2,3,0,1]", "row_ror:4", "row_ror:8"]:
        for r in regs:
            e(f"v_add_f32_dpp v{r}, v{r}, v{r} {pat} row_mask:0xf bank_mask:0xf")
    for sw in ["v_permlane16_swap_b32", "v_permlane32_swap_b32"]:
        for k, r in enumerate(regs):
            e(f"v_mov_b32 v{H_X+k}, v{r}")
        e("s_nop 1")
        for k, r in enumerate(regs):
            e(f"{sw} v{r}, v{H_X+k}")
        for k, r in enumerate(regs):
            e(f"v_add_f32 v{r}, v{r}, v{H_X+k}")
stamp()
e("s_barrier")
stamp()
c("combine 4 waves' attention partials, publish")
e(f"v_lshrrev_b32 v{H_A}, 5, v{H_T}")
e(f"v_lshlrev_b32 v{H_B}, 5, v{H_A}")
e(f"ds_read_b128 v[{H_X}:{H_X+3}], v{H_B} offset:{AMLL}")
e(f"ds_read_b128 v[{H_X+4}:{H_X+7}], v{H_B} offset:{AMLL+16}")
e(f"v_lshlrev_b32 v{H_C}, 4, v{H_T}")
for w in range(4):
    e(f"ds_read_b128 v[{H_R+4*w}:{H_R+4*w+3}], v{H_C} offset:{AO + w*4096}")
e(f"s_mov_b32 s{S_T3}, {LOG2E:#x}")
e("s_waitcnt lgkmcnt(4)")
e(f"v_max3_f32 v{H_D}, v{H_X}, v{H_X+2}, v{H_X+4}")
e(f"v_max_f32 v{H_D}, v{H_D}, v{H_X+6}")
for w in range(4):
    e(f"v_sub_f32 v{H_X+2*w}, v{H_X+2*w}, v{H_D}")
    e(f"v_mul_f32 v{H_X+2*w}, s{S_T3}, v{H_X+2*w}")
    e(f"v_exp_f32 v{H_X+2*w}, v{H_X+2*w}")
e("s_nop 0")
e(f"v_mul_f32 v{H_E}, v{H_X}, v{H_X+1}")
for w in range(1, 4):
    e(f"v_fmac_f32 v{H_E}, v{H_X+2*w}, v{H_X+2*w+1}")
e("s_waitcnt lgkmcnt(0)")
for k in range(4):
    e(f"v_mul_f32 v{H_R+k}, v{H_X}, v{H_R+k}")
for w in range(1, 4):
    for k in range(4):
        e(f"v_fmac_f32 v{H_R+k}, v{H_X+2*w}, v{H_R+4*w+k}")
for k in range(4):
    e(f"v_min_u32 v{H_R+k}, 0xfffffffe, v{H_R+k}")
e(f"v_min_u32 v{H_D}, 0xfffffffe, v{H_D}")
e(f"v_min_u32 v{H_E}, 0xfffffffe, v{H_E}")
e(f"s_lshl_b32 s{S_T2}, s{S_WG}, 12")
e(f"s_add_u32 s{S_T2}, s{S_T2}, {APART}")
e(f"buffer_store_dwordx4 v[{H_R}:{H_R+3}], v{H_C}, {srd(SRD_WS)}, s{S_T2} offen sc1")
e(f"s_lshr_b32 s{S_T2}, s{S_WG}, 5")
e(f"s_lshl_b32 s{S_T2}, s{S_T2}, 11")
e(f"s_and_b32 s{S_T3}, s{S_WG}, 31")
e(f"s_lshl_b32 s{S_T3}, s{S_T3}, 3")
e(f"s_add_u32 s{S_T2}, s{S_T2}, s{S_T3}")
e(f"s_add_u32 s{S_T2}, s{S_T2}, {AML}")
e(f"v_lshlrev_b32 v{H_B}, 8, v{H_A}")
assert H_E == H_D + 1
e(f"v_mov_b32 v{H_X+8}, v{H_D}")
e(f"v_mov_b32 v{H_X+9}, v{H_E}")
mask(0x0000000100000001)
e(f"buffer_store_dwordx2 v[{H_X+8}:{H_X+9}], v{H_B}, {srd(SRD_WS)}, s{S_T2} offen sc1")
e("s_mov_b64 exec, -1")
stamp()
c("level-1 gather")
e(f"s_lshr_b32 s{S_T0}, s{S_HW}, 1")
e(f"s_lshl_b32 s{S_T0}, s{S_T0}, 2")
e(f"s_lshr_b32 s{S_T1}, s{S_WG}, 6")
e(f"s_add_u32 s{S_T0}, s{S_T0}, s{S_T1}")
e(f"s_lshr_b32 s{S_T1}, s{S_WG}, 3")
e(f"s_and_b32 s{S_T1}, s{S_T1}, 7")
e(f"s_lshl_b32 s{S_T2}, s{S_T0}, 17")
e(f"s_lshl_b32 s{S_T3}, s{S_T1}, 9")
e(f"s_add_u32 s{S_T2}, s{S_T2}, s{S_T3}")
e(f"s_lshr_b32 s{S_T3}, s{S_WG}, 1")
e(f"s_and_b32 s{S_T3}, s{S_T3}, 3")
e(f"s_lshl_b32 s{S_T3}, s{S_T3}, 7")
e(f"s_add_u32 s{S_T2}, s{S_T2}, s{S_T3}")
e(f"s_and_b32 s{S_T3}, s{S_HW}, 1")
e(f"s_lshl_b32 s{S_T3}, s{S_T3}, 6")
e(f"s_add_u32 s{S_T2}, s{S_T2}, s{S_T3}")
e(f"s_add_u32 s{S_T2}, s{S_T2}, {APART}")
e(f"s_lshl_b32 s{S_T3}, s{S_T0}, 11")
e(f"s_lshl_b32 s{S_T1}, s{S_T1}, 8")
e(f"s_add_u32 s{S_T3}, s{S_T3}, s{S_T1}")
e(f"s_add_u32 s{S_T3}, s{S_T3}, {AML}")
e(f"v_and_b32 v{H_A}, 31, v0")
e(f"v_lshrrev_b32 v{H_B}, 5, v0")
e(f"v_lshlrev_b32 v{H_C}, 3, v{H_A}")
e(f"v_lshlrev_b32 v{H_B}, 5, v{H_B}")
e(f"v_lshl_add_u32 v{H_B}, v{H_A}, 12, v{H_B}")
lab("L_l1f")
e(f"buffer_load_dwordx2 v[{H_R+8}:{H_R+9}], v{H_C}, {srd(SRD_WS)}, s{S_T3} offen sc1")
e("s_waitcnt vmcnt(0)")
e(f"v_max_u32 v{H_D}, v{H_R+8}, v{H_R+9}")
e(f"v_cmp_eq_u32 vcc, -1, v{H_D}")
e(f"s_bcnt1_i32_b64 s{S_T1}, vcc")
e(f"s_cmp_le_u32 s{S_T1}, {cfg.L1TH}")
e("s_cbranch_scc1 L_l1poll")
spin_tail("L_l1f", 2)
lab("L_l1poll")
e(f"buffer_load_dwordx4 v[{H_R}:{H_R+3}], v{H_B}, {srd(SRD_WS)}, s{S_T2} offen sc1")
e(f"buffer_load_dwordx4 v[{H_R+4}:{H_R+7}], v{H_B}, {srd(SRD_WS)}, s{S_T2} offen offset:16 sc1")
e(f"buffer_load_dwordx2 v[{H_R+8}:{H_R+9}], v{H_C}, {srd(SRD_WS)}, s{S_T3} offen sc1")
e("s_waitcnt vmcnt(0)")
e(f"v_max3_u32 v{H_D}, v{H_R}, v{H_R+1}, v{H_R+2}")
e(f"v_max3_u32 v{H_E}, v{H_R+3}, v{H_R+4}, v{H_R+5}")
e(f"v_max3_u32 v{H_D}, v{H_D}, v{H_R+6}, v{H_R+7}")
e(f"v_max3_u32 v{H_E}, v{H_E}, v{H_R+8}, v{H_R+9}")
e(f"v_max_u32 v{H_D}, v{H_D}, v{H_E}")
e(f"v_cmp_eq_u32 vcc, -1, v{H_D}")
e("s_cbranch_vccz L_l1poll_d")
spin_tail("L_l1poll", 1)
lab("L_l1poll_d")
stamp()
e(f"v_mov_b32 v{H_D}, v{H_R+8}")
dpp_reduce("v_max_f32", [H_D], H_X, full=False)
e(f"s_mov_b32 s{S_T1}, {LOG2E:#x}")
e(f"v_sub_f32 v{H_D}, v{H_R+8}, v{H_D}")
e(f"v_mul_f32 v{H_D}, s{S_T1}, v{H_D}")
e(f"v_exp_f32 v{H_D}, v{H_D}")
e("s_nop 0")
for k in range(8):
    e(f"v_mul_f32 v{H_R+k}, v{H_D}, v{H_R+k}")
e(f"v_mul_f32 v{H_R+8}, v{H_D}, v{H_R+9}")
dpp_reduce("v_add_f32", [H_R + k for k in range(9)], H_X, full=False)
e(f"v_rcp_f32 v{H_D}, v{H_R+8}")
e("s_nop 0")
for k in range(8):
    e(f"v_mul_f32 v{H_R+k}, v{H_D}, v{H_R+k}")
for k in range(4):
    e(f"v_cvt_pk_bf16_f32 v{H_R+k}, v{H_R+2*k}, v{H_R+2*k+1}")
e(f"s_lshl_b32 s{S_T1}, s{S_HW}, 5")
e(f"v_lshrrev_b32 v{H_A}, 5, v0")
e(f"v_lshlrev_b32 v{H_A}, 4, v{H_A}")
e(f"v_add_u32 v{H_A}, s{S_T1}, v{H_A}")
mask(0x0000000100000001)
e(f"ds_write_b128 v{H_A}, v[{H_R}:{H_R+3}] offset:{OL}")
e("s_mov_b64 exec, -1")
e("s_waitcnt lgkmcnt(0)")
stamp()
e("s_barrier")
c("f gather (helper 2)")
e(f"s_cmp_lg_u32 s{S_HW}, 2")
e("s_cbranch_scc1 L_h_nof")
mailbox(FPART, "fmb", cfg.FSL)
for k in range(4):
    bf16r(H_R + k, H_R + k, H_B)
    silu(H_R + k, H_R + k, H_B)
    bf16r(H_R + k, H_R + k, H_B)
mask(0x3)
e(f"ds_write_b128 v{H_A}, v[{H_R}:{H_R+3}] offset:{G2L}")
e("s_mov_b64 exec, -1")
e("s_waitcnt lgkmcnt(0)")
lds_flag_set(2)
e("s_branch L_h_end")
lab("L_h_nof")
c("level-2")
e(f"s_cmp_lg_u32 s{S_HW}, 0")
e("s_cbranch_scc1 L_h_end")
e(f"v_and_b32 v{H_C}, 1, v0")
mailbox(SPART, "smb", 1)
stamp()
lds_flag_wait(2, "g2f")
lab("L_g2f_d")
e(f"v_lshlrev_b32 v{H_B}, 4, v{H_C}")
e(f"ds_read_b128 v[{H_X+8}:{H_X+11}], v{H_B} offset:{G2L}")
e(f"s_mov_b32 s{S_T2}, 0xffff0000")
e(f"v_lshlrev_b32 v{H_X}, 16, v{H_XF}")
e(f"v_and_b32 v{H_X+1}, s{S_T2}, v{H_XF}")
e(f"v_lshlrev_b32 v{H_X+2}, 16, v{H_XF+1}")
e(f"v_and_b32 v{H_X+3}, s{S_T2}, v{H_XF+1}")
e("s_waitcnt lgkmcnt(0)")
for k in range(4):
    bf16r(H_R + k, H_R + k, H_B)
    e(f"v_mul_f32 v{H_R+k}, v{H_R+k}, v{H_X+8+k}")
    bf16r(H_R + k, H_R + k, H_B)
    e(f"v_add_f32 v{H_R+k}, v{H_X+k}, v{H_R+k}")
e(f"v_cvt_pk_bf16_f32 v{H_R}, v{H_R}, v{H_R+1}")
e(f"v_cvt_pk_bf16_f32 v{H_R+1}, v{H_R+2}, v{H_R+3}")
e(f"s_lshl_b32 s{S_T0}, s{S_WG}, 3")
e(f"v_lshlrev_b32 v{H_A}, 11, v{H_C}")
mask(0x3)
e(f"buffer_store_dwordx2 v[{H_R}:{H_R+1}], v{H_A}, {srd(SRD_OUT)}, s{S_T0} offen")
e("s_mov_b64 exec, -1")
stamp()
if cfg.DIAG == 2:
    stamp_flush(H_A, H_B, [(4,12,0),(9,13,0),(11,14,0),(12,15,0)])
if cfg.DIAG == 3 and cfg.PROBE >= 0:
    e(f"s_cmp_lg_u32 s{S_WG}, {cfg.PWG}")
    e("s_cbranch_scc1 L_h_end")
    e(f"s_sub_u32 s{S_T0}, s{S_STAMP0+cfg.PROBE}, s100")
    e(f"s_add_u32 s{S_T0}, s{S_T0}, s{S_STAMP0+12}")
    lab("L_probe")
    e("s_memrealtime s[30:31]")
    e("s_waitcnt lgkmcnt(0)")
    e(f"s_sub_u32 s{S_T1}, s30, s{S_T0}")
    e(f"s_cmp_lt_i32 s{S_T1}, 0")
    e("s_cbranch_scc1 L_probe")
lab("L_h_end")
if cfg.DIAG == 1:
    stamp_flush(H_A, H_B)
lab("L_end")
e("s_endpgm")

L.append('.section .rodata,"a"')
L.append(".p2align 6")
L.append(f".amdhsa_kernel {KNAME}")
L.append(f"  .amdhsa_next_free_vgpr {NV_STREAM}")
L.append("  .amdhsa_next_free_sgpr 102")
L.append(f"  .amdhsa_accum_offset {NV_STREAM}")
L.append("  .amdhsa_group_segment_fixed_size 0")
L.append("  .amdhsa_kernarg_size 96")
L.append("  .amdhsa_user_sgpr_count 2")
L.append("  .amdhsa_user_sgpr_kernarg_segment_ptr 1")
L.append("  .amdhsa_system_sgpr_workgroup_id_x 1")
L.append(".end_amdhsa_kernel")
open(sys.argv[1], "w").write("\n".join(L) + "\n")
print("wrote", sys.argv[1], len(L), "lines; LDS", LDS_BYTES)
```

```python
import sys

KNAME = "recurrent_scan__gqa_block_cached__swiglu_ffn__decode_kernel"

class Cfg:
    R = 4
    NT = False
    DIAG = False
    SPIN = 1 << 22
    D = 2
    PAT = 2
    DH = 0
    L1TH = 8
    VS = 0
    FSL = 2
    D2 = 0
    U2 = 14
    TLB = 0
    PRIO = 2
    PROBE = -1
    PWG = 0
    CPF = 0
    ROT = 1
    LATE = 0
    WB = 0
    NS = 6
    ND = 4
    NP = 4

cfg = Cfg()
for a in sys.argv[2:]:
    k, v = a.split("=")
    setattr(cfg, k, int(v))

R = cfg.R
L = []
def e(s): L.append("    " + s)
def lab(s): L.append(s + ":")
def c(s): L.append("    ; " + s)

QPART = 0x000000
GUPART = 0x040000
APART = 0x080000
AML = 0x180000
SPART = 0x200000
FPART = 0x300000
SFLAG = 0x190000
QFLAG = 0x1A0000
HFLAG = 0x1A2000
CNT = 0x1A3000
TSOFF = 0x400000
WS_BYTES = 0x500000

XN = 0
REDQ = XN + 4096
REDG = REDQ + 4096
QL = REDG + 4096
AO = QL + 2048
AMLL = AO + 16384
HL = AMLL + 256
OL = HL + 128
G2L = OL + 128
FLG = G2L + 64
RING = 32768
assert FLG + 64 <= RING
LDS_BYTES = RING + 4 * R * 8192
assert LDS_BYTES <= 163840, LDS_BYTES

S_WG = 2
S_WAVE = 3
SRD_X, SRD_K, SRD_V, SRD_WQ, SRD_WO, SRD_GU, SRD_WD, SRD_OUT, SRD_DBG, SRD_WS, SRD_FP = \
    [56 + 4 * i for i in range(11)]
def srd(b): return f"s[{b}:{b+3}]"
S_WB = 4
S_T0, S_T1, S_T2, S_T3 = 5, 6, 7, 8
S_BQ, S_BG, S_BKV, S_BD, S_BO = 9, 10, 11, 12, 13
S_SPIN = 14
S_T4 = 15
S_STAMP0 = 36
nstamp = [0]
in_stream = [True]

def stamp(kind=0):
    if not cfg.DIAG:
        return
    if in_stream[0] and cfg.VS != kind and kind != 2:
        return
    if in_stream[0] and cfg.DIAG == 3:
        return
    i = nstamp[0]
    assert i < 14
    e("s_memrealtime s[30:31]")
    e("s_waitcnt lgkmcnt(0)")
    e(f"s_mov_b32 s{S_STAMP0+i}, s30")
    nstamp[0] += 1

def stamp_flush(vtmp0, vtmp1, dbgmap=None):
    if not cfg.DIAG:
        return
    n = nstamp[0]
    if cfg.DIAG == 3:
        nstamp[0] = 0
        return
    if cfg.DIAG == 2:
        e("s_mov_b64 exec, 1")
        e(f"v_mov_b32 v{vtmp0}, 0")
        for (i, word, inv) in dbgmap:
            if inv:
                e(f"s_not_b32 s30, s{S_STAMP0+i}")
            else:
                e(f"s_mov_b32 s30, s{S_STAMP0+i}")
            e(f"v_mov_b32 v{vtmp1}, s30")
            e(f"buffer_atomic_umax v{vtmp1}, v{vtmp0}, {srd(SRD_DBG)}, 0 offen offset:{4*word} sc1")
            e("s_nop 1")
        e("s_mov_b64 exec, -1")
        nstamp[0] = 0
        return
    e(f"s_lshl_b32 s30, s{S_WG}, 3")
    e(f"s_add_u32 s30, s30, s{S_WAVE}")
    e("s_lshl_b32 s30, s30, 6")
    e(f"s_add_u32 s30, s30, {TSOFF}")
    e("s_mov_b64 exec, 1")
    e(f"v_mov_b32 v{vtmp0}, 0")
    for i in range(n):
        e(f"v_mov_b32 v{vtmp1}, s{S_STAMP0+i}")
        e(f"buffer_store_dword v{vtmp1}, v{vtmp0}, {srd(SRD_WS)}, s30 offen offset:{4*i}")
        e("s_nop 1")
    e("s_mov_b64 exec, -1")
    nstamp[0] = 0

NTF = " nt" if cfg.NT else ""

LOG2E = 0x3fb8aa3b
SCALE = 0x3db504f3

L.append(f"; @launch grid=(256,1,1) block=(512,1,1) lds={LDS_BYTES}")
L.append('.amdgcn_target "amdgcn-amd-amdhsa--gfx950"')
L.append(".text")
L.append(f".globl {KNAME}")
L.append(".p2align 8")
L.append(f".type {KNAME},@function")
lab(KNAME)
e(f"s_cmp_ge_u32 s{S_WG}, 256")
e("s_cbranch_scc1 L_end")
if cfg.DIAG == 3:
    e("s_memrealtime s[100:101]")
e("s_load_dwordx16 s[32:47], s[0:1], 0")
e("s_load_dwordx8 s[48:55], s[0:1], 64")
e("v_lshrrev_b32 v1, 6, v0")
e("v_and_b32 v0, 63, v0")
e(f"v_readfirstlane_b32 s{S_WAVE}, v1")
e(f"s_mov_b32 s{S_SPIN}, {cfg.SPIN}")
e("s_waitcnt lgkmcnt(0)")
def mk_srd(b, plo, nbytes):
    e(f"s_mov_b32 s{b}, s{plo}")
    e(f"s_mov_b32 s{b+1}, s{plo+1}")
    e(f"s_mov_b32 s{b+2}, {nbytes}")
    e(f"s_mov_b32 s{b+3}, 0x00020000")
mk_srd(SRD_X, 32, 4096)
mk_srd(SRD_K, 34, 0x4000000)
mk_srd(SRD_V, 36, 0x4000000)
mk_srd(SRD_WQ, 38, 0x800000)
mk_srd(SRD_WO, 40, 0x800000)
e(f"s_cmp_ge_u32 s{S_WG}, 112")
e(f"s_cselect_b32 s{SRD_GU}, s46, s44")
e(f"s_cselect_b32 s{SRD_GU+1}, s47, s45")
e(f"s_cmp_lt_u32 s{S_WG}, 224")
e(f"s_cselect_b32 s{SRD_GU+2}, 0x700000, 0")
e(f"s_mov_b32 s{SRD_GU+3}, 0x00020000")
mk_srd(SRD_WD, 48, 0x700000)
e(f"s_cmp_ge_u32 s{S_WG}, 32")
e(f"s_cselect_b32 s{SRD_WD+2}, 0x700000, 0")
mk_srd(SRD_OUT, 50, 4096)
mk_srd(SRD_DBG, 52, 256)
mk_srd(SRD_WS, 54, WS_BYTES)
e(f"s_add_u32 s{SRD_FP}, s54, {FPART}")
e(f"s_addc_u32 s{SRD_FP+1}, s55, 0")
e(f"s_mov_b32 s{SRD_FP+2}, {112*8192}")
e(f"s_mov_b32 s{SRD_FP+3}, 0x00020000")
e(f"s_cmp_ge_u32 s{S_WAVE}, 4")
e("s_cbranch_scc1 L_helper")

c("================ stream waves ================")
V_L = 0
V_G, V_I, V_T0, V_T1, V_T2, V_T3 = 1, 2, 3, 4, 5, 6
V_CV = 7
V_OWQ = 9
V_OGU = 11
V_OW2 = 13
V_OV = 15
V_OK = 17
V_KA = 21
V_VA = 25
V_XB = 33
V_RED = 34
V_ST = 35
V_MX = 36
V_LS = 37
V_MC = 38
V_T4 = 39
V_B = 40
V_A = 56
V_O = 88
NKU = cfg.NS
V_S = 120
V_X = V_S + 8*NKU
V_X2 = V_X + 32
V_CL = V_X2 + 32
V_AL = V_CL + 1
NV_STREAM = (V_CL + 6 + 7) // 8 * 8
assert NV_STREAM <= 256
POOL = (8 - cfg.NS) * 32
S_DYN = 18
S_GB = 24
S_CNT = 25

outstanding = []
def vm_issue(tag): outstanding.append(tag)
def vm_wait(tag):
    if tag not in outstanding:
        return
    idx = max(i for i, t in enumerate(outstanding) if t == tag)
    n = len(outstanding) - 1 - idx
    assert n <= 63
    e(f"s_waitcnt vmcnt({n})")
    del outstanding[:idx + 1]

e(f"v_lshrrev_b32 v{V_G}, 4, v{V_L}")
e(f"v_and_b32 v{V_I}, 15, v{V_L}")
e(f"s_mul_i32 s{S_WB}, s{S_WAVE}, {R*8192}")
e(f"s_add_u32 s{S_WB}, s{S_WB}, {RING}")
e(f"v_lshlrev_b32 v{V_T0}, 1, v{V_G}")
e(f"v_xor_b32 v{V_T0}, v{V_T0}, v{V_I}")
e(f"v_lshlrev_b32 v{V_CV}, 4, v{V_T0}")
e(f"v_xor_b32 v{V_CV+1}, 0x80, v{V_CV}")
def mk_off(dst, rs):
    e(f"v_mul_u32_u24 v{V_T0}, {rs}, v{V_G}")
    e(f"v_add_u32 v{dst}, v{V_T0}, v{V_CV}")
    e(f"v_add_u32 v{dst+1}, v{V_T0}, v{V_CV+1}")
mk_off(V_OWQ, 8192)
e(f"s_and_b32 s{S_T0}, s{S_WG}, 7")
e(f"s_lshl_b32 s{S_T0}, s{S_T0}, 2")
e(f"s_add_u32 s{S_T0}, s{S_T0}, s{S_WAVE}")
e(f"s_lshl_b32 s{S_BQ}, s{S_T0}, 18")
e(f"s_lshl_b32 s{S_T4}, s{S_T0}, 6")
e(f"s_lshr_b32 s{S_T1}, s{S_WG}, 3")
e(f"s_lshl_b32 s{S_T1}, s{S_T1}, 8")
e(f"s_add_u32 s{S_BQ}, s{S_BQ}, s{S_T1}")

def half_throttle():
    if cfg.DH > 0:
        keep = (cfg.DH - 1) * 4
        if len(outstanding) > keep:
            e(f"s_waitcnt vmcnt({keep})")
            del outstanding[:len(outstanding) - keep]
def dma_w(u, srd_b, sbase, extra, rs, voff):
    slot = u % R
    for jj in range(8):
        if jj % 4 == 0:
            half_throttle()
            e(f"s_add_u32 m0, s{S_WB}, {slot*8192 + (jj//4)*4096}")
        e(f"s_add_u32 s{S_T3}, s{sbase}, {extra + jj*4*rs - (jj&3)*1024}")
        e(f"buffer_load_dwordx4 v{voff + (jj&1)}, {srd(srd_b)}, s{S_T3} offen offset:{(jj&3)*1024}{NTF} lds")
        vm_issue(u)

def dma_kv(u, is_k, idx):
    slot = u % R
    for half in range(2):
        half_throttle()
        e(f"s_add_u32 m0, s{S_WB}, {slot*8192 + half*4096}")
        if idx < cfg.NS:
            e(f"s_add_u32 s{S_T3}, s{S_WIN[idx]}, {half*4096}")
        else:
            e(f"s_add_u32 s{S_T3}, s{S_DYN}, {half*4096}")
        for j4 in range(4):
            if is_k:
                e(f"buffer_load_dwordx4 v{V_OK + j4}, {srd(SRD_K)}, s{S_T3} offen offset:{j4*1024}{NTF} lds")
            else:
                e(f"buffer_load_dwordx4 v{V_OV + (j4&1)}, {srd(SRD_V)}, s{S_T3} offen offset:{j4*1024}{NTF} lds")
            vm_issue(u)

U_K0 = 3
U_V0 = U_K0 + NKU
U_VL = U_V0 + NKU - 1
NUNITS = U_VL + 1
SLOT_B = U_VL % R
SLOT_A = (SLOT_B + 1) % R
U_KD = U_VL + 1
U_WD = U_VL + 2
U_WO = U_VL + 3
U_VD = U_VL + 4
def claim():
    e(f"v_mov_b32 v{V_CL}, 1")
    e(f"v_mov_b32 v{V_CL+2}, 0")
    e("s_mov_b64 exec, 1")
    e(f"buffer_atomic_add v{V_CL}, v{V_CL+2}, {srd(SRD_WS)}, s{S_CNT} offen sc0 sc1")
    e("s_mov_b64 exec, -1")
    vm_issue("cl")
def issue_unit(u):
    if u >= NUNITS:
        return
    dd = cfg.D2 if (cfg.D2 and u >= cfg.U2) else cfg.D
    if (u - dd) in outstanding:
        vm_wait(u - dd)
    if u == 0:
        dma_w(u, SRD_WQ, S_BQ, 0, 8192, V_OWQ)
    elif u in (1, 2):
        dma_w(u, SRD_GU, S_BG, (u - 1) * 32 * 7168, 7168, V_OGU)
    elif u < U_V0:
        dma_kv(u, True, u - U_K0)
    else:
        dma_kv(u, False, u - U_V0)
        if u == U_VL:
            claim()

issue_unit(0)
mk_off(V_OGU, 7168)
e(f"s_and_b32 s{S_T0}, s{S_WG}, 3")
e(f"s_lshl_b32 s{S_T0}, s{S_T0}, 2")
e(f"s_add_u32 s{S_T0}, s{S_T0}, s{S_WAVE}")
e(f"s_mul_i32 s{S_BG}, s{S_T0}, {64*7168}")
e(f"s_lshl_b32 s{S_T2}, s{S_T0}, 7")
e(f"s_lshr_b32 s{S_T1}, s{S_WG}, 2")
e(f"s_cmp_ge_u32 s{S_T1}, 28")
e(f"s_cselect_b32 s{S_T0}, 28, 0")
e(f"s_sub_u32 s{S_T1}, s{S_T1}, s{S_T0}")
e(f"s_lshl_b32 s{S_T1}, s{S_T1}, 8")
e(f"s_add_u32 s{S_BG}, s{S_BG}, s{S_T1}")
S_XG = S_T2
S_XQ = S_T4
issue_unit(1)
if cfg.PAT == 0:
    e(f"s_lshl_b32 s{S_BKV}, s{S_WG}, 18")
    e(f"s_lshl_b32 s{S_T0}, s{S_WAVE}, 16")
    e(f"s_add_u32 s{S_BKV}, s{S_BKV}, s{S_T0}")
    KVSTRIDE = 8192
elif cfg.PAT == 1:
    e(f"s_lshl_b32 s{S_BKV}, s{S_WG}, 18")
    e(f"s_lshl_b32 s{S_T0}, s{S_WAVE}, 13")
    e(f"s_add_u32 s{S_BKV}, s{S_BKV}, s{S_T0}")
    KVSTRIDE = 32768
else:
    e(f"s_lshr_b32 s{S_BKV}, s{S_WG}, 5")
    e(f"s_lshl_b32 s{S_BKV}, s{S_BKV}, 23")
    e(f"s_and_b32 s{S_T0}, s{S_WG}, 31")
    e(f"s_lshl_b32 s{S_T0}, s{S_T0}, 2")
    e(f"s_add_u32 s{S_T0}, s{S_T0}, s{S_WAVE}")
    e(f"s_lshl_b32 s{S_T0}, s{S_T0}, 13")
    e(f"s_add_u32 s{S_BKV}, s{S_BKV}, s{S_T0}")
    KVSTRIDE = 1 << 20
S_WIN = [50, 51, 52, 53, 54, 55, 32, 33]
e(f"s_lshr_b32 s{S_T1}, s{S_WG}, 5")
e(f"s_mul_i32 s{S_T1}, s{S_T1}, {cfg.ROT}")
for idx in range(cfg.NS):
    e(f"s_add_u32 s{S_T0}, s{S_T1}, {idx}")
    e(f"s_and_b32 s{S_T0}, s{S_T0}, 7")
    e(f"s_lshl_b32 s{S_T0}, s{S_T0}, 20")
    e(f"s_add_u32 s{S_WIN[idx]}, s{S_BKV}, s{S_T0}")
e(f"s_lshr_b32 s{S_GB}, s{S_WG}, 5")
e(f"s_lshl_b32 s{S_GB}, s{S_GB}, 23")
e(f"s_lshr_b32 s{S_T0}, s{S_WG}, 3")
e(f"s_lshl_b32 s{S_CNT}, s{S_T0}, 7")
e(f"s_add_u32 s{S_CNT}, s{S_CNT}, {CNT}")
e(f"s_and_b32 s{S_T0}, s{S_T0}, 3")
e(f"s_mul_i32 s{S_T0}, s{S_T0}, {POOL}")
e(f"s_lshr_b32 s{S_T3}, s{S_T0}, 7")
e(f"s_add_u32 s{S_T1}, s{S_T1}, s{S_T3}")
e(f"s_add_u32 s{S_T1}, s{S_T1}, {cfg.NS}")
e(f"s_and_b32 s{S_T1}, s{S_T1}, 7")
e(f"s_lshl_b32 s{S_T1}, s{S_T1}, 20")
e(f"s_add_u32 s{S_GB}, s{S_GB}, s{S_T1}")
e(f"s_and_b32 s{S_T0}, s{S_T0}, 127")
e(f"s_lshl_b32 s{S_T0}, s{S_T0}, 13")
e(f"s_add_u32 s{S_GB}, s{S_GB}, s{S_T0}")
assert 128 % POOL == 0
assert cfg.PAT == 2
e(f"v_xor_b32 v{V_T0}, v{V_I}, v{V_G}")
e(f"v_lshlrev_b32 v{V_T1}, 8, v{V_G}")
for j4 in range(4):
    e(f"v_xor_b32 v{V_T2}, {4*j4}, v{V_T0}")
    e(f"v_lshl_add_u32 v{V_OK+j4}, v{V_T2}, 4, v{V_T1}")
mk_off(V_OV, 256)
mk_off(V_OW2, 2048)
e(f"s_max_u32 s{S_T0}, s{S_WG}, 32")
e(f"s_sub_u32 s{S_T0}, s{S_T0}, 32")
def mk_base2(dst, src):
    e(f"s_lshr_b32 s{S_T1}, s{src}, 1")
    e(f"s_lshl_b32 s{dst}, s{S_T1}, 16")
    e(f"s_and_b32 s{S_T1}, s{src}, 1")
    e(f"s_lshl_b32 s{S_T1}, s{S_T1}, 10")
    e(f"s_add_u32 s{dst}, s{dst}, s{S_T1}")
    e(f"s_lshl_b32 s{S_T1}, s{S_WAVE}, 8")
    e(f"s_add_u32 s{dst}, s{dst}, s{S_T1}")
mk_base2(S_BD, S_T0)
mk_base2(S_BO, S_WG)
e(f"v_xor_b32 v{V_T0}, v{V_I}, v{V_G}")
e(f"v_lshlrev_b32 v{V_T1}, 8, v{V_I}")
e(f"v_add_u32 v{V_T1}, s{S_WB}, v{V_T1}")
for ks in range(4):
    e(f"v_xor_b32 v{V_T2}, {4*ks}, v{V_T0}")
    e(f"v_lshl_add_u32 v{V_KA+ks}, v{V_T2}, 4, v{V_T1}")
e(f"v_lshrrev_b32 v{V_T0}, 2, v{V_L}")
e(f"v_lshlrev_b32 v{V_T1}, 8, v{V_T0}")
e(f"v_add_u32 v{V_T1}, s{S_WB}, v{V_T1}")
e(f"v_and_b32 v{V_T2}, 3, v{V_L}")
e(f"v_lshl_add_u32 v{V_T1}, v{V_T2}, 3, v{V_T1}")
e(f"v_and_b32 v{V_T0}, 7, v{V_T0}")
for t in range(8):
    e(f"v_xor_b32 v{V_T2}, {t}, v{V_T0}")
    e(f"v_lshl_add_u32 v{V_VA+t}, v{V_T2}, 5, v{V_T1}")
e(f"v_and_b32 v{V_T0}, 1, v{V_I}")
e(f"v_lshlrev_b32 v{V_T1}, 3, v{V_G}")
e(f"v_lshl_add_u32 v{V_XB}, v{V_T0}, 11, v{V_T1}")
e(f"v_lshlrev_b32 v{V_T1}, 4, v{V_G}")
e(f"v_lshl_add_u32 v{V_RED}, v{V_I}, 9, v{V_T1}")
e(f"v_lshlrev_b32 v{V_T1}, 4, v{V_I}")
e(f"v_lshl_add_u32 v{V_ST}, v{V_G}, 12, v{V_T1}")

def mask(m):
    e(f"s_mov_b32 exec_lo, {m & 0xffffffff:#x}")
    e(f"s_mov_b32 exec_hi, {(m >> 32) & 0xffffffff:#x}")
M_N2 = 0x0003000300030003
M_N8 = 0x00FF00FF00FF00FF

def gemv_unit(u, first, nxt=True):
    slot = u % R
    vm_wait(u)
    for t in range(8):
        e(f"ds_read_b64_tr_b16 v[{V_A+4*t}:{V_A+4*t+1}], v{V_VA+t} offset:{slot*8192}")
        e(f"ds_read_b64_tr_b16 v[{V_A+4*t+2}:{V_A+4*t+3}], v{V_VA+t} offset:{slot*8192+4096}")
        if t == 3:
            pass
    for t in range(8):
        if t % 2 == 0:
            e(f"s_waitcnt lgkmcnt({16 - 2*t - 4})")
        cc = "0" if first else f"v[{V_O+4*t}:{V_O+4*t+3}]"
        e(f"v_mfma_f32_16x16x32_bf16 v[{V_O+4*t}:{V_O+4*t+3}], v[{V_A+4*t}:{V_A+4*t+3}], v[{V_B}:{V_B+3}], {cc}")
    if nxt:
        issue_unit(u + R)

def read_b(vaddr_s, base):
    pass

for u in range(2, cfg.D):
    issue_unit(u)
nxt_issue = [max(2, cfg.D)]
def pump(upto):
    while nxt_issue[0] <= upto:
        issue_unit(nxt_issue[0]); nxt_issue[0] += 1
stamp(2)
e("s_barrier")
c("---- q-proj unit ----")
e(f"v_add_u32 v{V_T3}, s{S_XQ}, v{V_XB}")
e(f"ds_read_b64 v[{V_B}:{V_B+1}], v{V_T3} offset:{XN}")
e(f"ds_read_b64 v[{V_B+2}:{V_B+3}], v{V_T3} offset:{XN+32}")
e(f"v_add_u32 v{V_T3}, s{S_XG}, v{V_XB}")
e(f"ds_read_b64 v[{V_B+4}:{V_B+5}], v{V_T3} offset:{XN}")
e(f"ds_read_b64 v[{V_B+6}:{V_B+7}], v{V_T3} offset:{XN+32}")
e(f"ds_read_b64 v[{V_B+8}:{V_B+9}], v{V_T3} offset:{XN+64}")
e(f"ds_read_b64 v[{V_B+10}:{V_B+11}], v{V_T3} offset:{XN+96}")
e("s_waitcnt lgkmcnt(0)")
gemv_unit(0, True, nxt=False)
e(f"s_lshl_b32 s{S_T0}, s{S_WAVE}, 10")
e(f"v_add_u32 v{V_T3}, s{S_T0}, v{V_RED}")
e("s_nop 7")
mask(M_N2)
for t in range(8):
    e(f"ds_write_b128 v{V_T3}, v[{V_O+4*t}:{V_O+4*t+3}] offset:{REDQ + t*64}")
e("s_mov_b64 exec, -1")
e("s_waitcnt lgkmcnt(0)")
stamp()
e("s_barrier")
pump(cfg.D)
c("---- gate/up units ----")
for k in range(4):
    e(f"v_mov_b32 v{V_B+k}, v{V_B+4+k}")
e("s_nop 1")
gemv_unit(1, True, nxt=False)
pump(1 + cfg.D)
e("s_nop 7")
for k in range(4):
    e(f"v_mov_b32 v{V_B+k}, v{V_B+8+k}")
e("s_nop 1")
gemv_unit(2, False, nxt=False)
e("s_nop 7")
mask(M_N2)
for t in range(8):
    e(f"ds_write_b128 v{V_T3}, v[{V_O+4*t}:{V_O+4*t+3}] offset:{REDG + t*64}")
e("s_mov_b64 exec, -1")
e("s_waitcnt lgkmcnt(0)")
e("s_barrier")
pump(2 + R)
PARK = [V_O, V_X, V_X2, V_A][:cfg.NP]
def k_frags(u, base):
    slot = u % R
    vm_wait(u)
    for tile in range(2):
        for ks in range(4):
            a = base + 16*tile + 4*ks
            e(f"ds_read_b128 v[{a}:{a+3}], v{V_KA+ks} offset:{slot*8192 + tile*4096}")
for ku in range(cfg.NP):
    k_frags(3 + ku, PARK[ku])
    e("s_waitcnt lgkmcnt(0)")
    pump(3 + ku + R)
stamp()
e("s_barrier")
stamp(2)
c("---- load q fragments ----")
e(f"v_and_b32 v{V_T0}, 7, v{V_I}")
e(f"v_lshlrev_b32 v{V_T1}, 4, v{V_G}")
e(f"v_lshl_add_u32 v{V_T0}, v{V_T0}, 8, v{V_T1}")
for ks in range(4):
    e(f"ds_read_b128 v[{V_B+4*ks}:{V_B+4*ks+3}], v{V_T0} offset:{QL + ks*64}")
e(f"s_mov_b32 s{S_T0}, {SCALE:#x}")
e(f"s_mov_b32 s{S_T1}, 0xffff0000")
e(f"v_mov_b32 v{V_MX}, 0xff800000")
e("s_waitcnt lgkmcnt(0)")

def score_post(base):
    for h in range(2):
        a, b = base + 2*h, base + 2*h + 1
        e(f"v_cvt_pk_bf16_f32 v{V_T2}, v{a}, v{b}")
        e(f"v_lshlrev_b32 v{a}, 16, v{V_T2}")
        e(f"v_and_b32 v{b}, s{S_T1}, v{V_T2}")
        e(f"v_mul_f32 v{a}, s{S_T0}, v{a}")
        e(f"v_mul_f32 v{b}, s{S_T0}, v{b}")
        e(f"v_cvt_pk_bf16_f32 v{V_T2}, v{a}, v{b}")
        e(f"v_lshlrev_b32 v{a}, 16, v{V_T2}")
        e(f"v_and_b32 v{b}, s{S_T1}, v{V_T2}")
        e(f"v_max3_f32 v{V_MX}, v{a}, v{b}, v{V_MX}")

c("---- K phase ----")
def k_mfma(base, d0, wait):
    for tile in range(2):
        d = d0 + tile * 4
        if wait:
            e(f"s_waitcnt lgkmcnt({4 - 4*tile})")
        for ks in range(4):
            a = base + 16*tile + 4*ks
            cc = "0" if ks == 0 else f"v[{d}:{d+3}]"
            e(f"v_mfma_f32_16x16x32_bf16 v[{d}:{d+3}], v[{a}:{a+3}], v[{V_B+4*ks}:{V_B+4*ks+3}], {cc}")
for ku in range(NKU):
    u = 3 + ku
    parked = ku < cfg.NP
    base = PARK[ku] if parked else V_A
    if not parked:
        k_frags(u, V_A)
    k_mfma(base, V_S + 8*ku, not parked)
    if not parked:
        pump(u + R)
    e("s_nop 7")
    score_post(V_S + (2*ku) * 4)
    score_post(V_S + (2*ku + 1) * 4)
stamp(2)
c("---- softmax ----")
def xswap(op, v, tmp):
    e(f"v_mov_b32 v{tmp}, v{v}")
    e("s_nop 1")
    e(f"v_permlane16_swap_b32 v{v}, v{tmp}")
    e(f"{op} v{v}, v{v}, v{tmp}")
    e(f"v_mov_b32 v{tmp}, v{v}")
    e("s_nop 1")
    e(f"v_permlane32_swap_b32 v{v}, v{tmp}")
    e(f"{op} v{v}, v{v}, v{tmp}")
xswap("v_max_f32", V_MX, V_T2)
e(f"s_mov_b32 s{S_T2}, {LOG2E:#x}")
e(f"v_mul_f32 v{V_MC}, s{S_T2}, v{V_MX}")
e(f"v_mov_b32 v{V_LS}, 0")
e(f"v_mov_b32 v{V_T4}, 0")
def exp_block(r0, n):
    for r in range(r0, r0 + n, 2):
        a, b = V_S + r, V_S + r + 1
        e(f"v_fma_f32 v{a}, v{a}, s{S_T2}, -v{V_MC}")
        e(f"v_fma_f32 v{b}, v{b}, s{S_T2}, -v{V_MC}")
        e(f"v_exp_f32 v{a}, v{a}")
        e(f"v_exp_f32 v{b}, v{b}")
        e("s_nop 0")
        e(f"v_add_f32 v{V_LS}, v{V_LS}, v{a}")
        e(f"v_add_f32 v{V_T4}, v{V_T4}, v{b}")
        e(f"v_cvt_pk_bf16_f32 v{V_S + (r//8)*8 + (r%8)//2}, v{a}, v{b}")
exp_block(0, 8*NKU)
e(f"v_add_f32 v{V_LS}, v{V_LS}, v{V_T4}")
stamp()
c("---- V phase ----")
def v_consume(slot, preg, first):
    for t in range(8):
        e(f"ds_read_b64_tr_b16 v[{V_A+4*t}:{V_A+4*t+1}], v{V_VA+t} offset:{slot*8192}")
        e(f"ds_read_b64_tr_b16 v[{V_A+4*t+2}:{V_A+4*t+3}], v{V_VA+t} offset:{slot*8192+4096}")
    for t in range(8):
        if t % 2 == 0:
            e(f"s_waitcnt lgkmcnt({16 - 2*t - 4})")
        cc = "0" if first else f"v[{V_O+4*t}:{V_O+4*t+3}]"
        e(f"v_mfma_f32_16x16x32_bf16 v[{V_O+4*t}:{V_O+4*t+3}], v[{V_A+4*t}:{V_A+4*t+3}], v[{preg}:{preg+3}], {cc}")
for vu in range(NKU - 1):
    u = U_V0 + vu
    vm_wait(u)
    v_consume(u % R, V_S + 8*vu, vu == 0)
    pump(u + R)
    stamp(1)
assert outstanding == [U_VL]*8 + ["cl"], outstanding
PD = V_S + 8*(NKU - 1)
e("s_waitcnt vmcnt(1)")
v_consume(SLOT_B, PD, False)
lab("L_dyn")
e("s_waitcnt vmcnt(0)")
del outstanding[:]
e(f"v_readfirstlane_b32 s{S_T3}, v{V_CL}")
e(f"s_add_u32 s{S_T3}, s{S_T3}, 1")
e(f"s_cmp_ge_u32 s{S_T3}, {POOL}")
e("s_cbranch_scc1 L_dyn_exit")
e(f"s_lshl_b32 s{S_T3}, s{S_T3}, 13")
e(f"s_add_u32 s{S_DYN}, s{S_T3}, s{S_GB}")
dma_kv(U_KD, True, 99)
dma_kv(U_VD, False, 99)
e("s_waitcnt vmcnt(8)")
claim()
del outstanding[:]
for tile in range(2):
    for ks in range(4):
        a = V_A + 16*tile + 4*ks
        e(f"ds_read_b128 v[{a}:{a+3}], v{V_KA+ks} offset:{SLOT_A*8192 + tile*4096}")
k_mfma(V_A, PD, True)
e("s_nop 7")
score_post(PD)
score_post(PD + 4)
xswap("v_max_f32", V_MX, V_T2)
e(f"v_mul_f32 v{V_T4}, s{S_T2}, v{V_MX}")
e(f"v_sub_f32 v{V_AL}, v{V_MC}, v{V_T4}")
e(f"v_exp_f32 v{V_AL}, v{V_AL}")
e(f"v_mov_b32 v{V_MC}, v{V_T4}")
e(f"v_mov_b32 v{V_T4}, 0")
e(f"v_mul_f32 v{V_LS}, v{V_LS}, v{V_AL}")
for r in range(32):
    e(f"v_mul_f32 v{V_O+r}, v{V_O+r}, v{V_AL}")
exp_block(8*(NKU - 1), 8)
e(f"v_add_f32 v{V_LS}, v{V_LS}, v{V_T4}")
e("s_waitcnt vmcnt(1)")
v_consume(SLOT_B, PD, False)
e("s_branch L_dyn")
lab("L_dyn_exit")
if cfg.LATE == 0:
    dma_w(U_WD, SRD_WD, S_BD, 0, 2048, V_OW2)
    dma_w(U_WO, SRD_WO, S_BO, 0, 2048, V_OW2)
if cfg.LATE == 3:
    dma_w(U_WD, SRD_WD, S_BD, 0, 2048, V_OW2)
xswap("v_add_f32", V_LS, V_T2)
c("---- write attention partial to LDS ----")
e(f"s_lshl_b32 s{S_T0}, s{S_WAVE}, 12")
e(f"v_add_u32 v{V_T3}, s{S_T0}, v{V_RED}")
e(f"s_lshl_b32 s{S_T0}, s{S_WAVE}, 3")
e(f"v_lshlrev_b32 v{V_T2}, 5, v{V_I}")
e(f"v_add_u32 v{V_T2}, s{S_T0}, v{V_T2}")
e(f"v_mov_b32 v{V_MX+1}, v{V_LS}") if V_LS != V_MX + 1 else None
e("s_nop 7")
mask(M_N8)
for t in range(8):
    e(f"ds_write_b128 v{V_T3}, v[{V_O+4*t}:{V_O+4*t+3}] offset:{AO + t*64}")
mask(0xFF)
e(f"ds_write_b64 v{V_T2}, v[{V_MX}:{V_MX+1}] offset:{AMLL}")
e("s_mov_b64 exec, -1")
e("s_waitcnt lgkmcnt(0)")
stamp()
e("s_barrier")
if cfg.LATE == 1:
    dma_w(U_WD, SRD_WD, S_BD, 0, 2048, V_OW2)
    dma_w(U_WO, SRD_WO, S_BO, 0, 2048, V_OW2)
if cfg.LATE == 2:
    dma_w(U_WD, SRD_WD, S_BD, 0, 2048, V_OW2)
    vm_wait(U_WD)
    dma_w(U_WO, SRD_WO, S_BO, 0, 2048, V_OW2)
if cfg.LATE == 3:
    vm_wait(U_WD)
    dma_w(U_WO, SRD_WO, S_BO, 0, 2048, V_OW2)
c("---- down-proj unit ----")
e(f"v_and_b32 v{V_T0}, 1, v{V_I}")
e(f"v_lshlrev_b32 v{V_T1}, 3, v{V_G}")
e(f"v_lshl_add_u32 v{V_T3}, v{V_T0}, 6, v{V_T1}")
e(f"ds_read_b64 v[{V_B}:{V_B+1}], v{V_T3} offset:{HL}")
e(f"ds_read_b64 v[{V_B+2}:{V_B+3}], v{V_T3} offset:{HL+32}")
e("s_waitcnt lgkmcnt(0)")
gemv_unit(U_WD, True, nxt=False)
def store_part(sb, region, oob_lt32):
    e("s_nop 7")
    for r in range(32):
        e(f"v_min_u32 v{V_O+r}, 0xfffffffe, v{V_O+r}")
    e(f"s_lshr_b32 s{S_T0}, s{sb}, 16")
    e(f"s_lshl_b32 s{S_T0}, s{S_T0}, 5")
    e(f"s_and_b32 s{S_T1}, s{sb}, 0xffff")
    e(f"s_lshl_b32 s{S_T1}, s{S_T1}, 9")
    e(f"s_add_u32 s{S_T0}, s{S_T0}, s{S_T1}")
    e(f"s_add_u32 s{S_T0}, s{S_T0}, {region}")
    if oob_lt32:
        e(f"s_cmp_lt_u32 s{S_WG}, 32")
        e(f"s_cselect_b32 s{S_T0}, 0x40000000, s{S_T0}")
    mask(M_N2)
    for t in range(8):
        e(f"buffer_store_dwordx4 v[{V_O+4*t}:{V_O+4*t+3}], v{V_ST}, {srd(SRD_WS)}, s{S_T0} offen sc1")
        vm_issue("st")
        if t < 7:
            e(f"s_add_u32 s{S_T0}, s{S_T0}, 16384")
    e("s_mov_b64 exec, -1")
store_part(S_BD, FPART, True)
stamp()
e("s_barrier")
stamp()
c("---- wo unit ----")
e(f"v_and_b32 v{V_T0}, 1, v{V_I}")
e(f"v_lshlrev_b32 v{V_T1}, 3, v{V_G}")
e(f"v_lshl_add_u32 v{V_T3}, v{V_T0}, 6, v{V_T1}")
e(f"ds_read_b64 v[{V_B}:{V_B+1}], v{V_T3} offset:{OL}")
e(f"ds_read_b64 v[{V_B+2}:{V_B+3}], v{V_T3} offset:{OL+32}")
e("s_waitcnt lgkmcnt(0)")
gemv_unit(U_WO, True, nxt=False)
stamp()
store_part(S_BO, SPART, False)
stamp()
if cfg.DIAG:
    e("s_waitcnt vmcnt(0)")
stamp()
stamp_flush(V_T0, V_T1, [(0,4,1),(0,5,0),(3,6,0),(4,7,0),(6,8,1),(6,9,0),(8,10,0),(11,11,0)])
e("s_endpgm")

in_stream[0] = False
lab("L_helper")
if cfg.PRIO:
    e(f"s_setprio {cfg.PRIO}")
c("================ helper waves ================")
S_HW = 4
H_T = 1
H_A, H_B, H_C, H_D, H_E = 2, 3, 4, 5, 6
H_XF = 8
H_NEG = 12
H_X = 16
H_R = 32
e(f"s_sub_u32 s{S_HW}, s{S_WAVE}, 4")
e(f"s_and_b32 s{S_T0}, s{S_HW}, 1")
e(f"s_lshl_b32 s{S_T1}, s{S_T0}, 11")
e(f"v_lshlrev_b32 v{H_A}, 5, v0")
e(f"buffer_load_dwordx4 v[{H_R}:{H_R+3}], v{H_A}, {srd(SRD_X)}, s{S_T1} offen")
e(f"buffer_load_dwordx4 v[{H_R+4}:{H_R+7}], v{H_A}, {srd(SRD_X)}, s{S_T1} offen offset:16")
e(f"s_lshl_b32 s{S_T2}, s{S_WG}, 3")
e(f"v_and_b32 v{H_B}, 1, v0")
e(f"v_lshlrev_b32 v{H_B}, 11, v{H_B}")
e(f"buffer_load_dwordx2 v[{H_XF}:{H_XF+1}], v{H_B}, {srd(SRD_X)}, s{S_T2} offen")
e(f"s_lshl_b32 s{S_T2}, s{S_HW}, 6")
e(f"v_add_u32 v{H_T}, s{S_T2}, v0")
for k in range(4):
    e(f"v_mov_b32 v{H_NEG+k}, -1")
e(f"v_mov_b32 v{H_C}, 0")
e(f"v_lshlrev_b32 v{H_D}, 2, v0")
e(f"v_and_b32 v{H_D}, 63, v{H_D}")
e(f"ds_write_b32 v{H_D}, v{H_C} offset:{FLG}")
if cfg.TLB:
    c("page pre-touch (helper 3)")
    e(f"s_cmp_lg_u32 s{S_HW}, 3")
    e("s_cbranch_scc1 L_h_notlb")
    e(f"v_lshlrev_b32 v{H_C}, {cfg.TLB}, v0")
    per = 64 << cfg.TLB
    k = 0
    for sr, nb in ((SRD_WQ, 8<<20), (SRD_GU, 7<<20), (SRD_K, 64<<20), (SRD_V, 64<<20), (SRD_WD, 7<<20), (SRD_WO, 8<<20), (SRD_WS, WS_BYTES)):
        for off in range(0, nb, per):
            e(f"s_mov_b32 s{S_T2}, {off}")
            e(f"buffer_load_dword v{H_R+16+(k%16)}, v{H_C}, {srd(sr)}, s{S_T2} offen")
            k += 1
    lab("L_h_notlb")
if cfg.CPF:
    c("code prefetch into L2 (helper 3)")
    e(f"s_cmp_lg_u32 s{S_HW}, 3")
    e("s_cbranch_scc1 L_h_nocpf")
    e("s_getpc_b64 s[30:31]")
    lab("L_pcref")
    e(f"s_sub_u32 s30, s30, L_pcref-{KNAME}")
    e("s_subb_u32 s31, s31, 0")
    e(f"v_lshlrev_b32 v{H_C}, 6, v0")
    for k in range(cfg.CPF):
        e(f"v_min_u32 v{H_D}, L_end-{KNAME}, v{H_C}")
        e(f"global_load_dword v{H_R+16+(k%16)}, v{H_D}, s[30:31]")
        e(f"v_add_u32 v{H_C}, 4096, v{H_C}")
    lab("L_h_nocpf")
c("bootstrap: WG 0 clears the flag area, then raises d_debug[0]")
e(f"v_lshlrev_b32 v{H_B}, 4, v{H_T}")
e(f"s_cmp_lg_u32 s{S_WG}, 0")
e("s_cbranch_scc1 L_h_noboot")
for k in range(4):
    e(f"s_mov_b32 s{S_T2}, {QFLAG + k*4096}")
    e(f"buffer_store_dwordx4 v[{H_NEG}:{H_NEG+3}], v{H_B}, {srd(SRD_WS)}, s{S_T2} offen sc1")
e("s_waitcnt vmcnt(0)")
e(f"s_lshl_b32 s{S_T2}, s{S_HW}, 2")
e(f"v_mov_b32 v{H_C}, 1")
e(f"v_mov_b32 v{H_D}, 0")
e("s_mov_b64 exec, 1")
e(f"buffer_store_dword v{H_C}, v{H_D}, {srd(SRD_DBG)}, s{S_T2} offen sc1")
e("s_mov_b64 exec, -1")
lab("L_h_noboot")
c("clear sentinels")
e(f"v_lshlrev_b32 v{H_B}, 4, v{H_T}")
e(f"s_lshl_b32 s{S_T2}, s{S_WG}, 12")
e(f"s_add_u32 s{S_T2}, s{S_T2}, {APART}")
e(f"buffer_store_dwordx4 v[{H_NEG}:{H_NEG+3}], v{H_B}, {srd(SRD_WS)}, s{S_T2} offen sc1")
e(f"s_lshl_b32 s{S_T2}, s{S_WG}, 12")
e(f"s_add_u32 s{S_T3}, s{S_T2}, {SPART}")
e(f"buffer_store_dwordx4 v[{H_NEG}:{H_NEG+3}], v{H_B}, {srd(SRD_WS)}, s{S_T3} offen sc1")
e(f"v_cmp_gt_u32 vcc, 224, v{H_T}")
e("s_nop 1")
for k in range(4):
    e(f"v_cndmask_b32 v{H_X+k}, 0, v{H_NEG}, vcc")
e(f"s_add_u32 s{S_T3}, s{S_T2}, {FPART}")
e(f"buffer_store_dwordx4 v[{H_X}:{H_X+3}], v{H_B}, {srd(SRD_WS)}, s{S_T3} offen sc1")
e(f"s_cmp_lg_u32 s{S_HW}, 0")
e("s_cbranch_scc1 L_h_skipml")
e(f"s_lshr_b32 s{S_T2}, s{S_WG}, 5")
e(f"s_lshl_b32 s{S_T2}, s{S_T2}, 11")
e(f"s_and_b32 s{S_T3}, s{S_WG}, 31")
e(f"s_lshl_b32 s{S_T3}, s{S_T3}, 3")
e(f"s_add_u32 s{S_T2}, s{S_T2}, s{S_T3}")
e(f"s_add_u32 s{S_T2}, s{S_T2}, {AML}")
e(f"v_lshlrev_b32 v{H_C}, 8, v0")
mask(0xFF)
e(f"buffer_store_dwordx2 v[{H_NEG}:{H_NEG+1}], v{H_C}, {srd(SRD_WS)}, s{S_T2} offen sc1")
e("s_mov_b64 exec, -1")
lab("L_h_skipml")

def dpp_reduce(op, regs, tmpbase, full=True):
    for pat in ["quad_perm:[1,0,3,2]", "quad_perm:[2,3,0,1]", "row_half_mirror", "row_mirror"]:
        if len(regs) < 3:
            e("s_nop 1")
        for r in regs:
            e(f"{op}_dpp v{r}, v{r}, v{r} {pat} row_mask:0xf bank_mask:0xf")
    swaps = ["v_permlane16_swap_b32"] + (["v_permlane32_swap_b32"] if full else [])
    for sw in swaps:
        for k, r in enumerate(regs):
            e(f"v_mov_b32 v{tmpbase+k}, v{r}")
        e("s_nop 1")
        for k, r in enumerate(regs):
            e(f"{sw} v{r}, v{tmpbase+k}")
        for k, r in enumerate(regs):
            e(f"{op} v{r}, v{r}, v{tmpbase+k}")

def bf16r(dst, src, tmp):
    e(f"v_cvt_pk_bf16_f32 v{tmp}, v{src}, v{src}")
    e(f"v_lshlrev_b32 v{dst}, 16, v{tmp}")

c("layernorm")
e("s_waitcnt vmcnt(3)")
e(f"s_mov_b32 s{S_T2}, 0xffff0000")
for k in range(8):
    e(f"v_lshlrev_b32 v{H_X+2*k}, 16, v{H_R+k}")
    e(f"v_and_b32 v{H_X+2*k+1}, s{S_T2}, v{H_R+k}")
e(f"v_add_f32 v{H_A}, v{H_X}, v{H_X+1}")
for k in range(2, 16):
    e(f"v_add_f32 v{H_A}, v{H_A}, v{H_X+k}")
dpp_reduce("v_add_f32", [H_A], H_B)
e(f"v_mul_f32 v{H_A}, 0x3a800000, v{H_A}")
e(f"v_mov_b32 v{H_C}, 0")
for k in range(16):
    e(f"v_sub_f32 v{H_D}, v{H_X+k}, v{H_A}")
    e(f"v_fmac_f32 v{H_C}, v{H_D}, v{H_D}")
dpp_reduce("v_add_f32", [H_C], H_B)
e(f"v_mul_f32 v{H_C}, 0x3a800000, v{H_C}")
bf16r(H_A, H_A, H_B)
bf16r(H_C, H_C, H_B)
e(f"v_add_f32 v{H_C}, 0x3727c5ac, v{H_C}")
bf16r(H_C, H_C, H_B)
e(f"v_sqrt_f32 v{H_C}, v{H_C}")
e("s_nop 0")
bf16r(H_C, H_C, H_B)
e(f"v_rcp_f32 v{H_D}, v{H_C}")
e("s_nop 0")
for k in range(0, 16, 2):
    a, b = H_X + k, H_X + k + 1
    e(f"v_sub_f32 v{a}, v{a}, v{H_A}")
    e(f"v_sub_f32 v{b}, v{b}, v{H_A}")
    e(f"v_cvt_pk_bf16_f32 v{H_B}, v{a}, v{b}")
    e(f"v_lshlrev_b32 v{a}, 16, v{H_B}")
    e(f"v_and_b32 v{b}, s{S_T2}, v{H_B}")
    for x in (a, b):
        e(f"v_mul_f32 v{H_E}, v{x}, v{H_D}")
        e(f"v_fma_f32 v{x}, -v{H_E}, v{H_C}, v{x}")
        e(f"v_fma_f32 v{x}, v{x}, v{H_D}, v{H_E}")
    e(f"v_cvt_pk_bf16_f32 v{H_R+k//2}, v{a}, v{b}")
e(f"v_lshlrev_b32 v{H_A}, 5, v0")
e(f"v_add_u32 v{H_A}, s{S_T1}, v{H_A}")
e(f"ds_write_b128 v{H_A}, v[{H_R}:{H_R+3}] offset:{XN}")
e(f"ds_write_b128 v{H_A}, v[{H_R+4}:{H_R+7}] offset:{XN+16}")
e("s_waitcnt lgkmcnt(0)")
stamp()
e("s_barrier")
e("s_barrier")
stamp()

def red_publish(red_off, soff_emit, cnt_off_emit, skip_store_if=None, tag=""):
    e(f"v_lshlrev_b32 v{H_A}, 4, v0")
    for w in range(4):
        e(f"ds_read_b128 v[{H_R+4*w}:{H_R+4*w+3}], v{H_A} offset:{red_off + w*1024}")
    e("s_waitcnt lgkmcnt(0)")
    for k in range(4):
        e(f"v_add_f32 v{H_R+k}, v{H_R+k}, v{H_R+4+k}")
        e(f"v_add_f32 v{H_R+8+k}, v{H_R+8+k}, v{H_R+12+k}")
    for k in range(4):
        e(f"v_add_f32 v{H_R+k}, v{H_R+k}, v{H_R+8+k}")
    soff_emit()
    if skip_store_if:
        skip_store_if("L_skipst" + tag)
    e(f"buffer_store_dwordx4 v[{H_R}:{H_R+3}], v{H_B}, {srd(SRD_WS)}, s{S_T2} offen sc1")
    if skip_store_if:
        lab("L_skipst" + tag)
    e(f"v_mov_b32 v{H_A}, 0")
    lab("L_boot" + tag)
    e(f"buffer_load_dwordx4 v[{H_R+4}:{H_R+7}], v{H_A}, {srd(SRD_DBG)}, 0 offen sc1")
    e("s_waitcnt vmcnt(0)")
    e(f"v_and_b32 v{H_R+4}, v{H_R+4}, v{H_R+5}")
    e(f"v_and_b32 v{H_R+6}, v{H_R+6}, v{H_R+7}")
    e(f"v_and_b32 v{H_R+4}, v{H_R+4}, v{H_R+6}")
    e(f"v_cmp_eq_u32 vcc, 0, v{H_R+4}")
    e(f"s_cbranch_vccz L_bootd{tag}")
    e("s_sleep 8")
    e(f"s_sub_u32 s{S_SPIN}, s{S_SPIN}, 1")
    e(f"s_cmp_lg_u32 s{S_SPIN}, 0")
    e(f"s_cbranch_scc1 L_boot{tag}")
    e(f"s_mov_b32 s{S_SPIN}, 1")
    lab("L_bootd" + tag)
    cnt_off_emit()
    e(f"v_mov_b32 v{H_A}, 0")
    e(f"buffer_store_dword v{H_A}, v{H_B}, {srd(SRD_WS)}, s{S_T2} offen sc1")
    e("s_mov_b64 exec, -1")

c("publish q partial (helper 0)")
e(f"s_cmp_lg_u32 s{S_HW}, 0")
e("s_cbranch_scc1 L_h_noq")
def q_soff():
    e(f"v_and_b32 v{H_B}, 31, v0")
    e(f"v_lshlrev_b32 v{H_B}, 4, v{H_B}")
    e(f"v_lshrrev_b32 v{H_C}, 5, v0")
    e(f"v_lshl_add_u32 v{H_B}, v{H_C}, 14, v{H_B}")
    e(f"s_and_b32 s{S_T2}, s{S_WG}, 7")
    e(f"s_lshl_b32 s{S_T2}, s{S_T2}, 15")
    e(f"s_lshr_b32 s{S_T3}, s{S_WG}, 3")
    e(f"s_lshl_b32 s{S_T3}, s{S_T3}, 9")
    e(f"s_add_u32 s{S_T2}, s{S_T2}, s{S_T3}")
    if QPART:
        e(f"s_add_u32 s{S_T2}, s{S_T2}, {QPART}")
def q_cnt():
    e(f"s_lshl_b32 s{S_T2}, s{S_WG}, 2")
    e(f"s_add_u32 s{S_T2}, s{S_T2}, {QFLAG}")
    e(f"v_lshlrev_b32 v{H_B}, 10, v0")
    mask(0xFF)
red_publish(REDQ, q_soff, q_cnt, None, "q")
e("s_branch L_h_q2")
lab("L_h_noq")
e("s_waitcnt vmcnt(0)")
lab("L_h_q2")
if cfg.WB:
    e(f"s_cmp_lg_u32 s{S_HW}, 3")
    e("s_cbranch_scc1 L_h_nowb")
    e(f"s_cmp_ge_u32 s{S_WG}, {cfg.WB}")
    e("s_cbranch_scc1 L_h_nowb")
    e("buffer_wbl2 sc1")
    lab("L_h_nowb")
stamp()
e("s_barrier")
c("publish gate/up partial (helper 1)")
e(f"s_cmp_lg_u32 s{S_HW}, 1")
e("s_cbranch_scc1 L_h_nog")
def g_soff():
    e(f"v_and_b32 v{H_B}, 31, v0")
    e(f"v_lshlrev_b32 v{H_B}, 4, v{H_B}")
    e(f"v_lshrrev_b32 v{H_C}, 5, v0")
    e(f"v_mul_u32_u24 v{H_C}, 14336, v{H_C}")
    e(f"v_add_u32 v{H_B}, v{H_C}, v{H_B}")
    e(f"s_lshr_b32 s{S_T3}, s{S_WG}, 2")
    e(f"s_cmp_ge_u32 s{S_T3}, 28")
    e(f"s_cselect_b32 s{S_T2}, 28, 0")
    e(f"s_sub_u32 s{S_T3}, s{S_T3}, s{S_T2}")
    e(f"s_lshr_b32 s{S_T2}, s{S_WG}, 2")
    e(f"s_cmp_ge_u32 s{S_T2}, 28")
    e(f"s_cselect_b32 s{S_T2}, 4, 0")
    e(f"s_and_b32 s{S_T4}, s{S_WG}, 3")
    e(f"s_add_u32 s{S_T2}, s{S_T2}, s{S_T4}")
    e(f"s_mul_i32 s{S_T2}, s{S_T2}, {2*14336}")
    e(f"s_lshl_b32 s{S_T3}, s{S_T3}, 9")
    e(f"s_add_u32 s{S_T2}, s{S_T2}, s{S_T3}")
    e(f"s_add_u32 s{S_T2}, s{S_T2}, {GUPART}")
def g_skip(l):
    e(f"s_cmp_ge_u32 s{S_WG}, 224")
    e(f"s_cbranch_scc1 {l}")
def g_cnt():
    e(f"s_lshl_b32 s{S_T2}, s{S_WG}, 2")
    e(f"s_add_u32 s{S_T2}, s{S_T2}, {HFLAG}")
    e(f"v_lshlrev_b32 v{H_B}, 10, v0")
    mask(0xF)
red_publish(REDG, g_soff, g_cnt, g_skip, "g")
lab("L_h_nog")

def lds_flag_wait(idx, name):
    lab(f"L_{name}_w")
    e(f"v_mov_b32 v{H_A}, 0")
    e(f"ds_read_b32 v{H_B}, v{H_A} offset:{FLG + 4*idx}")
    e("s_waitcnt lgkmcnt(0)")
    e(f"v_readfirstlane_b32 s{S_T2}, v{H_B}")
    e(f"s_cmp_lg_u32 s{S_T2}, 0")
    e(f"s_cbranch_scc1 L_{name}_d")
    e("s_sleep 1")
    e(f"s_sub_u32 s{S_SPIN}, s{S_SPIN}, 1")
    e(f"s_cmp_lg_u32 s{S_SPIN}, 0")
    e(f"s_cbranch_scc1 L_{name}_w")
    e(f"s_mov_b32 s{S_SPIN}, 1")
    e(f"s_branch L_{name}_d")

def lds_flag_set(idx):
    e(f"v_mov_b32 v{H_A}, 0")
    e(f"v_mov_b32 v{H_B}, 1")
    e(f"ds_write_b32 v{H_A}, v{H_B} offset:{FLG + 4*idx}")

c("wait for q counter")
e(f"s_cmp_lg_u32 s{S_HW}, 0")
e("s_cbranch_scc1 L_qf_w")
e(f"s_lshr_b32 s{S_T3}, s{S_WG}, 5")
e(f"s_and_b32 s{S_T3}, s{S_T3}, 3")
e(f"s_lshl_b32 s{S_T3}, s{S_T3}, 8")
e(f"s_and_b32 s{S_T2}, s{S_WG}, 7")
e(f"s_lshl_b32 s{S_T2}, s{S_T2}, 10")
e(f"s_add_u32 s{S_T3}, s{S_T3}, s{S_T2}")
e(f"s_add_u32 s{S_T3}, s{S_T3}, {QFLAG}")
e(f"v_lshlrev_b32 v{H_A}, 2, v0")
lab("L_qpoll")
e(f"buffer_load_dword v{H_B}, v{H_A}, {srd(SRD_WS)}, s{S_T3} offen sc1")
e("s_waitcnt vmcnt(0)")
e(f"v_cmp_eq_u32 vcc, -1, v{H_B}")
e("s_cbranch_vccz L_qpoll_d")
e("s_sleep 4")
e(f"s_sub_u32 s{S_SPIN}, s{S_SPIN}, 1")
e(f"s_cmp_lg_u32 s{S_SPIN}, 0")
e("s_cbranch_scc1 L_qpoll")
e(f"s_mov_b32 s{S_SPIN}, 1")
lab("L_qpoll_d")
lds_flag_set(0)
e("s_branch L_qf_d")
lds_flag_wait(0, "qf")
lab("L_qf_d")
stamp()
c("gather q")
e(f"s_lshr_b32 s{S_T2}, s{S_WG}, 5")
e(f"s_lshl_b32 s{S_T2}, s{S_T2}, 12")
e(f"v_lshlrev_b32 v{H_A}, 4, v{H_T}")
for ks in range(8):
    e(f"s_add_u32 s{S_T3}, s{S_T2}, {QPART + ks*32768}")
    e(f"buffer_load_dwordx4 v[{H_R+4*ks}:{H_R+4*ks+3}], v{H_A}, {srd(SRD_WS)}, s{S_T3} offen sc1")
e("s_waitcnt vmcnt(0)")
for ks in range(1, 8):
    for k in range(4):
        e(f"v_add_f32 v{H_R+k}, v{H_R+k}, v{H_R+4*ks+k}")
e(f"v_cvt_pk_bf16_f32 v{H_R}, v{H_R}, v{H_R+1}")
e(f"v_cvt_pk_bf16_f32 v{H_R+1}, v{H_R+2}, v{H_R+3}")
e(f"v_lshlrev_b32 v{H_A}, 3, v{H_T}")
e(f"ds_write_b64 v{H_A}, v[{H_R}:{H_R+1}] offset:{QL}")
e("s_waitcnt lgkmcnt(0)")
stamp()
e("s_barrier")
c("wait for h counter (helper 0), h gather (helper 1)")
e(f"s_cmp_eq_u32 s{S_HW}, 1")
e("s_cbranch_scc1 L_hf_w")
e(f"s_cmp_lg_u32 s{S_HW}, 0")
e("s_cbranch_scc1 L_h_b5")
e(f"v_lshlrev_b32 v{H_A}, 4, v0")
e(f"s_and_b32 s{S_T2}, s{S_WG}, 3")
e(f"s_lshl_b32 s{S_T2}, s{S_T2}, 10")
e(f"s_add_u32 s{S_T2}, s{S_T2}, {HFLAG}")
lab("L_hpoll")
e(f"buffer_load_dwordx4 v[{H_R}:{H_R+3}], v{H_A}, {srd(SRD_WS)}, s{S_T2} offen sc1")
e("s_waitcnt vmcnt(0)")
e(f"v_max3_u32 v{H_B}, v{H_R}, v{H_R+1}, v{H_R+2}")
e(f"v_max_u32 v{H_B}, v{H_B}, v{H_R+3}")
e(f"v_cmp_eq_u32 vcc, -1, v{H_B}")
e("s_cbranch_vccz L_hpoll_d")
e("s_sleep 16")
e(f"s_sub_u32 s{S_SPIN}, s{S_SPIN}, 1")
e(f"s_cmp_lg_u32 s{S_SPIN}, 0")
e("s_cbranch_scc1 L_hpoll")
e(f"s_mov_b32 s{S_SPIN}, 1")
lab("L_hpoll_d")
lds_flag_set(1)
e("s_branch L_h_b5")
lds_flag_wait(1, "hf")
lab("L_hf_d")
e(f"s_max_u32 s{S_T2}, s{S_WG}, 32")
e(f"s_sub_u32 s{S_T2}, s{S_T2}, 32")
e(f"s_lshr_b32 s{S_T2}, s{S_T2}, 1")
e(f"s_lshl_b32 s{S_T2}, s{S_T2}, 7")
e(f"v_and_b32 v{H_A}, 31, v0")
e(f"v_lshlrev_b32 v{H_A}, 2, v{H_A}")
e(f"v_lshrrev_b32 v{H_B}, 5, v0")
e(f"v_mul_u32_u24 v{H_B}, 14336, v{H_B}")
e(f"v_add_u32 v{H_A}, v{H_A}, v{H_B}")
for m in range(8):
    e(f"s_add_u32 s{S_T3}, s{S_T2}, {GUPART + m*2*14336}")
    e(f"buffer_load_dword v{H_R+m}, v{H_A}, {srd(SRD_WS)}, s{S_T3} offen sc1")
e("s_waitcnt vmcnt(0)")
for m in (0, 4):
    e(f"v_add_f32 v{H_R+m}, v{H_R+m}, v{H_R+m+1}")
    e(f"v_add_f32 v{H_R+m+2}, v{H_R+m+2}, v{H_R+m+3}")
    e(f"v_add_f32 v{H_R+m}, v{H_R+m}, v{H_R+m+2}")
    bf16r(H_R + m, H_R + m, H_B)
def silu(dst, src, t):
    e(f"v_mul_f32 v{t}, 0xbfb8aa3b, v{src}")
    e(f"v_exp_f32 v{t}, v{t}")
    e("s_nop 0")
    e(f"v_add_f32 v{t}, 1.0, v{t}")
    e(f"v_rcp_f32 v{t}, v{t}")
    e("s_nop 0")
    e(f"v_mul_f32 v{dst}, v{src}, v{t}")
silu(H_R, H_R, H_B)
bf16r(H_R, H_R, H_B)
e(f"v_mul_f32 v{H_R}, v{H_R}, v{H_R+4}")
e(f"v_cvt_pk_bf16_f32 v{H_R}, v{H_R}, v{H_R}")
e(f"v_lshlrev_b32 v{H_A}, 1, v0")
e(f"ds_write_b16 v{H_A}, v{H_R} offset:{HL}")
e("s_waitcnt lgkmcnt(0)")
lab("L_h_b5")
e("s_waitcnt lgkmcnt(0)")
stamp()
def spin_tail(back, sl=1):
    e(f"s_sleep {sl}")
    e(f"s_sub_u32 s{S_SPIN}, s{S_SPIN}, 1")
    e(f"s_cmp_lg_u32 s{S_SPIN}, 0")
    e(f"s_cbranch_scc1 {back}")
    e(f"s_mov_b32 s{S_SPIN}, 1")
def mailbox(region, name, sl):
    e(f"s_lshl_b32 s{S_T2}, s{S_WG}, 12")
    e(f"s_add_u32 s{S_T2}, s{S_T2}, {region}")
    e(f"v_lshlrev_b32 v{H_A}, 4, v0")
    lab(f"L_{name}")
    for k in range(4):
        e(f"buffer_load_dwordx4 v[{H_R+4*k}:{H_R+4*k+3}], v{H_A}, {srd(SRD_WS)}, s{S_T2} offen offset:{1024*k} sc1")
    e("s_waitcnt vmcnt(0)")
    e(f"v_max3_u32 v{H_D}, v{H_R}, v{H_R+1}, v{H_R+2}")
    e(f"v_max3_u32 v{H_E}, v{H_R+3}, v{H_R+4}, v{H_R+5}")
    e(f"v_max3_u32 v{H_D}, v{H_D}, v{H_R+6}, v{H_R+7}")
    e(f"v_max3_u32 v{H_E}, v{H_E}, v{H_R+8}, v{H_R+9}")
    e(f"v_max3_u32 v{H_D}, v{H_D}, v{H_R+10}, v{H_R+11}")
    e(f"v_max3_u32 v{H_E}, v{H_E}, v{H_R+12}, v{H_R+13}")
    e(f"v_max3_u32 v{H_D}, v{H_D}, v{H_R+14}, v{H_R+15}")
    e(f"v_max_u32 v{H_D}, v{H_D}, v{H_E}")
    e(f"v_cmp_eq_u32 vcc, -1, v{H_D}")
    e(f"s_cbranch_vccz L_{name}_d")
    spin_tail(f"L_{name}", sl)
    lab(f"L_{name}_d")
    for k in range(4):
        e(f"v_add_f32 v{H_R+k}, v{H_R+k}, v{H_R+4+k}")
        e(f"v_add_f32 v{H_R+8+k}, v{H_R+8+k}, v{H_R+12+k}")
    for k in range(4):
        e(f"v_add_f32 v{H_R+k}, v{H_R+k}, v{H_R+8+k}")
    regs = [H_R + k for k in range(4)]
    for pat in ["quad_perm:[2,3,0,1]", "row_ror:4", "row_ror:8"]:
        for r in regs:
            e(f"v_add_f32_dpp v{r}, v{r}, v{r} {pat} row_mask:0xf bank_mask:0xf")
    for sw in ["v_permlane16_swap_b32", "v_permlane32_swap_b32"]:
        for k, r in enumerate(regs):
            e(f"v_mov_b32 v{H_X+k}, v{r}")
        e("s_nop 1")
        for k, r in enumerate(regs):
            e(f"{sw} v{r}, v{H_X+k}")
        for k, r in enumerate(regs):
            e(f"v_add_f32 v{r}, v{r}, v{H_X+k}")
stamp()
e("s_barrier")
stamp()
c("combine 4 waves' attention partials, publish")
e(f"v_lshrrev_b32 v{H_A}, 5, v{H_T}")
e(f"v_lshlrev_b32 v{H_B}, 5, v{H_A}")
e(f"ds_read_b128 v[{H_X}:{H_X+3}], v{H_B} offset:{AMLL}")
e(f"ds_read_b128 v[{H_X+4}:{H_X+7}], v{H_B} offset:{AMLL+16}")
e(f"v_lshlrev_b32 v{H_C}, 4, v{H_T}")
for w in range(4):
    e(f"ds_read_b128 v[{H_R+4*w}:{H_R+4*w+3}], v{H_C} offset:{AO + w*4096}")
e(f"s_mov_b32 s{S_T3}, {LOG2E:#x}")
e("s_waitcnt lgkmcnt(4)")
e(f"v_max3_f32 v{H_D}, v{H_X}, v{H_X+2}, v{H_X+4}")
e(f"v_max_f32 v{H_D}, v{H_D}, v{H_X+6}")
for w in range(4):
    e(f"v_sub_f32 v{H_X+2*w}, v{H_X+2*w}, v{H_D}")
    e(f"v_mul_f32 v{H_X+2*w}, s{S_T3}, v{H_X+2*w}")
    e(f"v_exp_f32 v{H_X+2*w}, v{H_X+2*w}")
e("s_nop 0")
e(f"v_mul_f32 v{H_E}, v{H_X}, v{H_X+1}")
for w in range(1, 4):
    e(f"v_fmac_f32 v{H_E}, v{H_X+2*w}, v{H_X+2*w+1}")
e("s_waitcnt lgkmcnt(0)")
for k in range(4):
    e(f"v_mul_f32 v{H_R+k}, v{H_X}, v{H_R+k}")
for w in range(1, 4):
    for k in range(4):
        e(f"v_fmac_f32 v{H_R+k}, v{H_X+2*w}, v{H_R+4*w+k}")
for k in range(4):
    e(f"v_min_u32 v{H_R+k}, 0xfffffffe, v{H_R+k}")
e(f"v_min_u32 v{H_D}, 0xfffffffe, v{H_D}")
e(f"v_min_u32 v{H_E}, 0xfffffffe, v{H_E}")
e(f"s_lshl_b32 s{S_T2}, s{S_WG}, 12")
e(f"s_add_u32 s{S_T2}, s{S_T2}, {APART}")
e(f"buffer_store_dwordx4 v[{H_R}:{H_R+3}], v{H_C}, {srd(SRD_WS)}, s{S_T2} offen sc1")
e(f"s_lshr_b32 s{S_T2}, s{S_WG}, 5")
e(f"s_lshl_b32 s{S_T2}, s{S_T2}, 11")
e(f"s_and_b32 s{S_T3}, s{S_WG}, 31")
e(f"s_lshl_b32 s{S_T3}, s{S_T3}, 3")
e(f"s_add_u32 s{S_T2}, s{S_T2}, s{S_T3}")
e(f"s_add_u32 s{S_T2}, s{S_T2}, {AML}")
e(f"v_lshlrev_b32 v{H_B}, 8, v{H_A}")
assert H_E == H_D + 1
e(f"v_mov_b32 v{H_X+8}, v{H_D}")
e(f"v_mov_b32 v{H_X+9}, v{H_E}")
mask(0x0000000100000001)
e(f"buffer_store_dwordx2 v[{H_X+8}:{H_X+9}], v{H_B}, {srd(SRD_WS)}, s{S_T2} offen sc1")
e("s_mov_b64 exec, -1")
stamp()
c("level-1 gather")
e(f"s_lshr_b32 s{S_T0}, s{S_HW}, 1")
e(f"s_lshl_b32 s{S_T0}, s{S_T0}, 2")
e(f"s_lshr_b32 s{S_T1}, s{S_WG}, 6")
e(f"s_add_u32 s{S_T0}, s{S_T0}, s{S_T1}")
e(f"s_lshr_b32 s{S_T1}, s{S_WG}, 3")
e(f"s_and_b32 s{S_T1}, s{S_T1}, 7")
e(f"s_lshl_b32 s{S_T2}, s{S_T0}, 17")
e(f"s_lshl_b32 s{S_T3}, s{S_T1}, 9")
e(f"s_add_u32 s{S_T2}, s{S_T2}, s{S_T3}")
e(f"s_lshr_b32 s{S_T3}, s{S_WG}, 1")
e(f"s_and_b32 s{S_T3}, s{S_T3}, 3")
e(f"s_lshl_b32 s{S_T3}, s{S_T3}, 7")
e(f"s_add_u32 s{S_T2}, s{S_T2}, s{S_T3}")
e(f"s_and_b32 s{S_T3}, s{S_HW}, 1")
e(f"s_lshl_b32 s{S_T3}, s{S_T3}, 6")
e(f"s_add_u32 s{S_T2}, s{S_T2}, s{S_T3}")
e(f"s_add_u32 s{S_T2}, s{S_T2}, {APART}")
e(f"s_lshl_b32 s{S_T3}, s{S_T0}, 11")
e(f"s_lshl_b32 s{S_T1}, s{S_T1}, 8")
e(f"s_add_u32 s{S_T3}, s{S_T3}, s{S_T1}")
e(f"s_add_u32 s{S_T3}, s{S_T3}, {AML}")
e(f"v_and_b32 v{H_A}, 31, v0")
e(f"v_lshrrev_b32 v{H_B}, 5, v0")
e(f"v_lshlrev_b32 v{H_C}, 3, v{H_A}")
e(f"v_lshlrev_b32 v{H_B}, 5, v{H_B}")
e(f"v_lshl_add_u32 v{H_B}, v{H_A}, 12, v{H_B}")
lab("L_l1f")
e(f"buffer_load_dwordx2 v[{H_R+8}:{H_R+9}], v{H_C}, {srd(SRD_WS)}, s{S_T3} offen sc1")
e("s_waitcnt vmcnt(0)")
e(f"v_max_u32 v{H_D}, v{H_R+8}, v{H_R+9}")
e(f"v_cmp_eq_u32 vcc, -1, v{H_D}")
e(f"s_bcnt1_i32_b64 s{S_T1}, vcc")
e(f"s_cmp_le_u32 s{S_T1}, {cfg.L1TH}")
e("s_cbranch_scc1 L_l1poll")
spin_tail("L_l1f", 2)
lab("L_l1poll")
e(f"buffer_load_dwordx4 v[{H_R}:{H_R+3}], v{H_B}, {srd(SRD_WS)}, s{S_T2} offen sc1")
e(f"buffer_load_dwordx4 v[{H_R+4}:{H_R+7}], v{H_B}, {srd(SRD_WS)}, s{S_T2} offen offset:16 sc1")
e(f"buffer_load_dwordx2 v[{H_R+8}:{H_R+9}], v{H_C}, {srd(SRD_WS)}, s{S_T3} offen sc1")
e("s_waitcnt vmcnt(0)")
e(f"v_max3_u32 v{H_D}, v{H_R}, v{H_R+1}, v{H_R+2}")
e(f"v_max3_u32 v{H_E}, v{H_R+3}, v{H_R+4}, v{H_R+5}")
e(f"v_max3_u32 v{H_D}, v{H_D}, v{H_R+6}, v{H_R+7}")
e(f"v_max3_u32 v{H_E}, v{H_E}, v{H_R+8}, v{H_R+9}")
e(f"v_max_u32 v{H_D}, v{H_D}, v{H_E}")
e(f"v_cmp_eq_u32 vcc, -1, v{H_D}")
e("s_cbranch_vccz L_l1poll_d")
spin_tail("L_l1poll", 1)
lab("L_l1poll_d")
stamp()
e(f"v_mov_b32 v{H_D}, v{H_R+8}")
dpp_reduce("v_max_f32", [H_D], H_X, full=False)
e(f"s_mov_b32 s{S_T1}, {LOG2E:#x}")
e(f"v_sub_f32 v{H_D}, v{H_R+8}, v{H_D}")
e(f"v_mul_f32 v{H_D}, s{S_T1}, v{H_D}")
e(f"v_exp_f32 v{H_D}, v{H_D}")
e("s_nop 0")
for k in range(8):
    e(f"v_mul_f32 v{H_R+k}, v{H_D}, v{H_R+k}")
e(f"v_mul_f32 v{H_R+8}, v{H_D}, v{H_R+9}")
dpp_reduce("v_add_f32", [H_R + k for k in range(9)], H_X, full=False)
e(f"v_rcp_f32 v{H_D}, v{H_R+8}")
e("s_nop 0")
for k in range(8):
    e(f"v_mul_f32 v{H_R+k}, v{H_D}, v{H_R+k}")
for k in range(4):
    e(f"v_cvt_pk_bf16_f32 v{H_R+k}, v{H_R+2*k}, v{H_R+2*k+1}")
e(f"s_lshl_b32 s{S_T1}, s{S_HW}, 5")
e(f"v_lshrrev_b32 v{H_A}, 5, v0")
e(f"v_lshlrev_b32 v{H_A}, 4, v{H_A}")
e(f"v_add_u32 v{H_A}, s{S_T1}, v{H_A}")
mask(0x0000000100000001)
e(f"ds_write_b128 v{H_A}, v[{H_R}:{H_R+3}] offset:{OL}")
e("s_mov_b64 exec, -1")
e("s_waitcnt lgkmcnt(0)")
stamp()
e("s_barrier")
c("f gather (helper 2)")
e(f"s_cmp_lg_u32 s{S_HW}, 2")
e("s_cbranch_scc1 L_h_nof")
mailbox(FPART, "fmb", cfg.FSL)
for k in range(4):
    bf16r(H_R + k, H_R + k, H_B)
    silu(H_R + k, H_R + k, H_B)
    bf16r(H_R + k, H_R + k, H_B)
mask(0x3)
e(f"ds_write_b128 v{H_A}, v[{H_R}:{H_R+3}] offset:{G2L}")
e("s_mov_b64 exec, -1")
e("s_waitcnt lgkmcnt(0)")
lds_flag_set(2)
e("s_branch L_h_end")
lab("L_h_nof")
c("level-2")
e(f"s_cmp_lg_u32 s{S_HW}, 0")
e("s_cbranch_scc1 L_h_end")
e(f"v_and_b32 v{H_C}, 1, v0")
mailbox(SPART, "smb", 1)
stamp()
lds_flag_wait(2, "g2f")
lab("L_g2f_d")
e(f"v_lshlrev_b32 v{H_B}, 4, v{H_C}")
e(f"ds_read_b128 v[{H_X+8}:{H_X+11}], v{H_B} offset:{G2L}")
e(f"s_mov_b32 s{S_T2}, 0xffff0000")
e(f"v_lshlrev_b32 v{H_X}, 16, v{H_XF}")
e(f"v_and_b32 v{H_X+1}, s{S_T2}, v{H_XF}")
e(f"v_lshlrev_b32 v{H_X+2}, 16, v{H_XF+1}")
e(f"v_and_b32 v{H_X+3}, s{S_T2}, v{H_XF+1}")
e("s_waitcnt lgkmcnt(0)")
for k in range(4):
    bf16r(H_R + k, H_R + k, H_B)
    e(f"v_mul_f32 v{H_R+k}, v{H_R+k}, v{H_X+8+k}")
    bf16r(H_R + k, H_R + k, H_B)
    e(f"v_add_f32 v{H_R+k}, v{H_X+k}, v{H_R+k}")
e(f"v_cvt_pk_bf16_f32 v{H_R}, v{H_R}, v{H_R+1}")
e(f"v_cvt_pk_bf16_f32 v{H_R+1}, v{H_R+2}, v{H_R+3}")
e(f"s_lshl_b32 s{S_T0}, s{S_WG}, 3")
e(f"v_lshlrev_b32 v{H_A}, 11, v{H_C}")
mask(0x3)
e(f"buffer_store_dwordx2 v[{H_R}:{H_R+1}], v{H_A}, {srd(SRD_OUT)}, s{S_T0} offen")
e("s_mov_b64 exec, -1")
stamp()
if cfg.DIAG == 2:
    stamp_flush(H_A, H_B, [(4,12,0),(9,13,0),(11,14,0),(12,15,0)])
if cfg.DIAG == 3 and cfg.PROBE >= 0:
    e(f"s_cmp_lg_u32 s{S_WG}, {cfg.PWG}")
    e("s_cbranch_scc1 L_h_end")
    e(f"s_sub_u32 s{S_T0}, s{S_STAMP0+cfg.PROBE}, s100")
    e(f"s_add_u32 s{S_T0}, s{S_T0}, s{S_STAMP0+12}")
    lab("L_probe")
    e("s_memrealtime s[30:31]")
    e("s_waitcnt lgkmcnt(0)")
    e(f"s_sub_u32 s{S_T1}, s30, s{S_T0}")
    e(f"s_cmp_lt_i32 s{S_T1}, 0")
    e("s_cbranch_scc1 L_probe")
lab("L_h_end")
if cfg.DIAG == 1:
    stamp_flush(H_A, H_B)
lab("L_end")
e("s_endpgm")

L.append('.section .rodata,"a"')
L.append(".p2align 6")
L.append(f".amdhsa_kernel {KNAME}")
L.append(f"  .amdhsa_next_free_vgpr {NV_STREAM}")
L.append("  .amdhsa_next_free_sgpr 102")
L.append(f"  .amdhsa_accum_offset {NV_STREAM}")
L.append("  .amdhsa_group_segment_fixed_size 0")
L.append("  .amdhsa_kernarg_size 96")
L.append("  .amdhsa_user_sgpr_count 2")
L.append("  .amdhsa_user_sgpr_kernarg_segment_ptr 1")
L.append("  .amdhsa_system_sgpr_workgroup_id_x 1")
L.append(".end_amdhsa_kernel")
open(sys.argv[1], "w").write("\n".join(L) + "\n")
print("wrote", sys.argv[1], len(L), "lines; LDS", LDS_BYTES)
```

```python
import sys

KNAME = "recurrent_scan__gqa_block_cached__swiglu_ffn__decode_kernel"

class Cfg:
    R = 4
    NT = False
    DIAG = False
    SPIN = 1 << 22
    D = 2
    PAT = 2
    DH = 0
    L1TH = 8
    VS = 0
    FSL = 2
    D2 = 0
    U2 = 14
    TLB = 0
    PRIO = 2
    PROBE = -1
    PWG = 0
    CPF = 0
    ROT = 1
    LATE = 0
    WB = 0
    PS = 1
    PS1 = 2
    NS = 6
    ND = 4
    NP = 4

cfg = Cfg()
for a in sys.argv[2:]:
    k, v = a.split("=")
    setattr(cfg, k, int(v))

R = cfg.R
L = []
def e(s): L.append("    " + s)
def lab(s): L.append(s + ":")
def c(s): L.append("    ; " + s)

QPART = 0x000000
GUPART = 0x040000
APART = 0x080000
AML = 0x180000
SPART = 0x200000
FPART = 0x300000
SFLAG = 0x190000
QFLAG = 0x1A0000
HFLAG = 0x1A2000
CNT = 0x1A3000
TSOFF = 0x400000
WS_BYTES = 0x500000

XN = 0
REDQ = XN + 4096
REDG = REDQ + 4096
QL = REDG + 4096
AO = QL + 2048
AMLL = AO + 16384
HL = AMLL + 256
OL = HL + 128
G2L = OL + 128
FLG = G2L + 64
RING = 32768
assert FLG + 64 <= RING
LDS_BYTES = RING + 4 * R * 8192
assert LDS_BYTES <= 163840, LDS_BYTES

S_WG = 2
S_WAVE = 3
SRD_X, SRD_K, SRD_V, SRD_WQ, SRD_WO, SRD_GU, SRD_WD, SRD_OUT, SRD_DBG, SRD_WS, SRD_FP = \
    [56 + 4 * i for i in range(11)]
def srd(b): return f"s[{b}:{b+3}]"
S_WB = 4
S_T0, S_T1, S_T2, S_T3 = 5, 6, 7, 8
S_BQ, S_BG, S_BKV, S_BD, S_BO = 9, 10, 11, 12, 13
S_SPIN = 14
S_T4 = 15
S_STAMP0 = 36
nstamp = [0]
in_stream = [True]

def stamp(kind=0):
    if not cfg.DIAG:
        return
    if in_stream[0] and cfg.VS != kind and kind != 2:
        return
    if in_stream[0] and cfg.DIAG == 3:
        return
    i = nstamp[0]
    assert i < 14
    e("s_memrealtime s[30:31]")
    e("s_waitcnt lgkmcnt(0)")
    e(f"s_mov_b32 s{S_STAMP0+i}, s30")
    nstamp[0] += 1

def stamp_flush(vtmp0, vtmp1, dbgmap=None):
    if not cfg.DIAG:
        return
    n = nstamp[0]
    if cfg.DIAG == 3:
        nstamp[0] = 0
        return
    if cfg.DIAG == 2:
        e("s_mov_b64 exec, 1")
        e(f"v_mov_b32 v{vtmp0}, 0")
        for (i, word, inv) in dbgmap:
            if inv:
                e(f"s_not_b32 s30, s{S_STAMP0+i}")
            else:
                e(f"s_mov_b32 s30, s{S_STAMP0+i}")
            e(f"v_mov_b32 v{vtmp1}, s30")
            e(f"buffer_atomic_umax v{vtmp1}, v{vtmp0}, {srd(SRD_DBG)}, 0 offen offset:{4*word} sc1")
            e("s_nop 1")
        e("s_mov_b64 exec, -1")
        nstamp[0] = 0
        return
    e(f"s_lshl_b32 s30, s{S_WG}, 3")
    e(f"s_add_u32 s30, s30, s{S_WAVE}")
    e("s_lshl_b32 s30, s30, 6")
    e(f"s_add_u32 s30, s30, {TSOFF}")
    e("s_mov_b64 exec, 1")
    e(f"v_mov_b32 v{vtmp0}, 0")
    for i in range(n):
        e(f"v_mov_b32 v{vtmp1}, s{S_STAMP0+i}")
        e(f"buffer_store_dword v{vtmp1}, v{vtmp0}, {srd(SRD_WS)}, s30 offen offset:{4*i}")
        e("s_nop 1")
    e("s_mov_b64 exec, -1")
    nstamp[0] = 0

NTF = " nt" if cfg.NT else ""

LOG2E = 0x3fb8aa3b
SCALE = 0x3db504f3

L.append(f"; @launch grid=(256,1,1) block=(512,1,1) lds={LDS_BYTES}")
L.append('.amdgcn_target "amdgcn-amd-amdhsa--gfx950"')
L.append(".text")
L.append(f".globl {KNAME}")
L.append(".p2align 8")
L.append(f".type {KNAME},@function")
lab(KNAME)
e(f"s_cmp_ge_u32 s{S_WG}, 256")
e("s_cbranch_scc1 L_end")
if cfg.DIAG == 3:
    e("s_memrealtime s[100:101]")
e("s_load_dwordx16 s[32:47], s[0:1], 0")
e("s_load_dwordx8 s[48:55], s[0:1], 64")
e("v_lshrrev_b32 v1, 6, v0")
e("v_and_b32 v0, 63, v0")
e(f"v_readfirstlane_b32 s{S_WAVE}, v1")
e(f"s_mov_b32 s{S_SPIN}, {cfg.SPIN}")
e("s_waitcnt lgkmcnt(0)")
def mk_srd(b, plo, nbytes):
    e(f"s_mov_b32 s{b}, s{plo}")
    e(f"s_mov_b32 s{b+1}, s{plo+1}")
    e(f"s_mov_b32 s{b+2}, {nbytes}")
    e(f"s_mov_b32 s{b+3}, 0x00020000")
mk_srd(SRD_X, 32, 4096)
mk_srd(SRD_K, 34, 0x4000000)
mk_srd(SRD_V, 36, 0x4000000)
mk_srd(SRD_WQ, 38, 0x800000)
mk_srd(SRD_WO, 40, 0x800000)
e(f"s_cmp_ge_u32 s{S_WG}, 112")
e(f"s_cselect_b32 s{SRD_GU}, s46, s44")
e(f"s_cselect_b32 s{SRD_GU+1}, s47, s45")
e(f"s_cmp_lt_u32 s{S_WG}, 224")
e(f"s_cselect_b32 s{SRD_GU+2}, 0x700000, 0")
e(f"s_mov_b32 s{SRD_GU+3}, 0x00020000")
mk_srd(SRD_WD, 48, 0x700000)
e(f"s_cmp_ge_u32 s{S_WG}, 32")
e(f"s_cselect_b32 s{SRD_WD+2}, 0x700000, 0")
mk_srd(SRD_OUT, 50, 4096)
mk_srd(SRD_DBG, 52, 256)
mk_srd(SRD_WS, 54, WS_BYTES)
e(f"s_add_u32 s{SRD_FP}, s54, {FPART}")
e(f"s_addc_u32 s{SRD_FP+1}, s55, 0")
e(f"s_mov_b32 s{SRD_FP+2}, {112*8192}")
e(f"s_mov_b32 s{SRD_FP+3}, 0x00020000")
e(f"s_cmp_ge_u32 s{S_WAVE}, 4")
e("s_cbranch_scc1 L_helper")

c("================ stream waves ================")
V_L = 0
V_G, V_I, V_T0, V_T1, V_T2, V_T3 = 1, 2, 3, 4, 5, 6
V_CV = 7
V_OWQ = 9
V_OGU = 11
V_OW2 = 13
V_OV = 15
V_OK = 17
V_KA = 21
V_VA = 25
V_XB = 33
V_RED = 34
V_ST = 35
V_MX = 36
V_LS = 37
V_MC = 38
V_T4 = 39
V_B = 40
V_A = 56
V_O = 88
NKU = cfg.NS
V_S = 120
V_X = V_S + 8*NKU
V_X2 = V_X + 32
V_CL = V_X2 + 32
V_AL = V_CL + 1
NV_STREAM = (V_CL + 6 + 7) // 8 * 8
assert NV_STREAM <= 256
POOL = (8 - cfg.NS) * 32
S_DYN = 18
S_GB = 24
S_CNT = 25

outstanding = []
def vm_issue(tag): outstanding.append(tag)
def vm_wait(tag):
    if tag not in outstanding:
        return
    idx = max(i for i, t in enumerate(outstanding) if t == tag)
    n = len(outstanding) - 1 - idx
    assert n <= 63
    e(f"s_waitcnt vmcnt({n})")
    del outstanding[:idx + 1]

e(f"v_lshrrev_b32 v{V_G}, 4, v{V_L}")
e(f"v_and_b32 v{V_I}, 15, v{V_L}")
e(f"s_mul_i32 s{S_WB}, s{S_WAVE}, {R*8192}")
e(f"s_add_u32 s{S_WB}, s{S_WB}, {RING}")
e(f"v_lshlrev_b32 v{V_T0}, 1, v{V_G}")
e(f"v_xor_b32 v{V_T0}, v{V_T0}, v{V_I}")
e(f"v_lshlrev_b32 v{V_CV}, 4, v{V_T0}")
e(f"v_xor_b32 v{V_CV+1}, 0x80, v{V_CV}")
def mk_off(dst, rs):
    e(f"v_mul_u32_u24 v{V_T0}, {rs}, v{V_G}")
    e(f"v_add_u32 v{dst}, v{V_T0}, v{V_CV}")
    e(f"v_add_u32 v{dst+1}, v{V_T0}, v{V_CV+1}")
mk_off(V_OWQ, 8192)
e(f"s_and_b32 s{S_T0}, s{S_WG}, 7")
e(f"s_lshl_b32 s{S_T0}, s{S_T0}, 2")
e(f"s_add_u32 s{S_T0}, s{S_T0}, s{S_WAVE}")
e(f"s_lshl_b32 s{S_BQ}, s{S_T0}, 18")
e(f"s_lshl_b32 s{S_T4}, s{S_T0}, 6")
e(f"s_lshr_b32 s{S_T1}, s{S_WG}, 3")
e(f"s_lshl_b32 s{S_T1}, s{S_T1}, 8")
e(f"s_add_u32 s{S_BQ}, s{S_BQ}, s{S_T1}")

def half_throttle():
    if cfg.DH > 0:
        keep = (cfg.DH - 1) * 4
        if len(outstanding) > keep:
            e(f"s_waitcnt vmcnt({keep})")
            del outstanding[:len(outstanding) - keep]
def dma_w(u, srd_b, sbase, extra, rs, voff):
    slot = u % R
    for jj in range(8):
        if jj % 4 == 0:
            half_throttle()
            e(f"s_add_u32 m0, s{S_WB}, {slot*8192 + (jj//4)*4096}")
        e(f"s_add_u32 s{S_T3}, s{sbase}, {extra + jj*4*rs - (jj&3)*1024}")
        e(f"buffer_load_dwordx4 v{voff + (jj&1)}, {srd(srd_b)}, s{S_T3} offen offset:{(jj&3)*1024}{NTF} lds")
        vm_issue(u)

def dma_kv(u, is_k, idx):
    slot = u % R
    for half in range(2):
        half_throttle()
        e(f"s_add_u32 m0, s{S_WB}, {slot*8192 + half*4096}")
        if idx < cfg.NS:
            e(f"s_add_u32 s{S_T3}, s{S_WIN[idx]}, {half*4096}")
        else:
            e(f"s_add_u32 s{S_T3}, s{S_DYN}, {half*4096}")
        for j4 in range(4):
            if is_k:
                e(f"buffer_load_dwordx4 v{V_OK + j4}, {srd(SRD_K)}, s{S_T3} offen offset:{j4*1024}{NTF} lds")
            else:
                e(f"buffer_load_dwordx4 v{V_OV + (j4&1)}, {srd(SRD_V)}, s{S_T3} offen offset:{j4*1024}{NTF} lds")
            vm_issue(u)

U_K0 = 3
U_V0 = U_K0 + NKU
U_VL = U_V0 + NKU - 1
NUNITS = U_VL + 1
SLOT_B = U_VL % R
SLOT_A = (SLOT_B + 1) % R
U_KD = U_VL + 1
U_WD = U_VL + 2
U_WO = U_VL + 3
U_VD = U_VL + 4
def claim():
    e(f"v_mov_b32 v{V_CL}, 1")
    e(f"v_mov_b32 v{V_CL+2}, 0")
    e("s_mov_b64 exec, 1")
    e(f"buffer_atomic_add v{V_CL}, v{V_CL+2}, {srd(SRD_WS)}, s{S_CNT} offen sc0 sc1")
    e("s_mov_b64 exec, -1")
    vm_issue("cl")
def issue_unit(u):
    if u >= NUNITS:
        return
    dd = cfg.D2 if (cfg.D2 and u >= cfg.U2) else cfg.D
    if (u - dd) in outstanding:
        vm_wait(u - dd)
    if u == 0:
        dma_w(u, SRD_WQ, S_BQ, 0, 8192, V_OWQ)
    elif u in (1, 2):
        dma_w(u, SRD_GU, S_BG, (u - 1) * 32 * 7168, 7168, V_OGU)
    elif u < U_V0:
        dma_kv(u, True, u - U_K0)
    else:
        dma_kv(u, False, u - U_V0)
        if u == U_VL:
            claim()

issue_unit(0)
mk_off(V_OGU, 7168)
e(f"s_and_b32 s{S_T0}, s{S_WG}, 3")
e(f"s_lshl_b32 s{S_T0}, s{S_T0}, 2")
e(f"s_add_u32 s{S_T0}, s{S_T0}, s{S_WAVE}")
e(f"s_mul_i32 s{S_BG}, s{S_T0}, {64*7168}")
e(f"s_lshl_b32 s{S_T2}, s{S_T0}, 7")
e(f"s_lshr_b32 s{S_T1}, s{S_WG}, 2")
e(f"s_cmp_ge_u32 s{S_T1}, 28")
e(f"s_cselect_b32 s{S_T0}, 28, 0")
e(f"s_sub_u32 s{S_T1}, s{S_T1}, s{S_T0}")
e(f"s_lshl_b32 s{S_T1}, s{S_T1}, 8")
e(f"s_add_u32 s{S_BG}, s{S_BG}, s{S_T1}")
S_XG = S_T2
S_XQ = S_T4
issue_unit(1)
if cfg.PAT == 0:
    e(f"s_lshl_b32 s{S_BKV}, s{S_WG}, 18")
    e(f"s_lshl_b32 s{S_T0}, s{S_WAVE}, 16")
    e(f"s_add_u32 s{S_BKV}, s{S_BKV}, s{S_T0}")
    KVSTRIDE = 8192
elif cfg.PAT == 1:
    e(f"s_lshl_b32 s{S_BKV}, s{S_WG}, 18")
    e(f"s_lshl_b32 s{S_T0}, s{S_WAVE}, 13")
    e(f"s_add_u32 s{S_BKV}, s{S_BKV}, s{S_T0}")
    KVSTRIDE = 32768
else:
    e(f"s_lshr_b32 s{S_BKV}, s{S_WG}, 5")
    e(f"s_lshl_b32 s{S_BKV}, s{S_BKV}, 23")
    e(f"s_and_b32 s{S_T0}, s{S_WG}, 31")
    e(f"s_lshl_b32 s{S_T0}, s{S_T0}, 2")
    e(f"s_add_u32 s{S_T0}, s{S_T0}, s{S_WAVE}")
    e(f"s_lshl_b32 s{S_T0}, s{S_T0}, 13")
    e(f"s_add_u32 s{S_BKV}, s{S_BKV}, s{S_T0}")
    KVSTRIDE = 1 << 20
S_WIN = [50, 51, 52, 53, 54, 55, 32, 33]
e(f"s_lshr_b32 s{S_T1}, s{S_WG}, 5")
e(f"s_mul_i32 s{S_T1}, s{S_T1}, {cfg.ROT}")
for idx in range(cfg.NS):
    e(f"s_add_u32 s{S_T0}, s{S_T1}, {idx}")
    e(f"s_and_b32 s{S_T0}, s{S_T0}, 7")
    e(f"s_lshl_b32 s{S_T0}, s{S_T0}, 20")
    e(f"s_add_u32 s{S_WIN[idx]}, s{S_BKV}, s{S_T0}")
e(f"s_lshr_b32 s{S_GB}, s{S_WG}, 5")
e(f"s_lshl_b32 s{S_GB}, s{S_GB}, 23")
e(f"s_lshr_b32 s{S_T0}, s{S_WG}, 3")
e(f"s_lshl_b32 s{S_CNT}, s{S_T0}, 7")
e(f"s_add_u32 s{S_CNT}, s{S_CNT}, {CNT}")
e(f"s_and_b32 s{S_T0}, s{S_T0}, 3")
e(f"s_mul_i32 s{S_T0}, s{S_T0}, {POOL}")
e(f"s_lshr_b32 s{S_T3}, s{S_T0}, 7")
e(f"s_add_u32 s{S_T1}, s{S_T1}, s{S_T3}")
e(f"s_add_u32 s{S_T1}, s{S_T1}, {cfg.NS}")
e(f"s_and_b32 s{S_T1}, s{S_T1}, 7")
e(f"s_lshl_b32 s{S_T1}, s{S_T1}, 20")
e(f"s_add_u32 s{S_GB}, s{S_GB}, s{S_T1}")
e(f"s_and_b32 s{S_T0}, s{S_T0}, 127")
e(f"s_lshl_b32 s{S_T0}, s{S_T0}, 13")
e(f"s_add_u32 s{S_GB}, s{S_GB}, s{S_T0}")
assert 128 % POOL == 0
assert cfg.PAT == 2
e(f"v_xor_b32 v{V_T0}, v{V_I}, v{V_G}")
e(f"v_lshlrev_b32 v{V_T1}, 8, v{V_G}")
for j4 in range(4):
    e(f"v_xor_b32 v{V_T2}, {4*j4}, v{V_T0}")
    e(f"v_lshl_add_u32 v{V_OK+j4}, v{V_T2}, 4, v{V_T1}")
mk_off(V_OV, 256)
mk_off(V_OW2, 2048)
e(f"s_max_u32 s{S_T0}, s{S_WG}, 32")
e(f"s_sub_u32 s{S_T0}, s{S_T0}, 32")
def mk_base2(dst, src):
    e(f"s_lshr_b32 s{S_T1}, s{src}, 1")
    e(f"s_lshl_b32 s{dst}, s{S_T1}, 16")
    e(f"s_and_b32 s{S_T1}, s{src}, 1")
    e(f"s_lshl_b32 s{S_T1}, s{S_T1}, 10")
    e(f"s_add_u32 s{dst}, s{dst}, s{S_T1}")
    e(f"s_lshl_b32 s{S_T1}, s{S_WAVE}, 8")
    e(f"s_add_u32 s{dst}, s{dst}, s{S_T1}")
mk_base2(S_BD, S_T0)
mk_base2(S_BO, S_WG)
e(f"v_xor_b32 v{V_T0}, v{V_I}, v{V_G}")
e(f"v_lshlrev_b32 v{V_T1}, 8, v{V_I}")
e(f"v_add_u32 v{V_T1}, s{S_WB}, v{V_T1}")
for ks in range(4):
    e(f"v_xor_b32 v{V_T2}, {4*ks}, v{V_T0}")
    e(f"v_lshl_add_u32 v{V_KA+ks}, v{V_T2}, 4, v{V_T1}")
e(f"v_lshrrev_b32 v{V_T0}, 2, v{V_L}")
e(f"v_lshlrev_b32 v{V_T1}, 8, v{V_T0}")
e(f"v_add_u32 v{V_T1}, s{S_WB}, v{V_T1}")
e(f"v_and_b32 v{V_T2}, 3, v{V_L}")
e(f"v_lshl_add_u32 v{V_T1}, v{V_T2}, 3, v{V_T1}")
e(f"v_and_b32 v{V_T0}, 7, v{V_T0}")
for t in range(8):
    e(f"v_xor_b32 v{V_T2}, {t}, v{V_T0}")
    e(f"v_lshl_add_u32 v{V_VA+t}, v{V_T2}, 5, v{V_T1}")
e(f"v_and_b32 v{V_T0}, 1, v{V_I}")
e(f"v_lshlrev_b32 v{V_T1}, 3, v{V_G}")
e(f"v_lshl_add_u32 v{V_XB}, v{V_T0}, 11, v{V_T1}")
e(f"v_lshlrev_b32 v{V_T1}, 4, v{V_G}")
e(f"v_lshl_add_u32 v{V_RED}, v{V_I}, 9, v{V_T1}")
e(f"v_lshlrev_b32 v{V_T1}, 4, v{V_I}")
e(f"v_lshl_add_u32 v{V_ST}, v{V_G}, 12, v{V_T1}")

def mask(m):
    e(f"s_mov_b32 exec_lo, {m & 0xffffffff:#x}")
    e(f"s_mov_b32 exec_hi, {(m >> 32) & 0xffffffff:#x}")
M_N2 = 0x0003000300030003
M_N8 = 0x00FF00FF00FF00FF

def gemv_unit(u, first, nxt=True):
    slot = u % R
    vm_wait(u)
    for t in range(8):
        e(f"ds_read_b64_tr_b16 v[{V_A+4*t}:{V_A+4*t+1}], v{V_VA+t} offset:{slot*8192}")
        e(f"ds_read_b64_tr_b16 v[{V_A+4*t+2}:{V_A+4*t+3}], v{V_VA+t} offset:{slot*8192+4096}")
        if t == 3:
            pass
    for t in range(8):
        if t % 2 == 0:
            e(f"s_waitcnt lgkmcnt({16 - 2*t - 4})")
        cc = "0" if first else f"v[{V_O+4*t}:{V_O+4*t+3}]"
        e(f"v_mfma_f32_16x16x32_bf16 v[{V_O+4*t}:{V_O+4*t+3}], v[{V_A+4*t}:{V_A+4*t+3}], v[{V_B}:{V_B+3}], {cc}")
    if nxt:
        issue_unit(u + R)

def read_b(vaddr_s, base):
    pass

for u in range(2, cfg.D):
    issue_unit(u)
nxt_issue = [max(2, cfg.D)]
def pump(upto):
    while nxt_issue[0] <= upto:
        issue_unit(nxt_issue[0]); nxt_issue[0] += 1
stamp(2)
e("s_barrier")
c("---- q-proj unit ----")
e(f"v_add_u32 v{V_T3}, s{S_XQ}, v{V_XB}")
e(f"ds_read_b64 v[{V_B}:{V_B+1}], v{V_T3} offset:{XN}")
e(f"ds_read_b64 v[{V_B+2}:{V_B+3}], v{V_T3} offset:{XN+32}")
e(f"v_add_u32 v{V_T3}, s{S_XG}, v{V_XB}")
e(f"ds_read_b64 v[{V_B+4}:{V_B+5}], v{V_T3} offset:{XN}")
e(f"ds_read_b64 v[{V_B+6}:{V_B+7}], v{V_T3} offset:{XN+32}")
e(f"ds_read_b64 v[{V_B+8}:{V_B+9}], v{V_T3} offset:{XN+64}")
e(f"ds_read_b64 v[{V_B+10}:{V_B+11}], v{V_T3} offset:{XN+96}")
e("s_waitcnt lgkmcnt(0)")
gemv_unit(0, True, nxt=False)
e(f"s_lshl_b32 s{S_T0}, s{S_WAVE}, 10")
e(f"v_add_u32 v{V_T3}, s{S_T0}, v{V_RED}")
e("s_nop 7")
mask(M_N2)
for t in range(8):
    e(f"ds_write_b128 v{V_T3}, v[{V_O+4*t}:{V_O+4*t+3}] offset:{REDQ + t*64}")
e("s_mov_b64 exec, -1")
e("s_waitcnt lgkmcnt(0)")
stamp()
e("s_barrier")
pump(cfg.D)
c("---- gate/up units ----")
for k in range(4):
    e(f"v_mov_b32 v{V_B+k}, v{V_B+4+k}")
e("s_nop 1")
gemv_unit(1, True, nxt=False)
pump(1 + cfg.D)
e("s_nop 7")
for k in range(4):
    e(f"v_mov_b32 v{V_B+k}, v{V_B+8+k}")
e("s_nop 1")
gemv_unit(2, False, nxt=False)
e("s_nop 7")
mask(M_N2)
for t in range(8):
    e(f"ds_write_b128 v{V_T3}, v[{V_O+4*t}:{V_O+4*t+3}] offset:{REDG + t*64}")
e("s_mov_b64 exec, -1")
e("s_waitcnt lgkmcnt(0)")
e("s_barrier")
pump(2 + R)
PARK = [V_O, V_X, V_X2, V_A][:cfg.NP]
def k_frags(u, base):
    slot = u % R
    vm_wait(u)
    for tile in range(2):
        for ks in range(4):
            a = base + 16*tile + 4*ks
            e(f"ds_read_b128 v[{a}:{a+3}], v{V_KA+ks} offset:{slot*8192 + tile*4096}")
for ku in range(cfg.NP):
    k_frags(3 + ku, PARK[ku])
    e("s_waitcnt lgkmcnt(0)")
    pump(3 + ku + R)
stamp()
e("s_barrier")
stamp(2)
c("---- load q fragments ----")
e(f"v_and_b32 v{V_T0}, 7, v{V_I}")
e(f"v_lshlrev_b32 v{V_T1}, 4, v{V_G}")
e(f"v_lshl_add_u32 v{V_T0}, v{V_T0}, 8, v{V_T1}")
for ks in range(4):
    e(f"ds_read_b128 v[{V_B+4*ks}:{V_B+4*ks+3}], v{V_T0} offset:{QL + ks*64}")
e(f"s_mov_b32 s{S_T0}, {SCALE:#x}")
e(f"s_mov_b32 s{S_T1}, 0xffff0000")
e(f"v_mov_b32 v{V_MX}, 0xff800000")
e("s_waitcnt lgkmcnt(0)")

def score_post(base):
    for h in range(2):
        a, b = base + 2*h, base + 2*h + 1
        e(f"v_cvt_pk_bf16_f32 v{V_T2}, v{a}, v{b}")
        e(f"v_lshlrev_b32 v{a}, 16, v{V_T2}")
        e(f"v_and_b32 v{b}, s{S_T1}, v{V_T2}")
        e(f"v_mul_f32 v{a}, s{S_T0}, v{a}")
        e(f"v_mul_f32 v{b}, s{S_T0}, v{b}")
        e(f"v_cvt_pk_bf16_f32 v{V_T2}, v{a}, v{b}")
        e(f"v_lshlrev_b32 v{a}, 16, v{V_T2}")
        e(f"v_and_b32 v{b}, s{S_T1}, v{V_T2}")
        e(f"v_max3_f32 v{V_MX}, v{a}, v{b}, v{V_MX}")

c("---- K phase ----")
def k_mfma(base, d0, wait):
    for tile in range(2):
        d = d0 + tile * 4
        if wait:
            e(f"s_waitcnt lgkmcnt({4 - 4*tile})")
        for ks in range(4):
            a = base + 16*tile + 4*ks
            cc = "0" if ks == 0 else f"v[{d}:{d+3}]"
            e(f"v_mfma_f32_16x16x32_bf16 v[{d}:{d+3}], v[{a}:{a+3}], v[{V_B+4*ks}:{V_B+4*ks+3}], {cc}")
for ku in range(NKU):
    u = 3 + ku
    parked = ku < cfg.NP
    base = PARK[ku] if parked else V_A
    if not parked:
        k_frags(u, V_A)
    k_mfma(base, V_S + 8*ku, not parked)
    if not parked:
        pump(u + R)
    e("s_nop 7")
    score_post(V_S + (2*ku) * 4)
    score_post(V_S + (2*ku + 1) * 4)
stamp(2)
c("---- softmax ----")
def xswap(op, v, tmp):
    e(f"v_mov_b32 v{tmp}, v{v}")
    e("s_nop 1")
    e(f"v_permlane16_swap_b32 v{v}, v{tmp}")
    e(f"{op} v{v}, v{v}, v{tmp}")
    e(f"v_mov_b32 v{tmp}, v{v}")
    e("s_nop 1")
    e(f"v_permlane32_swap_b32 v{v}, v{tmp}")
    e(f"{op} v{v}, v{v}, v{tmp}")
xswap("v_max_f32", V_MX, V_T2)
e(f"s_mov_b32 s{S_T2}, {LOG2E:#x}")
e(f"v_mul_f32 v{V_MC}, s{S_T2}, v{V_MX}")
e(f"v_mov_b32 v{V_LS}, 0")
e(f"v_mov_b32 v{V_T4}, 0")
def exp_block(r0, n):
    for r in range(r0, r0 + n, 2):
        a, b = V_S + r, V_S + r + 1
        e(f"v_fma_f32 v{a}, v{a}, s{S_T2}, -v{V_MC}")
        e(f"v_fma_f32 v{b}, v{b}, s{S_T2}, -v{V_MC}")
        e(f"v_exp_f32 v{a}, v{a}")
        e(f"v_exp_f32 v{b}, v{b}")
        e("s_nop 0")
        e(f"v_add_f32 v{V_LS}, v{V_LS}, v{a}")
        e(f"v_add_f32 v{V_T4}, v{V_T4}, v{b}")
        e(f"v_cvt_pk_bf16_f32 v{V_S + (r//8)*8 + (r%8)//2}, v{a}, v{b}")
exp_block(0, 8*NKU)
e(f"v_add_f32 v{V_LS}, v{V_LS}, v{V_T4}")
stamp()
c("---- V phase ----")
def v_consume(slot, preg, first):
    for t in range(8):
        e(f"ds_read_b64_tr_b16 v[{V_A+4*t}:{V_A+4*t+1}], v{V_VA+t} offset:{slot*8192}")
        e(f"ds_read_b64_tr_b16 v[{V_A+4*t+2}:{V_A+4*t+3}], v{V_VA+t} offset:{slot*8192+4096}")
    for t in range(8):
        if t % 2 == 0:
            e(f"s_waitcnt lgkmcnt({16 - 2*t - 4})")
        cc = "0" if first else f"v[{V_O+4*t}:{V_O+4*t+3}]"
        e(f"v_mfma_f32_16x16x32_bf16 v[{V_O+4*t}:{V_O+4*t+3}], v[{V_A+4*t}:{V_A+4*t+3}], v[{preg}:{preg+3}], {cc}")
for vu in range(NKU - 1):
    u = U_V0 + vu
    vm_wait(u)
    v_consume(u % R, V_S + 8*vu, vu == 0)
    pump(u + R)
    stamp(1)
assert outstanding == [U_VL]*8 + ["cl"], outstanding
PD = V_S + 8*(NKU - 1)
e("s_waitcnt vmcnt(1)")
v_consume(SLOT_B, PD, False)
lab("L_dyn")
e("s_waitcnt vmcnt(0)")
del outstanding[:]
e(f"v_readfirstlane_b32 s{S_T3}, v{V_CL}")
e(f"s_add_u32 s{S_T3}, s{S_T3}, 1")
e(f"s_cmp_ge_u32 s{S_T3}, {POOL}")
e("s_cbranch_scc1 L_dyn_exit")
e(f"s_lshl_b32 s{S_T3}, s{S_T3}, 13")
e(f"s_add_u32 s{S_DYN}, s{S_T3}, s{S_GB}")
dma_kv(U_KD, True, 99)
dma_kv(U_VD, False, 99)
e("s_waitcnt vmcnt(8)")
claim()
del outstanding[:]
for tile in range(2):
    for ks in range(4):
        a = V_A + 16*tile + 4*ks
        e(f"ds_read_b128 v[{a}:{a+3}], v{V_KA+ks} offset:{SLOT_A*8192 + tile*4096}")
k_mfma(V_A, PD, True)
e("s_nop 7")
score_post(PD)
score_post(PD + 4)
xswap("v_max_f32", V_MX, V_T2)
e(f"v_mul_f32 v{V_T4}, s{S_T2}, v{V_MX}")
e(f"v_sub_f32 v{V_AL}, v{V_MC}, v{V_T4}")
e(f"v_exp_f32 v{V_AL}, v{V_AL}")
e(f"v_mov_b32 v{V_MC}, v{V_T4}")
e(f"v_mov_b32 v{V_T4}, 0")
e(f"v_mul_f32 v{V_LS}, v{V_LS}, v{V_AL}")
for r in range(32):
    e(f"v_mul_f32 v{V_O+r}, v{V_O+r}, v{V_AL}")
exp_block(8*(NKU - 1), 8)
e(f"v_add_f32 v{V_LS}, v{V_LS}, v{V_T4}")
e("s_waitcnt vmcnt(1)")
v_consume(SLOT_B, PD, False)
e("s_branch L_dyn")
lab("L_dyn_exit")
if cfg.LATE == 0:
    dma_w(U_WD, SRD_WD, S_BD, 0, 2048, V_OW2)
    dma_w(U_WO, SRD_WO, S_BO, 0, 2048, V_OW2)
if cfg.LATE == 3:
    dma_w(U_WD, SRD_WD, S_BD, 0, 2048, V_OW2)
xswap("v_add_f32", V_LS, V_T2)
c("---- write attention partial to LDS ----")
e(f"s_lshl_b32 s{S_T0}, s{S_WAVE}, 12")
e(f"v_add_u32 v{V_T3}, s{S_T0}, v{V_RED}")
e(f"s_lshl_b32 s{S_T0}, s{S_WAVE}, 3")
e(f"v_lshlrev_b32 v{V_T2}, 5, v{V_I}")
e(f"v_add_u32 v{V_T2}, s{S_T0}, v{V_T2}")
e(f"v_mov_b32 v{V_MX+1}, v{V_LS}") if V_LS != V_MX + 1 else None
e("s_nop 7")
mask(M_N8)
for t in range(8):
    e(f"ds_write_b128 v{V_T3}, v[{V_O+4*t}:{V_O+4*t+3}] offset:{AO + t*64}")
mask(0xFF)
e(f"ds_write_b64 v{V_T2}, v[{V_MX}:{V_MX+1}] offset:{AMLL}")
e("s_mov_b64 exec, -1")
e("s_waitcnt lgkmcnt(0)")
stamp()
e("s_barrier")
if cfg.LATE == 1:
    dma_w(U_WD, SRD_WD, S_BD, 0, 2048, V_OW2)
    dma_w(U_WO, SRD_WO, S_BO, 0, 2048, V_OW2)
if cfg.LATE == 2:
    dma_w(U_WD, SRD_WD, S_BD, 0, 2048, V_OW2)
    vm_wait(U_WD)
    dma_w(U_WO, SRD_WO, S_BO, 0, 2048, V_OW2)
if cfg.LATE == 3:
    vm_wait(U_WD)
    dma_w(U_WO, SRD_WO, S_BO, 0, 2048, V_OW2)
c("---- down-proj unit ----")
e(f"v_and_b32 v{V_T0}, 1, v{V_I}")
e(f"v_lshlrev_b32 v{V_T1}, 3, v{V_G}")
e(f"v_lshl_add_u32 v{V_T3}, v{V_T0}, 6, v{V_T1}")
e(f"ds_read_b64 v[{V_B}:{V_B+1}], v{V_T3} offset:{HL}")
e(f"ds_read_b64 v[{V_B+2}:{V_B+3}], v{V_T3} offset:{HL+32}")
e("s_waitcnt lgkmcnt(0)")
gemv_unit(U_WD, True, nxt=False)
def store_part(sb, region, oob_lt32):
    e("s_nop 7")
    for r in range(32):
        e(f"v_min_u32 v{V_O+r}, 0xfffffffe, v{V_O+r}")
    e(f"s_lshr_b32 s{S_T0}, s{sb}, 16")
    e(f"s_lshl_b32 s{S_T0}, s{S_T0}, 5")
    e(f"s_and_b32 s{S_T1}, s{sb}, 0xffff")
    e(f"s_lshl_b32 s{S_T1}, s{S_T1}, 9")
    e(f"s_add_u32 s{S_T0}, s{S_T0}, s{S_T1}")
    e(f"s_add_u32 s{S_T0}, s{S_T0}, {region}")
    if oob_lt32:
        e(f"s_cmp_lt_u32 s{S_WG}, 32")
        e(f"s_cselect_b32 s{S_T0}, 0x40000000, s{S_T0}")
    mask(M_N2)
    for t in range(8):
        e(f"buffer_store_dwordx4 v[{V_O+4*t}:{V_O+4*t+3}], v{V_ST}, {srd(SRD_WS)}, s{S_T0} offen sc1")
        vm_issue("st")
        if t < 7:
            e(f"s_add_u32 s{S_T0}, s{S_T0}, 16384")
    e("s_mov_b64 exec, -1")
store_part(S_BD, FPART, True)
stamp()
e("s_barrier")
stamp()
c("---- wo unit ----")
e(f"v_and_b32 v{V_T0}, 1, v{V_I}")
e(f"v_lshlrev_b32 v{V_T1}, 3, v{V_G}")
e(f"v_lshl_add_u32 v{V_T3}, v{V_T0}, 6, v{V_T1}")
e(f"ds_read_b64 v[{V_B}:{V_B+1}], v{V_T3} offset:{OL}")
e(f"ds_read_b64 v[{V_B+2}:{V_B+3}], v{V_T3} offset:{OL+32}")
e("s_waitcnt lgkmcnt(0)")
gemv_unit(U_WO, True, nxt=False)
stamp()
store_part(S_BO, SPART, False)
stamp()
if cfg.DIAG:
    e("s_waitcnt vmcnt(0)")
stamp()
stamp_flush(V_T0, V_T1, [(0,4,1),(0,5,0),(3,6,0),(4,7,0),(6,8,1),(6,9,0),(8,10,0),(11,11,0)])
e("s_endpgm")

in_stream[0] = False
lab("L_helper")
if cfg.PRIO:
    e(f"s_setprio {cfg.PRIO}")
c("================ helper waves ================")
S_HW = 4
H_T = 1
H_A, H_B, H_C, H_D, H_E = 2, 3, 4, 5, 6
H_XF = 8
H_NEG = 12
H_X = 16
H_R = 32
e(f"s_sub_u32 s{S_HW}, s{S_WAVE}, 4")
e(f"s_and_b32 s{S_T0}, s{S_HW}, 1")
e(f"s_lshl_b32 s{S_T1}, s{S_T0}, 11")
e(f"v_lshlrev_b32 v{H_A}, 5, v0")
e(f"buffer_load_dwordx4 v[{H_R}:{H_R+3}], v{H_A}, {srd(SRD_X)}, s{S_T1} offen")
e(f"buffer_load_dwordx4 v[{H_R+4}:{H_R+7}], v{H_A}, {srd(SRD_X)}, s{S_T1} offen offset:16")
e(f"s_lshl_b32 s{S_T2}, s{S_WG}, 3")
e(f"v_and_b32 v{H_B}, 1, v0")
e(f"v_lshlrev_b32 v{H_B}, 11, v{H_B}")
e(f"buffer_load_dwordx2 v[{H_XF}:{H_XF+1}], v{H_B}, {srd(SRD_X)}, s{S_T2} offen")
e(f"s_lshl_b32 s{S_T2}, s{S_HW}, 6")
e(f"v_add_u32 v{H_T}, s{S_T2}, v0")
for k in range(4):
    e(f"v_mov_b32 v{H_NEG+k}, -1")
e(f"v_mov_b32 v{H_C}, 0")
e(f"v_lshlrev_b32 v{H_D}, 2, v0")
e(f"v_and_b32 v{H_D}, 63, v{H_D}")
e(f"ds_write_b32 v{H_D}, v{H_C} offset:{FLG}")
if cfg.TLB:
    c("page pre-touch (helper 3)")
    e(f"s_cmp_lg_u32 s{S_HW}, 3")
    e("s_cbranch_scc1 L_h_notlb")
    e(f"v_lshlrev_b32 v{H_C}, {cfg.TLB}, v0")
    per = 64 << cfg.TLB
    k = 0
    for sr, nb in ((SRD_WQ, 8<<20), (SRD_GU, 7<<20), (SRD_K, 64<<20), (SRD_V, 64<<20), (SRD_WD, 7<<20), (SRD_WO, 8<<20), (SRD_WS, WS_BYTES)):
        for off in range(0, nb, per):
            e(f"s_mov_b32 s{S_T2}, {off}")
            e(f"buffer_load_dword v{H_R+16+(k%16)}, v{H_C}, {srd(sr)}, s{S_T2} offen")
            k += 1
    lab("L_h_notlb")
if cfg.CPF:
    c("code prefetch into L2 (helper 3)")
    e(f"s_cmp_lg_u32 s{S_HW}, 3")
    e("s_cbranch_scc1 L_h_nocpf")
    e("s_getpc_b64 s[30:31]")
    lab("L_pcref")
    e(f"s_sub_u32 s30, s30, L_pcref-{KNAME}")
    e("s_subb_u32 s31, s31, 0")
    e(f"v_lshlrev_b32 v{H_C}, 6, v0")
    for k in range(cfg.CPF):
        e(f"v_min_u32 v{H_D}, L_end-{KNAME}, v{H_C}")
        e(f"global_load_dword v{H_R+16+(k%16)}, v{H_D}, s[30:31]")
        e(f"v_add_u32 v{H_C}, 4096, v{H_C}")
    lab("L_h_nocpf")
c("bootstrap: WG 0 clears the flag area, then raises d_debug[0]")
e(f"v_lshlrev_b32 v{H_B}, 4, v{H_T}")
e(f"s_cmp_lg_u32 s{S_WG}, 0")
e("s_cbranch_scc1 L_h_noboot")
for k in range(4):
    e(f"s_mov_b32 s{S_T2}, {QFLAG + k*4096}")
    e(f"buffer_store_dwordx4 v[{H_NEG}:{H_NEG+3}], v{H_B}, {srd(SRD_WS)}, s{S_T2} offen sc1")
e("s_waitcnt vmcnt(0)")
e(f"s_lshl_b32 s{S_T2}, s{S_HW}, 2")
e(f"v_mov_b32 v{H_C}, 1")
e(f"v_mov_b32 v{H_D}, 0")
e("s_mov_b64 exec, 1")
e(f"buffer_store_dword v{H_C}, v{H_D}, {srd(SRD_DBG)}, s{S_T2} offen sc1")
e("s_mov_b64 exec, -1")
lab("L_h_noboot")
c("clear sentinels")
e(f"v_lshlrev_b32 v{H_B}, 4, v{H_T}")
e(f"s_lshl_b32 s{S_T2}, s{S_WG}, 12")
e(f"s_add_u32 s{S_T2}, s{S_T2}, {APART}")
e(f"buffer_store_dwordx4 v[{H_NEG}:{H_NEG+3}], v{H_B}, {srd(SRD_WS)}, s{S_T2} offen sc1")
e(f"s_lshl_b32 s{S_T2}, s{S_WG}, 12")
e(f"s_add_u32 s{S_T3}, s{S_T2}, {SPART}")
e(f"buffer_store_dwordx4 v[{H_NEG}:{H_NEG+3}], v{H_B}, {srd(SRD_WS)}, s{S_T3} offen sc1")
e(f"v_cmp_gt_u32 vcc, 224, v{H_T}")
e("s_nop 1")
for k in range(4):
    e(f"v_cndmask_b32 v{H_X+k}, 0, v{H_NEG}, vcc")
e(f"s_add_u32 s{S_T3}, s{S_T2}, {FPART}")
e(f"buffer_store_dwordx4 v[{H_X}:{H_X+3}], v{H_B}, {srd(SRD_WS)}, s{S_T3} offen sc1")
e(f"s_cmp_lg_u32 s{S_HW}, 0")
e("s_cbranch_scc1 L_h_skipml")
e(f"s_lshr_b32 s{S_T2}, s{S_WG}, 5")
e(f"s_lshl_b32 s{S_T2}, s{S_T2}, 11")
e(f"s_and_b32 s{S_T3}, s{S_WG}, 31")
e(f"s_lshl_b32 s{S_T3}, s{S_T3}, 3")
e(f"s_add_u32 s{S_T2}, s{S_T2}, s{S_T3}")
e(f"s_add_u32 s{S_T2}, s{S_T2}, {AML}")
e(f"v_lshlrev_b32 v{H_C}, 8, v0")
mask(0xFF)
e(f"buffer_store_dwordx2 v[{H_NEG}:{H_NEG+1}], v{H_C}, {srd(SRD_WS)}, s{S_T2} offen sc1")
e("s_mov_b64 exec, -1")
lab("L_h_skipml")

def dpp_reduce(op, regs, tmpbase, full=True):
    for pat in ["quad_perm:[1,0,3,2]", "quad_perm:[2,3,0,1]", "row_half_mirror", "row_mirror"]:
        if len(regs) < 3:
            e("s_nop 1")
        for r in regs:
            e(f"{op}_dpp v{r}, v{r}, v{r} {pat} row_mask:0xf bank_mask:0xf")
    swaps = ["v_permlane16_swap_b32"] + (["v_permlane32_swap_b32"] if full else [])
    for sw in swaps:
        for k, r in enumerate(regs):
            e(f"v_mov_b32 v{tmpbase+k}, v{r}")
        e("s_nop 1")
        for k, r in enumerate(regs):
            e(f"{sw} v{r}, v{tmpbase+k}")
        for k, r in enumerate(regs):
            e(f"{op} v{r}, v{r}, v{tmpbase+k}")

def bf16r(dst, src, tmp):
    e(f"v_cvt_pk_bf16_f32 v{tmp}, v{src}, v{src}")
    e(f"v_lshlrev_b32 v{dst}, 16, v{tmp}")

c("layernorm")
e("s_waitcnt vmcnt(3)")
e(f"s_mov_b32 s{S_T2}, 0xffff0000")
for k in range(8):
    e(f"v_lshlrev_b32 v{H_X+2*k}, 16, v{H_R+k}")
    e(f"v_and_b32 v{H_X+2*k+1}, s{S_T2}, v{H_R+k}")
e(f"v_add_f32 v{H_A}, v{H_X}, v{H_X+1}")
for k in range(2, 16):
    e(f"v_add_f32 v{H_A}, v{H_A}, v{H_X+k}")
dpp_reduce("v_add_f32", [H_A], H_B)
e(f"v_mul_f32 v{H_A}, 0x3a800000, v{H_A}")
e(f"v_mov_b32 v{H_C}, 0")
for k in range(16):
    e(f"v_sub_f32 v{H_D}, v{H_X+k}, v{H_A}")
    e(f"v_fmac_f32 v{H_C}, v{H_D}, v{H_D}")
dpp_reduce("v_add_f32", [H_C], H_B)
e(f"v_mul_f32 v{H_C}, 0x3a800000, v{H_C}")
bf16r(H_A, H_A, H_B)
bf16r(H_C, H_C, H_B)
e(f"v_add_f32 v{H_C}, 0x3727c5ac, v{H_C}")
bf16r(H_C, H_C, H_B)
e(f"v_sqrt_f32 v{H_C}, v{H_C}")
e("s_nop 0")
bf16r(H_C, H_C, H_B)
e(f"v_rcp_f32 v{H_D}, v{H_C}")
e("s_nop 0")
for k in range(0, 16, 2):
    a, b = H_X + k, H_X + k + 1
    e(f"v_sub_f32 v{a}, v{a}, v{H_A}")
    e(f"v_sub_f32 v{b}, v{b}, v{H_A}")
    e(f"v_cvt_pk_bf16_f32 v{H_B}, v{a}, v{b}")
    e(f"v_lshlrev_b32 v{a}, 16, v{H_B}")
    e(f"v_and_b32 v{b}, s{S_T2}, v{H_B}")
    for x in (a, b):
        e(f"v_mul_f32 v{H_E}, v{x}, v{H_D}")
        e(f"v_fma_f32 v{x}, -v{H_E}, v{H_C}, v{x}")
        e(f"v_fma_f32 v{x}, v{x}, v{H_D}, v{H_E}")
    e(f"v_cvt_pk_bf16_f32 v{H_R+k//2}, v{a}, v{b}")
e(f"v_lshlrev_b32 v{H_A}, 5, v0")
e(f"v_add_u32 v{H_A}, s{S_T1}, v{H_A}")
e(f"ds_write_b128 v{H_A}, v[{H_R}:{H_R+3}] offset:{XN}")
e(f"ds_write_b128 v{H_A}, v[{H_R+4}:{H_R+7}] offset:{XN+16}")
e("s_waitcnt lgkmcnt(0)")
stamp()
e("s_barrier")
e("s_barrier")
stamp()

def red_publish(red_off, soff_emit, cnt_off_emit, skip_store_if=None, tag=""):
    e(f"v_lshlrev_b32 v{H_A}, 4, v0")
    for w in range(4):
        e(f"ds_read_b128 v[{H_R+4*w}:{H_R+4*w+3}], v{H_A} offset:{red_off + w*1024}")
    e("s_waitcnt lgkmcnt(0)")
    for k in range(4):
        e(f"v_add_f32 v{H_R+k}, v{H_R+k}, v{H_R+4+k}")
        e(f"v_add_f32 v{H_R+8+k}, v{H_R+8+k}, v{H_R+12+k}")
    for k in range(4):
        e(f"v_add_f32 v{H_R+k}, v{H_R+k}, v{H_R+8+k}")
    soff_emit()
    if skip_store_if:
        skip_store_if("L_skipst" + tag)
    e(f"buffer_store_dwordx4 v[{H_R}:{H_R+3}], v{H_B}, {srd(SRD_WS)}, s{S_T2} offen sc1")
    if skip_store_if:
        lab("L_skipst" + tag)
    e(f"v_mov_b32 v{H_A}, 0")
    lab("L_boot" + tag)
    e(f"buffer_load_dwordx4 v[{H_R+4}:{H_R+7}], v{H_A}, {srd(SRD_DBG)}, 0 offen sc1")
    e("s_waitcnt vmcnt(0)")
    e(f"v_and_b32 v{H_R+4}, v{H_R+4}, v{H_R+5}")
    e(f"v_and_b32 v{H_R+6}, v{H_R+6}, v{H_R+7}")
    e(f"v_and_b32 v{H_R+4}, v{H_R+4}, v{H_R+6}")
    e(f"v_cmp_eq_u32 vcc, 0, v{H_R+4}")
    e(f"s_cbranch_vccz L_bootd{tag}")
    e("s_sleep 8")
    e(f"s_sub_u32 s{S_SPIN}, s{S_SPIN}, 1")
    e(f"s_cmp_lg_u32 s{S_SPIN}, 0")
    e(f"s_cbranch_scc1 L_boot{tag}")
    e(f"s_mov_b32 s{S_SPIN}, 1")
    lab("L_bootd" + tag)
    cnt_off_emit()
    e(f"v_mov_b32 v{H_A}, 0")
    e(f"buffer_store_dword v{H_A}, v{H_B}, {srd(SRD_WS)}, s{S_T2} offen sc1")
    e("s_mov_b64 exec, -1")

c("publish q partial (helper 0)")
e(f"s_cmp_lg_u32 s{S_HW}, 0")
e("s_cbranch_scc1 L_h_noq")
def q_soff():
    e(f"v_and_b32 v{H_B}, 31, v0")
    e(f"v_lshlrev_b32 v{H_B}, 4, v{H_B}")
    e(f"v_lshrrev_b32 v{H_C}, 5, v0")
    e(f"v_lshl_add_u32 v{H_B}, v{H_C}, 14, v{H_B}")
    e(f"s_and_b32 s{S_T2}, s{S_WG}, 7")
    e(f"s_lshl_b32 s{S_T2}, s{S_T2}, 15")
    e(f"s_lshr_b32 s{S_T3}, s{S_WG}, 3")
    e(f"s_lshl_b32 s{S_T3}, s{S_T3}, 9")
    e(f"s_add_u32 s{S_T2}, s{S_T2}, s{S_T3}")
    if QPART:
        e(f"s_add_u32 s{S_T2}, s{S_T2}, {QPART}")
def q_cnt():
    e(f"s_lshl_b32 s{S_T2}, s{S_WG}, 2")
    e(f"s_add_u32 s{S_T2}, s{S_T2}, {QFLAG}")
    e(f"v_lshlrev_b32 v{H_B}, 10, v0")
    mask(0xFF)
red_publish(REDQ, q_soff, q_cnt, None, "q")
e("s_branch L_h_q2")
lab("L_h_noq")
e("s_waitcnt vmcnt(0)")
lab("L_h_q2")
if cfg.WB:
    e(f"s_cmp_lg_u32 s{S_HW}, 3")
    e("s_cbranch_scc1 L_h_nowb")
    e(f"s_cmp_ge_u32 s{S_WG}, {cfg.WB}")
    e("s_cbranch_scc1 L_h_nowb")
    e("buffer_wbl2 sc1")
    lab("L_h_nowb")
stamp()
e("s_barrier")
c("publish gate/up partial (helper 1)")
e(f"s_cmp_lg_u32 s{S_HW}, 1")
e("s_cbranch_scc1 L_h_nog")
def g_soff():
    e(f"v_and_b32 v{H_B}, 31, v0")
    e(f"v_lshlrev_b32 v{H_B}, 4, v{H_B}")
    e(f"v_lshrrev_b32 v{H_C}, 5, v0")
    e(f"v_mul_u32_u24 v{H_C}, 14336, v{H_C}")
    e(f"v_add_u32 v{H_B}, v{H_C}, v{H_B}")
    e(f"s_lshr_b32 s{S_T3}, s{S_WG}, 2")
    e(f"s_cmp_ge_u32 s{S_T3}, 28")
    e(f"s_cselect_b32 s{S_T2}, 28, 0")
    e(f"s_sub_u32 s{S_T3}, s{S_T3}, s{S_T2}")
    e(f"s_lshr_b32 s{S_T2}, s{S_WG}, 2")
    e(f"s_cmp_ge_u32 s{S_T2}, 28")
    e(f"s_cselect_b32 s{S_T2}, 4, 0")
    e(f"s_and_b32 s{S_T4}, s{S_WG}, 3")
    e(f"s_add_u32 s{S_T2}, s{S_T2}, s{S_T4}")
    e(f"s_mul_i32 s{S_T2}, s{S_T2}, {2*14336}")
    e(f"s_lshl_b32 s{S_T3}, s{S_T3}, 9")
    e(f"s_add_u32 s{S_T2}, s{S_T2}, s{S_T3}")
    e(f"s_add_u32 s{S_T2}, s{S_T2}, {GUPART}")
def g_skip(l):
    e(f"s_cmp_ge_u32 s{S_WG}, 224")
    e(f"s_cbranch_scc1 {l}")
def g_cnt():
    e(f"s_lshl_b32 s{S_T2}, s{S_WG}, 2")
    e(f"s_add_u32 s{S_T2}, s{S_T2}, {HFLAG}")
    e(f"v_lshlrev_b32 v{H_B}, 10, v0")
    mask(0xF)
red_publish(REDG, g_soff, g_cnt, g_skip, "g")
lab("L_h_nog")

def lds_flag_wait(idx, name):
    lab(f"L_{name}_w")
    e(f"v_mov_b32 v{H_A}, 0")
    e(f"ds_read_b32 v{H_B}, v{H_A} offset:{FLG + 4*idx}")
    e("s_waitcnt lgkmcnt(0)")
    e(f"v_readfirstlane_b32 s{S_T2}, v{H_B}")
    e(f"s_cmp_lg_u32 s{S_T2}, 0")
    e(f"s_cbranch_scc1 L_{name}_d")
    e("s_sleep 1")
    e(f"s_sub_u32 s{S_SPIN}, s{S_SPIN}, 1")
    e(f"s_cmp_lg_u32 s{S_SPIN}, 0")
    e(f"s_cbranch_scc1 L_{name}_w")
    e(f"s_mov_b32 s{S_SPIN}, 1")
    e(f"s_branch L_{name}_d")

def lds_flag_set(idx):
    e(f"v_mov_b32 v{H_A}, 0")
    e(f"v_mov_b32 v{H_B}, 1")
    e(f"ds_write_b32 v{H_A}, v{H_B} offset:{FLG + 4*idx}")

c("wait for q counter")
e(f"s_cmp_lg_u32 s{S_HW}, 0")
e("s_cbranch_scc1 L_qf_w")
e(f"s_lshr_b32 s{S_T3}, s{S_WG}, 5")
e(f"s_and_b32 s{S_T3}, s{S_T3}, 3")
e(f"s_lshl_b32 s{S_T3}, s{S_T3}, 8")
e(f"s_and_b32 s{S_T2}, s{S_WG}, 7")
e(f"s_lshl_b32 s{S_T2}, s{S_T2}, 10")
e(f"s_add_u32 s{S_T3}, s{S_T3}, s{S_T2}")
e(f"s_add_u32 s{S_T3}, s{S_T3}, {QFLAG}")
e(f"v_lshlrev_b32 v{H_A}, 2, v0")
lab("L_qpoll")
e(f"buffer_load_dword v{H_B}, v{H_A}, {srd(SRD_WS)}, s{S_T3} offen sc1")
e("s_waitcnt vmcnt(0)")
e(f"v_cmp_eq_u32 vcc, -1, v{H_B}")
e("s_cbranch_vccz L_qpoll_d")
e("s_sleep 4")
e(f"s_sub_u32 s{S_SPIN}, s{S_SPIN}, 1")
e(f"s_cmp_lg_u32 s{S_SPIN}, 0")
e("s_cbranch_scc1 L_qpoll")
e(f"s_mov_b32 s{S_SPIN}, 1")
lab("L_qpoll_d")
lds_flag_set(0)
e("s_branch L_qf_d")
lds_flag_wait(0, "qf")
lab("L_qf_d")
stamp()
c("gather q")
e(f"s_lshr_b32 s{S_T2}, s{S_WG}, 5")
e(f"s_lshl_b32 s{S_T2}, s{S_T2}, 12")
e(f"v_lshlrev_b32 v{H_A}, 4, v{H_T}")
for ks in range(8):
    e(f"s_add_u32 s{S_T3}, s{S_T2}, {QPART + ks*32768}")
    e(f"buffer_load_dwordx4 v[{H_R+4*ks}:{H_R+4*ks+3}], v{H_A}, {srd(SRD_WS)}, s{S_T3} offen sc1")
e("s_waitcnt vmcnt(0)")
for ks in range(1, 8):
    for k in range(4):
        e(f"v_add_f32 v{H_R+k}, v{H_R+k}, v{H_R+4*ks+k}")
e(f"v_cvt_pk_bf16_f32 v{H_R}, v{H_R}, v{H_R+1}")
e(f"v_cvt_pk_bf16_f32 v{H_R+1}, v{H_R+2}, v{H_R+3}")
e(f"v_lshlrev_b32 v{H_A}, 3, v{H_T}")
e(f"ds_write_b64 v{H_A}, v[{H_R}:{H_R+1}] offset:{QL}")
e("s_waitcnt lgkmcnt(0)")
stamp()
e("s_barrier")
c("wait for h counter (helper 0), h gather (helper 1)")
e(f"s_cmp_eq_u32 s{S_HW}, 1")
e("s_cbranch_scc1 L_hf_w")
e(f"s_cmp_lg_u32 s{S_HW}, 0")
e("s_cbranch_scc1 L_h_b5")
e(f"v_lshlrev_b32 v{H_A}, 4, v0")
e(f"s_and_b32 s{S_T2}, s{S_WG}, 3")
e(f"s_lshl_b32 s{S_T2}, s{S_T2}, 10")
e(f"s_add_u32 s{S_T2}, s{S_T2}, {HFLAG}")
lab("L_hpoll")
e(f"buffer_load_dwordx4 v[{H_R}:{H_R+3}], v{H_A}, {srd(SRD_WS)}, s{S_T2} offen sc1")
e("s_waitcnt vmcnt(0)")
e(f"v_max3_u32 v{H_B}, v{H_R}, v{H_R+1}, v{H_R+2}")
e(f"v_max_u32 v{H_B}, v{H_B}, v{H_R+3}")
e(f"v_cmp_eq_u32 vcc, -1, v{H_B}")
e("s_cbranch_vccz L_hpoll_d")
e("s_sleep 16")
e(f"s_sub_u32 s{S_SPIN}, s{S_SPIN}, 1")
e(f"s_cmp_lg_u32 s{S_SPIN}, 0")
e("s_cbranch_scc1 L_hpoll")
e(f"s_mov_b32 s{S_SPIN}, 1")
lab("L_hpoll_d")
lds_flag_set(1)
e("s_branch L_h_b5")
lds_flag_wait(1, "hf")
lab("L_hf_d")
e(f"s_max_u32 s{S_T2}, s{S_WG}, 32")
e(f"s_sub_u32 s{S_T2}, s{S_T2}, 32")
e(f"s_lshr_b32 s{S_T2}, s{S_T2}, 1")
e(f"s_lshl_b32 s{S_T2}, s{S_T2}, 7")
e(f"v_and_b32 v{H_A}, 31, v0")
e(f"v_lshlrev_b32 v{H_A}, 2, v{H_A}")
e(f"v_lshrrev_b32 v{H_B}, 5, v0")
e(f"v_mul_u32_u24 v{H_B}, 14336, v{H_B}")
e(f"v_add_u32 v{H_A}, v{H_A}, v{H_B}")
for m in range(8):
    e(f"s_add_u32 s{S_T3}, s{S_T2}, {GUPART + m*2*14336}")
    e(f"buffer_load_dword v{H_R+m}, v{H_A}, {srd(SRD_WS)}, s{S_T3} offen sc1")
e("s_waitcnt vmcnt(0)")
for m in (0, 4):
    e(f"v_add_f32 v{H_R+m}, v{H_R+m}, v{H_R+m+1}")
    e(f"v_add_f32 v{H_R+m+2}, v{H_R+m+2}, v{H_R+m+3}")
    e(f"v_add_f32 v{H_R+m}, v{H_R+m}, v{H_R+m+2}")
    bf16r(H_R + m, H_R + m, H_B)
def silu(dst, src, t):
    e(f"v_mul_f32 v{t}, 0xbfb8aa3b, v{src}")
    e(f"v_exp_f32 v{t}, v{t}")
    e("s_nop 0")
    e(f"v_add_f32 v{t}, 1.0, v{t}")
    e(f"v_rcp_f32 v{t}, v{t}")
    e("s_nop 0")
    e(f"v_mul_f32 v{dst}, v{src}, v{t}")
silu(H_R, H_R, H_B)
bf16r(H_R, H_R, H_B)
e(f"v_mul_f32 v{H_R}, v{H_R}, v{H_R+4}")
e(f"v_cvt_pk_bf16_f32 v{H_R}, v{H_R}, v{H_R}")
e(f"v_lshlrev_b32 v{H_A}, 1, v0")
e(f"ds_write_b16 v{H_A}, v{H_R} offset:{HL}")
e("s_waitcnt lgkmcnt(0)")
lab("L_h_b5")
e("s_waitcnt lgkmcnt(0)")
stamp()
def spin_tail(back, sl=1):
    if sl:
        e(f"s_sleep {sl}")
    e(f"s_sub_u32 s{S_SPIN}, s{S_SPIN}, 1")
    e(f"s_cmp_lg_u32 s{S_SPIN}, 0")
    e(f"s_cbranch_scc1 {back}")
    e(f"s_mov_b32 s{S_SPIN}, 1")
def mailbox(region, name, sl):
    e(f"s_lshl_b32 s{S_T2}, s{S_WG}, 12")
    e(f"s_add_u32 s{S_T2}, s{S_T2}, {region}")
    e(f"v_lshlrev_b32 v{H_A}, 4, v0")
    lab(f"L_{name}")
    for k in range(4):
        e(f"buffer_load_dwordx4 v[{H_R+4*k}:{H_R+4*k+3}], v{H_A}, {srd(SRD_WS)}, s{S_T2} offen offset:{1024*k} sc1")
    e("s_waitcnt vmcnt(0)")
    e(f"v_max3_u32 v{H_D}, v{H_R}, v{H_R+1}, v{H_R+2}")
    e(f"v_max3_u32 v{H_E}, v{H_R+3}, v{H_R+4}, v{H_R+5}")
    e(f"v_max3_u32 v{H_D}, v{H_D}, v{H_R+6}, v{H_R+7}")
    e(f"v_max3_u32 v{H_E}, v{H_E}, v{H_R+8}, v{H_R+9}")
    e(f"v_max3_u32 v{H_D}, v{H_D}, v{H_R+10}, v{H_R+11}")
    e(f"v_max3_u32 v{H_E}, v{H_E}, v{H_R+12}, v{H_R+13}")
    e(f"v_max3_u32 v{H_D}, v{H_D}, v{H_R+14}, v{H_R+15}")
    e(f"v_max_u32 v{H_D}, v{H_D}, v{H_E}")
    e(f"v_cmp_eq_u32 vcc, -1, v{H_D}")
    e(f"s_cbranch_vccz L_{name}_d")
    spin_tail(f"L_{name}", sl)
    lab(f"L_{name}_d")
    for k in range(4):
        e(f"v_add_f32 v{H_R+k}, v{H_R+k}, v{H_R+4+k}")
        e(f"v_add_f32 v{H_R+8+k}, v{H_R+8+k}, v{H_R+12+k}")
    for k in range(4):
        e(f"v_add_f32 v{H_R+k}, v{H_R+k}, v{H_R+8+k}")
    regs = [H_R + k for k in range(4)]
    for pat in ["quad_perm:[2,3,0,1]", "row_ror:4", "row_ror:8"]:
        for r in regs:
            e(f"v_add_f32_dpp v{r}, v{r}, v{r} {pat} row_mask:0xf bank_mask:0xf")
    for sw in ["v_permlane16_swap_b32", "v_permlane32_swap_b32"]:
        for k, r in enumerate(regs):
            e(f"v_mov_b32 v{H_X+k}, v{r}")
        e("s_nop 1")
        for k, r in enumerate(regs):
            e(f"{sw} v{r}, v{H_X+k}")
        for k, r in enumerate(regs):
            e(f"v_add_f32 v{r}, v{r}, v{H_X+k}")
stamp()
e("s_barrier")
stamp()
c("combine 4 waves' attention partials, publish")
e(f"v_lshrrev_b32 v{H_A}, 5, v{H_T}")
e(f"v_lshlrev_b32 v{H_B}, 5, v{H_A}")
e(f"ds_read_b128 v[{H_X}:{H_X+3}], v{H_B} offset:{AMLL}")
e(f"ds_read_b128 v[{H_X+4}:{H_X+7}], v{H_B} offset:{AMLL+16}")
e(f"v_lshlrev_b32 v{H_C}, 4, v{H_T}")
for w in range(4):
    e(f"ds_read_b128 v[{H_R+4*w}:{H_R+4*w+3}], v{H_C} offset:{AO + w*4096}")
e(f"s_mov_b32 s{S_T3}, {LOG2E:#x}")
e("s_waitcnt lgkmcnt(4)")
e(f"v_max3_f32 v{H_D}, v{H_X}, v{H_X+2}, v{H_X+4}")
e(f"v_max_f32 v{H_D}, v{H_D}, v{H_X+6}")
for w in range(4):
    e(f"v_sub_f32 v{H_X+2*w}, v{H_X+2*w}, v{H_D}")
    e(f"v_mul_f32 v{H_X+2*w}, s{S_T3}, v{H_X+2*w}")
    e(f"v_exp_f32 v{H_X+2*w}, v{H_X+2*w}")
e("s_nop 0")
e(f"v_mul_f32 v{H_E}, v{H_X}, v{H_X+1}")
for w in range(1, 4):
    e(f"v_fmac_f32 v{H_E}, v{H_X+2*w}, v{H_X+2*w+1}")
e("s_waitcnt lgkmcnt(0)")
for k in range(4):
    e(f"v_mul_f32 v{H_R+k}, v{H_X}, v{H_R+k}")
for w in range(1, 4):
    for k in range(4):
        e(f"v_fmac_f32 v{H_R+k}, v{H_X+2*w}, v{H_R+4*w+k}")
for k in range(4):
    e(f"v_min_u32 v{H_R+k}, 0xfffffffe, v{H_R+k}")
e(f"v_min_u32 v{H_D}, 0xfffffffe, v{H_D}")
e(f"v_min_u32 v{H_E}, 0xfffffffe, v{H_E}")
e(f"s_lshl_b32 s{S_T2}, s{S_WG}, 12")
e(f"s_add_u32 s{S_T2}, s{S_T2}, {APART}")
e(f"buffer_store_dwordx4 v[{H_R}:{H_R+3}], v{H_C}, {srd(SRD_WS)}, s{S_T2} offen sc1")
e(f"s_lshr_b32 s{S_T2}, s{S_WG}, 5")
e(f"s_lshl_b32 s{S_T2}, s{S_T2}, 11")
e(f"s_and_b32 s{S_T3}, s{S_WG}, 31")
e(f"s_lshl_b32 s{S_T3}, s{S_T3}, 3")
e(f"s_add_u32 s{S_T2}, s{S_T2}, s{S_T3}")
e(f"s_add_u32 s{S_T2}, s{S_T2}, {AML}")
e(f"v_lshlrev_b32 v{H_B}, 8, v{H_A}")
assert H_E == H_D + 1
e(f"v_mov_b32 v{H_X+8}, v{H_D}")
e(f"v_mov_b32 v{H_X+9}, v{H_E}")
mask(0x0000000100000001)
e(f"buffer_store_dwordx2 v[{H_X+8}:{H_X+9}], v{H_B}, {srd(SRD_WS)}, s{S_T2} offen sc1")
e("s_mov_b64 exec, -1")
stamp()
c("level-1 gather")
e(f"s_lshr_b32 s{S_T0}, s{S_HW}, 1")
e(f"s_lshl_b32 s{S_T0}, s{S_T0}, 2")
e(f"s_lshr_b32 s{S_T1}, s{S_WG}, 6")
e(f"s_add_u32 s{S_T0}, s{S_T0}, s{S_T1}")
e(f"s_lshr_b32 s{S_T1}, s{S_WG}, 3")
e(f"s_and_b32 s{S_T1}, s{S_T1}, 7")
e(f"s_lshl_b32 s{S_T2}, s{S_T0}, 17")
e(f"s_lshl_b32 s{S_T3}, s{S_T1}, 9")
e(f"s_add_u32 s{S_T2}, s{S_T2}, s{S_T3}")
e(f"s_lshr_b32 s{S_T3}, s{S_WG}, 1")
e(f"s_and_b32 s{S_T3}, s{S_T3}, 3")
e(f"s_lshl_b32 s{S_T3}, s{S_T3}, 7")
e(f"s_add_u32 s{S_T2}, s{S_T2}, s{S_T3}")
e(f"s_and_b32 s{S_T3}, s{S_HW}, 1")
e(f"s_lshl_b32 s{S_T3}, s{S_T3}, 6")
e(f"s_add_u32 s{S_T2}, s{S_T2}, s{S_T3}")
e(f"s_add_u32 s{S_T2}, s{S_T2}, {APART}")
e(f"s_lshl_b32 s{S_T3}, s{S_T0}, 11")
e(f"s_lshl_b32 s{S_T1}, s{S_T1}, 8")
e(f"s_add_u32 s{S_T3}, s{S_T3}, s{S_T1}")
e(f"s_add_u32 s{S_T3}, s{S_T3}, {AML}")
e(f"v_and_b32 v{H_A}, 31, v0")
e(f"v_lshrrev_b32 v{H_B}, 5, v0")
e(f"v_lshlrev_b32 v{H_C}, 3, v{H_A}")
e(f"v_lshlrev_b32 v{H_B}, 5, v{H_B}")
e(f"v_lshl_add_u32 v{H_B}, v{H_A}, 12, v{H_B}")
lab("L_l1f")
e(f"buffer_load_dwordx2 v[{H_R+8}:{H_R+9}], v{H_C}, {srd(SRD_WS)}, s{S_T3} offen sc1")
e("s_waitcnt vmcnt(0)")
e(f"v_max_u32 v{H_D}, v{H_R+8}, v{H_R+9}")
e(f"v_cmp_eq_u32 vcc, -1, v{H_D}")
e(f"s_bcnt1_i32_b64 s{S_T1}, vcc")
e(f"s_cmp_le_u32 s{S_T1}, {cfg.L1TH}")
e("s_cbranch_scc1 L_l1poll")
spin_tail("L_l1f", cfg.PS1)
lab("L_l1poll")
e(f"buffer_load_dwordx4 v[{H_R}:{H_R+3}], v{H_B}, {srd(SRD_WS)}, s{S_T2} offen sc1")
e(f"buffer_load_dwordx4 v[{H_R+4}:{H_R+7}], v{H_B}, {srd(SRD_WS)}, s{S_T2} offen offset:16 sc1")
e(f"buffer_load_dwordx2 v[{H_R+8}:{H_R+9}], v{H_C}, {srd(SRD_WS)}, s{S_T3} offen sc1")
e("s_waitcnt vmcnt(0)")
e(f"v_max3_u32 v{H_D}, v{H_R}, v{H_R+1}, v{H_R+2}")
e(f"v_max3_u32 v{H_E}, v{H_R+3}, v{H_R+4}, v{H_R+5}")
e(f"v_max3_u32 v{H_D}, v{H_D}, v{H_R+6}, v{H_R+7}")
e(f"v_max3_u32 v{H_E}, v{H_E}, v{H_R+8}, v{H_R+9}")
e(f"v_max_u32 v{H_D}, v{H_D}, v{H_E}")
e(f"v_cmp_eq_u32 vcc, -1, v{H_D}")
e("s_cbranch_vccz L_l1poll_d")
spin_tail("L_l1poll", cfg.PS)
lab("L_l1poll_d")
stamp()
e(f"v_mov_b32 v{H_D}, v{H_R+8}")
dpp_reduce("v_max_f32", [H_D], H_X, full=False)
e(f"s_mov_b32 s{S_T1}, {LOG2E:#x}")
e(f"v_sub_f32 v{H_D}, v{H_R+8}, v{H_D}")
e(f"v_mul_f32 v{H_D}, s{S_T1}, v{H_D}")
e(f"v_exp_f32 v{H_D}, v{H_D}")
e("s_nop 0")
for k in range(8):
    e(f"v_mul_f32 v{H_R+k}, v{H_D}, v{H_R+k}")
e(f"v_mul_f32 v{H_R+8}, v{H_D}, v{H_R+9}")
dpp_reduce("v_add_f32", [H_R + k for k in range(9)], H_X, full=False)
e(f"v_rcp_f32 v{H_D}, v{H_R+8}")
e("s_nop 0")
for k in range(8):
    e(f"v_mul_f32 v{H_R+k}, v{H_D}, v{H_R+k}")
for k in range(4):
    e(f"v_cvt_pk_bf16_f32 v{H_R+k}, v{H_R+2*k}, v{H_R+2*k+1}")
e(f"s_lshl_b32 s{S_T1}, s{S_HW}, 5")
e(f"v_lshrrev_b32 v{H_A}, 5, v0")
e(f"v_lshlrev_b32 v{H_A}, 4, v{H_A}")
e(f"v_add_u32 v{H_A}, s{S_T1}, v{H_A}")
mask(0x0000000100000001)
e(f"ds_write_b128 v{H_A}, v[{H_R}:{H_R+3}] offset:{OL}")
e("s_mov_b64 exec, -1")
e("s_waitcnt lgkmcnt(0)")
stamp()
e("s_barrier")
c("f gather (helper 2)")
e(f"s_cmp_lg_u32 s{S_HW}, 2")
e("s_cbranch_scc1 L_h_nof")
mailbox(FPART, "fmb", cfg.FSL)
for k in range(4):
    bf16r(H_R + k, H_R + k, H_B)
    silu(H_R + k, H_R + k, H_B)
    bf16r(H_R + k, H_R + k, H_B)
mask(0x3)
e(f"ds_write_b128 v{H_A}, v[{H_R}:{H_R+3}] offset:{G2L}")
e("s_mov_b64 exec, -1")
e("s_waitcnt lgkmcnt(0)")
lds_flag_set(2)
e("s_branch L_h_end")
lab("L_h_nof")
c("level-2")
e(f"s_cmp_lg_u32 s{S_HW}, 0")
e("s_cbranch_scc1 L_h_end")
e(f"v_and_b32 v{H_C}, 1, v0")
mailbox(SPART, "smb", cfg.PS)
stamp()
lds_flag_wait(2, "g2f")
lab("L_g2f_d")
e(f"v_lshlrev_b32 v{H_B}, 4, v{H_C}")
e(f"ds_read_b128 v[{H_X+8}:{H_X+11}], v{H_B} offset:{G2L}")
e(f"s_mov_b32 s{S_T2}, 0xffff0000")
e(f"v_lshlrev_b32 v{H_X}, 16, v{H_XF}")
e(f"v_and_b32 v{H_X+1}, s{S_T2}, v{H_XF}")
e(f"v_lshlrev_b32 v{H_X+2}, 16, v{H_XF+1}")
e(f"v_and_b32 v{H_X+3}, s{S_T2}, v{H_XF+1}")
e("s_waitcnt lgkmcnt(0)")
for k in range(4):
    bf16r(H_R + k, H_R + k, H_B)
    e(f"v_mul_f32 v{H_R+k}, v{H_R+k}, v{H_X+8+k}")
    bf16r(H_R + k, H_R + k, H_B)
    e(f"v_add_f32 v{H_R+k}, v{H_X+k}, v{H_R+k}")
e(f"v_cvt_pk_bf16_f32 v{H_R}, v{H_R}, v{H_R+1}")
e(f"v_cvt_pk_bf16_f32 v{H_R+1}, v{H_R+2}, v{H_R+3}")
e(f"s_lshl_b32 s{S_T0}, s{S_WG}, 3")
e(f"v_lshlrev_b32 v{H_A}, 11, v{H_C}")
mask(0x3)
e(f"buffer_store_dwordx2 v[{H_R}:{H_R+1}], v{H_A}, {srd(SRD_OUT)}, s{S_T0} offen")
e("s_mov_b64 exec, -1")
stamp()
if cfg.DIAG == 2:
    stamp_flush(H_A, H_B, [(4,12,0),(9,13,0),(11,14,0),(12,15,0)])
if cfg.DIAG == 3 and cfg.PROBE >= 0:
    e(f"s_cmp_lg_u32 s{S_WG}, {cfg.PWG}")
    e("s_cbranch_scc1 L_h_end")
    e(f"s_sub_u32 s{S_T0}, s{S_STAMP0+cfg.PROBE}, s100")
    e(f"s_add_u32 s{S_T0}, s{S_T0}, s{S_STAMP0+12}")
    lab("L_probe")
    e("s_memrealtime s[30:31]")
    e("s_waitcnt lgkmcnt(0)")
    e(f"s_sub_u32 s{S_T1}, s30, s{S_T0}")
    e(f"s_cmp_lt_i32 s{S_T1}, 0")
    e("s_cbranch_scc1 L_probe")
lab("L_h_end")
if cfg.DIAG == 1:
    stamp_flush(H_A, H_B)
lab("L_end")
e("s_endpgm")

L.append('.section .rodata,"a"')
L.append(".p2align 6")
L.append(f".amdhsa_kernel {KNAME}")
L.append(f"  .amdhsa_next_free_vgpr {NV_STREAM}")
L.append("  .amdhsa_next_free_sgpr 102")
L.append(f"  .amdhsa_accum_offset {NV_STREAM}")
L.append("  .amdhsa_group_segment_fixed_size 0")
L.append("  .amdhsa_kernarg_size 96")
L.append("  .amdhsa_user_sgpr_count 2")
L.append("  .amdhsa_user_sgpr_kernarg_segment_ptr 1")
L.append("  .amdhsa_system_sgpr_workgroup_id_x 1")
L.append(".end_amdhsa_kernel")
open(sys.argv[1], "w").write("\n".join(L) + "\n")
print("wrote", sys.argv[1], len(L), "lines; LDS", LDS_BYTES)
```

```python
import sys

KNAME = "recurrent_scan__gqa_block_cached__swiglu_ffn__decode_kernel"

class Cfg:
    R = 4
    NT = False
    DIAG = False
    SPIN = 1 << 22
    D = 2
    PAT = 2
    DH = 0
    L1TH = 8
    VS = 0
    FSL = 2
    D2 = 0
    U2 = 14
    TLB = 0
    PRIO = 2
    PROBE = -1
    PWG = 0
    CPF = 0
    ROT = 1
    LATE = 0
    WB = 0
    PS = 1
    PS1 = 2
    PRE = 0
    D0 = 1
    NS = 6
    ND = 4
    NP = 4

cfg = Cfg()
for a in sys.argv[2:]:
    k, v = a.split("=")
    setattr(cfg, k, int(v))

R = cfg.R
L = []
def e(s): L.append("    " + s)
def lab(s): L.append(s + ":")
def c(s): L.append("    ; " + s)

QPART = 0x000000
GUPART = 0x040000
APART = 0x080000
AML = 0x180000
SPART = 0x200000
FPART = 0x300000
SFLAG = 0x190000
QFLAG = 0x1A0000
HFLAG = 0x1A2000
CNT = 0x1A3000
TSOFF = 0x400000
WS_BYTES = 0x500000

XN = 0
REDQ = XN + 4096
REDG = REDQ + 4096
QL = REDG + 4096
AO = QL + 2048
AMLL = AO + 16384
HL = AMLL + 256
OL = HL + 128
G2L = OL + 128
FLG = G2L + 64
RING = 32768
assert FLG + 64 <= RING
LDS_BYTES = RING + 4 * R * 8192
assert LDS_BYTES <= 163840, LDS_BYTES

S_WG = 2
S_WAVE = 3
SRD_X, SRD_K, SRD_V, SRD_WQ, SRD_WO, SRD_GU, SRD_WD, SRD_OUT, SRD_DBG, SRD_WS, SRD_FP = \
    [56 + 4 * i for i in range(11)]
def srd(b): return f"s[{b}:{b+3}]"
S_WB = 4
S_T0, S_T1, S_T2, S_T3 = 5, 6, 7, 8
S_BQ, S_BG, S_BKV, S_BD, S_BO = 9, 10, 11, 12, 13
S_SPIN = 14
S_T4 = 15
S_STAMP0 = 36
nstamp = [0]
in_stream = [True]

def stamp(kind=0):
    if not cfg.DIAG:
        return
    if in_stream[0] and cfg.VS != kind and kind != 2:
        return
    if in_stream[0] and cfg.DIAG == 3:
        return
    i = nstamp[0]
    assert i < 14
    e("s_memrealtime s[30:31]")
    e("s_waitcnt lgkmcnt(0)")
    e(f"s_mov_b32 s{S_STAMP0+i}, s30")
    nstamp[0] += 1

def stamp_flush(vtmp0, vtmp1, dbgmap=None):
    if not cfg.DIAG:
        return
    n = nstamp[0]
    if cfg.DIAG == 3:
        nstamp[0] = 0
        return
    if cfg.DIAG == 2:
        e("s_mov_b64 exec, 1")
        e(f"v_mov_b32 v{vtmp0}, 0")
        for (i, word, inv) in dbgmap:
            if inv:
                e(f"s_not_b32 s30, s{S_STAMP0+i}")
            else:
                e(f"s_mov_b32 s30, s{S_STAMP0+i}")
            e(f"v_mov_b32 v{vtmp1}, s30")
            e(f"buffer_atomic_umax v{vtmp1}, v{vtmp0}, {srd(SRD_DBG)}, 0 offen offset:{4*word} sc1")
            e("s_nop 1")
        e("s_mov_b64 exec, -1")
        nstamp[0] = 0
        return
    e(f"s_lshl_b32 s30, s{S_WG}, 3")
    e(f"s_add_u32 s30, s30, s{S_WAVE}")
    e("s_lshl_b32 s30, s30, 6")
    e(f"s_add_u32 s30, s30, {TSOFF}")
    e("s_mov_b64 exec, 1")
    e(f"v_mov_b32 v{vtmp0}, 0")
    for i in range(n):
        e(f"v_mov_b32 v{vtmp1}, s{S_STAMP0+i}")
        e(f"buffer_store_dword v{vtmp1}, v{vtmp0}, {srd(SRD_WS)}, s30 offen offset:{4*i}")
        e("s_nop 1")
    e("s_mov_b64 exec, -1")
    nstamp[0] = 0

NTF = " nt" if cfg.NT else ""

LOG2E = 0x3fb8aa3b
SCALE = 0x3db504f3

L.append(f"; @launch grid=(256,1,1) block=(512,1,1) lds={LDS_BYTES}")
L.append('.amdgcn_target "amdgcn-amd-amdhsa--gfx950"')
L.append(".text")
L.append(f".globl {KNAME}")
L.append(".p2align 8")
L.append(f".type {KNAME},@function")
lab(KNAME)
e(f"s_cmp_ge_u32 s{S_WG}, 256")
e("s_cbranch_scc1 L_end")
if cfg.DIAG == 3:
    e("s_memrealtime s[100:101]")
e("s_load_dwordx16 s[32:47], s[0:1], 0")
e("s_load_dwordx8 s[48:55], s[0:1], 64")
e("v_lshrrev_b32 v1, 6, v0")
e("v_and_b32 v0, 63, v0")
e(f"v_readfirstlane_b32 s{S_WAVE}, v1")
e(f"s_mov_b32 s{S_SPIN}, {cfg.SPIN}")
e("s_waitcnt lgkmcnt(0)")
def mk_srd(b, plo, nbytes):
    e(f"s_mov_b32 s{b}, s{plo}")
    e(f"s_mov_b32 s{b+1}, s{plo+1}")
    e(f"s_mov_b32 s{b+2}, {nbytes}")
    e(f"s_mov_b32 s{b+3}, 0x00020000")
mk_srd(SRD_X, 32, 4096)
mk_srd(SRD_K, 34, 0x4000000)
mk_srd(SRD_V, 36, 0x4000000)
mk_srd(SRD_WQ, 38, 0x800000)
mk_srd(SRD_WO, 40, 0x800000)
e(f"s_cmp_ge_u32 s{S_WG}, 112")
e(f"s_cselect_b32 s{SRD_GU}, s46, s44")
e(f"s_cselect_b32 s{SRD_GU+1}, s47, s45")
e(f"s_cmp_lt_u32 s{S_WG}, 224")
e(f"s_cselect_b32 s{SRD_GU+2}, 0x700000, 0")
e(f"s_mov_b32 s{SRD_GU+3}, 0x00020000")
mk_srd(SRD_WD, 48, 0x700000)
e(f"s_cmp_ge_u32 s{S_WG}, 32")
e(f"s_cselect_b32 s{SRD_WD+2}, 0x700000, 0")
mk_srd(SRD_OUT, 50, 4096)
mk_srd(SRD_DBG, 52, 256)
mk_srd(SRD_WS, 54, WS_BYTES)
e(f"s_add_u32 s{SRD_FP}, s54, {FPART}")
e(f"s_addc_u32 s{SRD_FP+1}, s55, 0")
e(f"s_mov_b32 s{SRD_FP+2}, {112*8192}")
e(f"s_mov_b32 s{SRD_FP+3}, 0x00020000")
e(f"s_cmp_ge_u32 s{S_WAVE}, 4")
e("s_cbranch_scc1 L_helper")

c("================ stream waves ================")
V_L = 0
V_G, V_I, V_T0, V_T1, V_T2, V_T3 = 1, 2, 3, 4, 5, 6
V_CV = 7
V_OWQ = 9
V_OGU = 11
V_OW2 = 13
V_OV = 15
V_OK = 17
V_KA = 21
V_VA = 25
V_XB = 33
V_RED = 34
V_ST = 35
V_MX = 36
V_LS = 37
V_MC = 38
V_T4 = 39
V_B = 40
V_A = 56
V_O = 88
NKU = cfg.NS
V_S = 120
V_X = V_S + 8*NKU
V_X2 = V_X + 32
V_CL = V_X2 + 32
V_AL = V_CL + 1
NV_STREAM = (V_CL + 6 + 7) // 8 * 8
assert NV_STREAM <= 256
POOL = (8 - cfg.NS) * 32
S_DYN = 18
S_GB = 24
S_CNT = 25

outstanding = []
def vm_issue(tag): outstanding.append(tag)
def vm_wait(tag):
    if tag not in outstanding:
        return
    idx = max(i for i, t in enumerate(outstanding) if t == tag)
    n = len(outstanding) - 1 - idx
    assert n <= 63
    e(f"s_waitcnt vmcnt({n})")
    del outstanding[:idx + 1]

e(f"v_lshrrev_b32 v{V_G}, 4, v{V_L}")
e(f"v_and_b32 v{V_I}, 15, v{V_L}")
e(f"s_mul_i32 s{S_WB}, s{S_WAVE}, {R*8192}")
e(f"s_add_u32 s{S_WB}, s{S_WB}, {RING}")
e(f"v_lshlrev_b32 v{V_T0}, 1, v{V_G}")
e(f"v_xor_b32 v{V_T0}, v{V_T0}, v{V_I}")
e(f"v_lshlrev_b32 v{V_CV}, 4, v{V_T0}")
e(f"v_xor_b32 v{V_CV+1}, 0x80, v{V_CV}")
def mk_off(dst, rs):
    e(f"v_mul_u32_u24 v{V_T0}, {rs}, v{V_G}")
    e(f"v_add_u32 v{dst}, v{V_T0}, v{V_CV}")
    e(f"v_add_u32 v{dst+1}, v{V_T0}, v{V_CV+1}")
mk_off(V_OWQ, 8192)
e(f"s_and_b32 s{S_T0}, s{S_WG}, 7")
e(f"s_lshl_b32 s{S_T0}, s{S_T0}, 2")
e(f"s_add_u32 s{S_T0}, s{S_T0}, s{S_WAVE}")
e(f"s_lshl_b32 s{S_BQ}, s{S_T0}, 18")
e(f"s_lshl_b32 s{S_T4}, s{S_T0}, 6")
e(f"s_lshr_b32 s{S_T1}, s{S_WG}, 3")
e(f"s_lshl_b32 s{S_T1}, s{S_T1}, 8")
e(f"s_add_u32 s{S_BQ}, s{S_BQ}, s{S_T1}")

def half_throttle():
    if cfg.DH > 0:
        keep = (cfg.DH - 1) * 4
        if len(outstanding) > keep:
            e(f"s_waitcnt vmcnt({keep})")
            del outstanding[:len(outstanding) - keep]
def dma_w(u, srd_b, sbase, extra, rs, voff):
    slot = u % R
    for jj in range(8):
        if jj % 4 == 0:
            half_throttle()
            e(f"s_add_u32 m0, s{S_WB}, {slot*8192 + (jj//4)*4096}")
        e(f"s_add_u32 s{S_T3}, s{sbase}, {extra + jj*4*rs - (jj&3)*1024}")
        e(f"buffer_load_dwordx4 v{voff + (jj&1)}, {srd(srd_b)}, s{S_T3} offen offset:{(jj&3)*1024}{NTF} lds")
        vm_issue(u)

def dma_kv(u, is_k, idx):
    slot = u % R
    for half in range(2):
        half_throttle()
        e(f"s_add_u32 m0, s{S_WB}, {slot*8192 + half*4096}")
        if idx < cfg.NS:
            e(f"s_add_u32 s{S_T3}, s{S_WIN[idx]}, {half*4096}")
        else:
            e(f"s_add_u32 s{S_T3}, s{S_DYN}, {half*4096}")
        for j4 in range(4):
            if is_k:
                e(f"buffer_load_dwordx4 v{V_OK + j4}, {srd(SRD_K)}, s{S_T3} offen offset:{j4*1024}{NTF} lds")
            else:
                e(f"buffer_load_dwordx4 v{V_OV + (j4&1)}, {srd(SRD_V)}, s{S_T3} offen offset:{j4*1024}{NTF} lds")
            vm_issue(u)

U_K0 = 3
U_V0 = U_K0 + NKU
U_VL = U_V0 + NKU - 1
NUNITS = U_VL + 1
SLOT_B = U_VL % R
SLOT_A = (SLOT_B + 1) % R
U_KD = U_VL + 1
U_WD = U_VL + 2
U_WO = U_VL + 3
U_VD = U_VL + 4
def claim():
    e(f"v_mov_b32 v{V_CL}, 1")
    e(f"v_mov_b32 v{V_CL+2}, 0")
    e("s_mov_b64 exec, 1")
    e(f"buffer_atomic_add v{V_CL}, v{V_CL+2}, {srd(SRD_WS)}, s{S_CNT} offen sc0 sc1")
    e("s_mov_b64 exec, -1")
    vm_issue("cl")
def issue_unit(u):
    if u >= NUNITS:
        return
    dd = cfg.D2 if (cfg.D2 and u >= cfg.U2) else cfg.D
    if (u - dd) in outstanding and u >= cfg.D0:
        vm_wait(u - dd)
    if u == 0:
        dma_w(u, SRD_WQ, S_BQ, 0, 8192, V_OWQ)
    elif u in (1, 2):
        dma_w(u, SRD_GU, S_BG, (u - 1) * 32 * 7168, 7168, V_OGU)
    elif u < U_V0:
        dma_kv(u, True, u - U_K0)
    else:
        dma_kv(u, False, u - U_V0)
        if u == U_VL:
            claim()

issue_unit(0)
mk_off(V_OGU, 7168)
e(f"s_and_b32 s{S_T0}, s{S_WG}, 3")
e(f"s_lshl_b32 s{S_T0}, s{S_T0}, 2")
e(f"s_add_u32 s{S_T0}, s{S_T0}, s{S_WAVE}")
e(f"s_mul_i32 s{S_BG}, s{S_T0}, {64*7168}")
e(f"s_lshl_b32 s{S_T2}, s{S_T0}, 7")
e(f"s_lshr_b32 s{S_T1}, s{S_WG}, 2")
e(f"s_cmp_ge_u32 s{S_T1}, 28")
e(f"s_cselect_b32 s{S_T0}, 28, 0")
e(f"s_sub_u32 s{S_T1}, s{S_T1}, s{S_T0}")
e(f"s_lshl_b32 s{S_T1}, s{S_T1}, 8")
e(f"s_add_u32 s{S_BG}, s{S_BG}, s{S_T1}")
S_XG = S_T2
S_XQ = S_T4
issue_unit(1)
if cfg.PAT == 0:
    e(f"s_lshl_b32 s{S_BKV}, s{S_WG}, 18")
    e(f"s_lshl_b32 s{S_T0}, s{S_WAVE}, 16")
    e(f"s_add_u32 s{S_BKV}, s{S_BKV}, s{S_T0}")
    KVSTRIDE = 8192
elif cfg.PAT == 1:
    e(f"s_lshl_b32 s{S_BKV}, s{S_WG}, 18")
    e(f"s_lshl_b32 s{S_T0}, s{S_WAVE}, 13")
    e(f"s_add_u32 s{S_BKV}, s{S_BKV}, s{S_T0}")
    KVSTRIDE = 32768
else:
    e(f"s_lshr_b32 s{S_BKV}, s{S_WG}, 5")
    e(f"s_lshl_b32 s{S_BKV}, s{S_BKV}, 23")
    e(f"s_and_b32 s{S_T0}, s{S_WG}, 31")
    e(f"s_lshl_b32 s{S_T0}, s{S_T0}, 2")
    e(f"s_add_u32 s{S_T0}, s{S_T0}, s{S_WAVE}")
    e(f"s_lshl_b32 s{S_T0}, s{S_T0}, 13")
    e(f"s_add_u32 s{S_BKV}, s{S_BKV}, s{S_T0}")
    KVSTRIDE = 1 << 20
S_WIN = [50, 51, 52, 53, 54, 55, 32, 33]
e(f"s_lshr_b32 s{S_T1}, s{S_WG}, 5")
e(f"s_mul_i32 s{S_T1}, s{S_T1}, {cfg.ROT}")
for idx in range(cfg.NS):
    e(f"s_add_u32 s{S_T0}, s{S_T1}, {idx}")
    e(f"s_and_b32 s{S_T0}, s{S_T0}, 7")
    e(f"s_lshl_b32 s{S_T0}, s{S_T0}, 20")
    e(f"s_add_u32 s{S_WIN[idx]}, s{S_BKV}, s{S_T0}")
e(f"s_lshr_b32 s{S_GB}, s{S_WG}, 5")
e(f"s_lshl_b32 s{S_GB}, s{S_GB}, 23")
e(f"s_lshr_b32 s{S_T0}, s{S_WG}, 3")
e(f"s_lshl_b32 s{S_CNT}, s{S_T0}, 7")
e(f"s_add_u32 s{S_CNT}, s{S_CNT}, {CNT}")
e(f"s_and_b32 s{S_T0}, s{S_T0}, 3")
e(f"s_mul_i32 s{S_T0}, s{S_T0}, {POOL}")
e(f"s_lshr_b32 s{S_T3}, s{S_T0}, 7")
e(f"s_add_u32 s{S_T1}, s{S_T1}, s{S_T3}")
e(f"s_add_u32 s{S_T1}, s{S_T1}, {cfg.NS}")
e(f"s_and_b32 s{S_T1}, s{S_T1}, 7")
e(f"s_lshl_b32 s{S_T1}, s{S_T1}, 20")
e(f"s_add_u32 s{S_GB}, s{S_GB}, s{S_T1}")
e(f"s_and_b32 s{S_T0}, s{S_T0}, 127")
e(f"s_lshl_b32 s{S_T0}, s{S_T0}, 13")
e(f"s_add_u32 s{S_GB}, s{S_GB}, s{S_T0}")
assert 128 % POOL == 0
assert cfg.PAT == 2
e(f"v_xor_b32 v{V_T0}, v{V_I}, v{V_G}")
e(f"v_lshlrev_b32 v{V_T1}, 8, v{V_G}")
for j4 in range(4):
    e(f"v_xor_b32 v{V_T2}, {4*j4}, v{V_T0}")
    e(f"v_lshl_add_u32 v{V_OK+j4}, v{V_T2}, 4, v{V_T1}")
mk_off(V_OV, 256)
mk_off(V_OW2, 2048)
e(f"s_max_u32 s{S_T0}, s{S_WG}, 32")
e(f"s_sub_u32 s{S_T0}, s{S_T0}, 32")
def mk_base2(dst, src):
    e(f"s_lshr_b32 s{S_T1}, s{src}, 1")
    e(f"s_lshl_b32 s{dst}, s{S_T1}, 16")
    e(f"s_and_b32 s{S_T1}, s{src}, 1")
    e(f"s_lshl_b32 s{S_T1}, s{S_T1}, 10")
    e(f"s_add_u32 s{dst}, s{dst}, s{S_T1}")
    e(f"s_lshl_b32 s{S_T1}, s{S_WAVE}, 8")
    e(f"s_add_u32 s{dst}, s{dst}, s{S_T1}")
mk_base2(S_BD, S_T0)
mk_base2(S_BO, S_WG)
e(f"v_xor_b32 v{V_T0}, v{V_I}, v{V_G}")
e(f"v_lshlrev_b32 v{V_T1}, 8, v{V_I}")
e(f"v_add_u32 v{V_T1}, s{S_WB}, v{V_T1}")
for ks in range(4):
    e(f"v_xor_b32 v{V_T2}, {4*ks}, v{V_T0}")
    e(f"v_lshl_add_u32 v{V_KA+ks}, v{V_T2}, 4, v{V_T1}")
e(f"v_lshrrev_b32 v{V_T0}, 2, v{V_L}")
e(f"v_lshlrev_b32 v{V_T1}, 8, v{V_T0}")
e(f"v_add_u32 v{V_T1}, s{S_WB}, v{V_T1}")
e(f"v_and_b32 v{V_T2}, 3, v{V_L}")
e(f"v_lshl_add_u32 v{V_T1}, v{V_T2}, 3, v{V_T1}")
e(f"v_and_b32 v{V_T0}, 7, v{V_T0}")
for t in range(8):
    e(f"v_xor_b32 v{V_T2}, {t}, v{V_T0}")
    e(f"v_lshl_add_u32 v{V_VA+t}, v{V_T2}, 5, v{V_T1}")
e(f"v_and_b32 v{V_T0}, 1, v{V_I}")
e(f"v_lshlrev_b32 v{V_T1}, 3, v{V_G}")
e(f"v_lshl_add_u32 v{V_XB}, v{V_T0}, 11, v{V_T1}")
e(f"v_lshlrev_b32 v{V_T1}, 4, v{V_G}")
e(f"v_lshl_add_u32 v{V_RED}, v{V_I}, 9, v{V_T1}")
e(f"v_lshlrev_b32 v{V_T1}, 4, v{V_I}")
e(f"v_lshl_add_u32 v{V_ST}, v{V_G}, 12, v{V_T1}")

def mask(m):
    e(f"s_mov_b32 exec_lo, {m & 0xffffffff:#x}")
    e(f"s_mov_b32 exec_hi, {(m >> 32) & 0xffffffff:#x}")
M_N2 = 0x0003000300030003
M_N8 = 0x00FF00FF00FF00FF

def gemv_unit(u, first, nxt=True):
    slot = u % R
    vm_wait(u)
    for t in range(8):
        e(f"ds_read_b64_tr_b16 v[{V_A+4*t}:{V_A+4*t+1}], v{V_VA+t} offset:{slot*8192}")
        e(f"ds_read_b64_tr_b16 v[{V_A+4*t+2}:{V_A+4*t+3}], v{V_VA+t} offset:{slot*8192+4096}")
        if t == 3:
            pass
    for t in range(8):
        if t % 2 == 0:
            e(f"s_waitcnt lgkmcnt({16 - 2*t - 4})")
        cc = "0" if first else f"v[{V_O+4*t}:{V_O+4*t+3}]"
        e(f"v_mfma_f32_16x16x32_bf16 v[{V_O+4*t}:{V_O+4*t+3}], v[{V_A+4*t}:{V_A+4*t+3}], v[{V_B}:{V_B+3}], {cc}")
    if nxt:
        issue_unit(u + R)

def read_b(vaddr_s, base):
    pass

for u in range(2, max(cfg.D, cfg.D0)):
    issue_unit(u)
nxt_issue = [max(2, cfg.D, cfg.D0)]
def pump(upto):
    while nxt_issue[0] <= upto:
        issue_unit(nxt_issue[0]); nxt_issue[0] += 1
stamp(2)
e("s_barrier")
c("---- q-proj unit ----")
e(f"v_add_u32 v{V_T3}, s{S_XQ}, v{V_XB}")
e(f"ds_read_b64 v[{V_B}:{V_B+1}], v{V_T3} offset:{XN}")
e(f"ds_read_b64 v[{V_B+2}:{V_B+3}], v{V_T3} offset:{XN+32}")
e(f"v_add_u32 v{V_T3}, s{S_XG}, v{V_XB}")
e(f"ds_read_b64 v[{V_B+4}:{V_B+5}], v{V_T3} offset:{XN}")
e(f"ds_read_b64 v[{V_B+6}:{V_B+7}], v{V_T3} offset:{XN+32}")
e(f"ds_read_b64 v[{V_B+8}:{V_B+9}], v{V_T3} offset:{XN+64}")
e(f"ds_read_b64 v[{V_B+10}:{V_B+11}], v{V_T3} offset:{XN+96}")
e("s_waitcnt lgkmcnt(0)")
gemv_unit(0, True, nxt=False)
e(f"s_lshl_b32 s{S_T0}, s{S_WAVE}, 10")
e(f"v_add_u32 v{V_T3}, s{S_T0}, v{V_RED}")
e("s_nop 7")
mask(M_N2)
for t in range(8):
    e(f"ds_write_b128 v{V_T3}, v[{V_O+4*t}:{V_O+4*t+3}] offset:{REDQ + t*64}")
e("s_mov_b64 exec, -1")
e("s_waitcnt lgkmcnt(0)")
stamp()
e("s_barrier")
pump(cfg.D)
c("---- gate/up units ----")
for k in range(4):
    e(f"v_mov_b32 v{V_B+k}, v{V_B+4+k}")
e("s_nop 1")
gemv_unit(1, True, nxt=False)
pump(1 + cfg.D)
e("s_nop 7")
for k in range(4):
    e(f"v_mov_b32 v{V_B+k}, v{V_B+8+k}")
e("s_nop 1")
gemv_unit(2, False, nxt=False)
e("s_nop 7")
mask(M_N2)
for t in range(8):
    e(f"ds_write_b128 v{V_T3}, v[{V_O+4*t}:{V_O+4*t+3}] offset:{REDG + t*64}")
e("s_mov_b64 exec, -1")
e("s_waitcnt lgkmcnt(0)")
e("s_barrier")
pump(2 + R)
PARK = [V_O, V_X, V_X2, V_A][:cfg.NP]
def k_frags(u, base):
    slot = u % R
    vm_wait(u)
    for tile in range(2):
        for ks in range(4):
            a = base + 16*tile + 4*ks
            e(f"ds_read_b128 v[{a}:{a+3}], v{V_KA+ks} offset:{slot*8192 + tile*4096}")
for ku in range(cfg.NP):
    k_frags(3 + ku, PARK[ku])
    e("s_waitcnt lgkmcnt(0)")
    pump(3 + ku + R)
stamp()
e("s_barrier")
stamp(2)
c("---- load q fragments ----")
e(f"v_and_b32 v{V_T0}, 7, v{V_I}")
e(f"v_lshlrev_b32 v{V_T1}, 4, v{V_G}")
e(f"v_lshl_add_u32 v{V_T0}, v{V_T0}, 8, v{V_T1}")
for ks in range(4):
    e(f"ds_read_b128 v[{V_B+4*ks}:{V_B+4*ks+3}], v{V_T0} offset:{QL + ks*64}")
e(f"s_mov_b32 s{S_T0}, {SCALE:#x}")
e(f"s_mov_b32 s{S_T1}, 0xffff0000")
e(f"v_mov_b32 v{V_MX}, 0xff800000")
e("s_waitcnt lgkmcnt(0)")

def score_post(base):
    for h in range(2):
        a, b = base + 2*h, base + 2*h + 1
        e(f"v_cvt_pk_bf16_f32 v{V_T2}, v{a}, v{b}")
        e(f"v_lshlrev_b32 v{a}, 16, v{V_T2}")
        e(f"v_and_b32 v{b}, s{S_T1}, v{V_T2}")
        e(f"v_mul_f32 v{a}, s{S_T0}, v{a}")
        e(f"v_mul_f32 v{b}, s{S_T0}, v{b}")
        e(f"v_cvt_pk_bf16_f32 v{V_T2}, v{a}, v{b}")
        e(f"v_lshlrev_b32 v{a}, 16, v{V_T2}")
        e(f"v_and_b32 v{b}, s{S_T1}, v{V_T2}")
        e(f"v_max3_f32 v{V_MX}, v{a}, v{b}, v{V_MX}")

c("---- K phase ----")
def k_mfma(base, d0, wait):
    for tile in range(2):
        d = d0 + tile * 4
        if wait:
            e(f"s_waitcnt lgkmcnt({4 - 4*tile})")
        for ks in range(4):
            a = base + 16*tile + 4*ks
            cc = "0" if ks == 0 else f"v[{d}:{d+3}]"
            e(f"v_mfma_f32_16x16x32_bf16 v[{d}:{d+3}], v[{a}:{a+3}], v[{V_B+4*ks}:{V_B+4*ks+3}], {cc}")
for ku in range(NKU):
    u = 3 + ku
    parked = ku < cfg.NP
    base = PARK[ku] if parked else V_A
    if not parked:
        k_frags(u, V_A)
    k_mfma(base, V_S + 8*ku, not parked)
    if not parked:
        pump(u + R)
    e("s_nop 7")
    score_post(V_S + (2*ku) * 4)
    score_post(V_S + (2*ku + 1) * 4)
stamp(2)
c("---- softmax ----")
def xswap(op, v, tmp):
    e(f"v_mov_b32 v{tmp}, v{v}")
    e("s_nop 1")
    e(f"v_permlane16_swap_b32 v{v}, v{tmp}")
    e(f"{op} v{v}, v{v}, v{tmp}")
    e(f"v_mov_b32 v{tmp}, v{v}")
    e("s_nop 1")
    e(f"v_permlane32_swap_b32 v{v}, v{tmp}")
    e(f"{op} v{v}, v{v}, v{tmp}")
xswap("v_max_f32", V_MX, V_T2)
e(f"s_mov_b32 s{S_T2}, {LOG2E:#x}")
e(f"v_mul_f32 v{V_MC}, s{S_T2}, v{V_MX}")
e(f"v_mov_b32 v{V_LS}, 0")
e(f"v_mov_b32 v{V_T4}, 0")
def exp_block(r0, n):
    for r in range(r0, r0 + n, 2):
        a, b = V_S + r, V_S + r + 1
        e(f"v_fma_f32 v{a}, v{a}, s{S_T2}, -v{V_MC}")
        e(f"v_fma_f32 v{b}, v{b}, s{S_T2}, -v{V_MC}")
        e(f"v_exp_f32 v{a}, v{a}")
        e(f"v_exp_f32 v{b}, v{b}")
        e("s_nop 0")
        e(f"v_add_f32 v{V_LS}, v{V_LS}, v{a}")
        e(f"v_add_f32 v{V_T4}, v{V_T4}, v{b}")
        e(f"v_cvt_pk_bf16_f32 v{V_S + (r//8)*8 + (r%8)//2}, v{a}, v{b}")
exp_block(0, 8*NKU)
e(f"v_add_f32 v{V_LS}, v{V_LS}, v{V_T4}")
stamp()
c("---- V phase ----")
def v_consume(slot, preg, first):
    for t in range(8):
        e(f"ds_read_b64_tr_b16 v[{V_A+4*t}:{V_A+4*t+1}], v{V_VA+t} offset:{slot*8192}")
        e(f"ds_read_b64_tr_b16 v[{V_A+4*t+2}:{V_A+4*t+3}], v{V_VA+t} offset:{slot*8192+4096}")
    for t in range(8):
        if t % 2 == 0:
            e(f"s_waitcnt lgkmcnt({16 - 2*t - 4})")
        cc = "0" if first else f"v[{V_O+4*t}:{V_O+4*t+3}]"
        e(f"v_mfma_f32_16x16x32_bf16 v[{V_O+4*t}:{V_O+4*t+3}], v[{V_A+4*t}:{V_A+4*t+3}], v[{preg}:{preg+3}], {cc}")
for vu in range(NKU - 1):
    u = U_V0 + vu
    vm_wait(u)
    v_consume(u % R, V_S + 8*vu, vu == 0)
    pump(u + R)
    stamp(1)
assert outstanding == [U_VL]*8 + ["cl"], outstanding
PD = V_S + 8*(NKU - 1)
e("s_waitcnt vmcnt(1)")
v_consume(SLOT_B, PD, False)
lab("L_dyn")
e("s_waitcnt vmcnt(0)")
del outstanding[:]
e(f"v_readfirstlane_b32 s{S_T3}, v{V_CL}")
e(f"s_add_u32 s{S_T3}, s{S_T3}, 1")
e(f"s_cmp_ge_u32 s{S_T3}, {POOL}")
e("s_cbranch_scc1 L_dyn_exit")
e(f"s_lshl_b32 s{S_T3}, s{S_T3}, 13")
e(f"s_add_u32 s{S_DYN}, s{S_T3}, s{S_GB}")
dma_kv(U_KD, True, 99)
dma_kv(U_VD, False, 99)
e("s_waitcnt vmcnt(8)")
claim()
del outstanding[:]
for tile in range(2):
    for ks in range(4):
        a = V_A + 16*tile + 4*ks
        e(f"ds_read_b128 v[{a}:{a+3}], v{V_KA+ks} offset:{SLOT_A*8192 + tile*4096}")
k_mfma(V_A, PD, True)
e("s_nop 7")
score_post(PD)
score_post(PD + 4)
xswap("v_max_f32", V_MX, V_T2)
e(f"v_mul_f32 v{V_T4}, s{S_T2}, v{V_MX}")
e(f"v_sub_f32 v{V_AL}, v{V_MC}, v{V_T4}")
e(f"v_exp_f32 v{V_AL}, v{V_AL}")
e(f"v_mov_b32 v{V_MC}, v{V_T4}")
e(f"v_mov_b32 v{V_T4}, 0")
e(f"v_mul_f32 v{V_LS}, v{V_LS}, v{V_AL}")
for r in range(32):
    e(f"v_mul_f32 v{V_O+r}, v{V_O+r}, v{V_AL}")
exp_block(8*(NKU - 1), 8)
e(f"v_add_f32 v{V_LS}, v{V_LS}, v{V_T4}")
e("s_waitcnt vmcnt(1)")
v_consume(SLOT_B, PD, False)
e("s_branch L_dyn")
lab("L_dyn_exit")
if cfg.LATE == 0:
    dma_w(U_WD, SRD_WD, S_BD, 0, 2048, V_OW2)
    dma_w(U_WO, SRD_WO, S_BO, 0, 2048, V_OW2)
if cfg.LATE == 3:
    dma_w(U_WD, SRD_WD, S_BD, 0, 2048, V_OW2)
xswap("v_add_f32", V_LS, V_T2)
c("---- write attention partial to LDS ----")
e(f"s_lshl_b32 s{S_T0}, s{S_WAVE}, 12")
e(f"v_add_u32 v{V_T3}, s{S_T0}, v{V_RED}")
e(f"s_lshl_b32 s{S_T0}, s{S_WAVE}, 3")
e(f"v_lshlrev_b32 v{V_T2}, 5, v{V_I}")
e(f"v_add_u32 v{V_T2}, s{S_T0}, v{V_T2}")
e(f"v_mov_b32 v{V_MX+1}, v{V_LS}") if V_LS != V_MX + 1 else None
e("s_nop 7")
mask(M_N8)
for t in range(8):
    e(f"ds_write_b128 v{V_T3}, v[{V_O+4*t}:{V_O+4*t+3}] offset:{AO + t*64}")
mask(0xFF)
e(f"ds_write_b64 v{V_T2}, v[{V_MX}:{V_MX+1}] offset:{AMLL}")
e("s_mov_b64 exec, -1")
e("s_waitcnt lgkmcnt(0)")
stamp()
e("s_barrier")
if cfg.LATE == 1:
    dma_w(U_WD, SRD_WD, S_BD, 0, 2048, V_OW2)
    dma_w(U_WO, SRD_WO, S_BO, 0, 2048, V_OW2)
if cfg.LATE == 2:
    dma_w(U_WD, SRD_WD, S_BD, 0, 2048, V_OW2)
    vm_wait(U_WD)
    dma_w(U_WO, SRD_WO, S_BO, 0, 2048, V_OW2)
if cfg.LATE == 3:
    vm_wait(U_WD)
    dma_w(U_WO, SRD_WO, S_BO, 0, 2048, V_OW2)
c("---- down-proj unit ----")
e(f"v_and_b32 v{V_T0}, 1, v{V_I}")
e(f"v_lshlrev_b32 v{V_T1}, 3, v{V_G}")
e(f"v_lshl_add_u32 v{V_T3}, v{V_T0}, 6, v{V_T1}")
e(f"ds_read_b64 v[{V_B}:{V_B+1}], v{V_T3} offset:{HL}")
e(f"ds_read_b64 v[{V_B+2}:{V_B+3}], v{V_T3} offset:{HL+32}")
e("s_waitcnt lgkmcnt(0)")
gemv_unit(U_WD, True, nxt=False)
def store_part(sb, region, oob_lt32):
    e("s_nop 7")
    for r in range(32):
        e(f"v_min_u32 v{V_O+r}, 0xfffffffe, v{V_O+r}")
    e(f"s_lshr_b32 s{S_T0}, s{sb}, 16")
    e(f"s_lshl_b32 s{S_T0}, s{S_T0}, 5")
    e(f"s_and_b32 s{S_T1}, s{sb}, 0xffff")
    e(f"s_lshl_b32 s{S_T1}, s{S_T1}, 9")
    e(f"s_add_u32 s{S_T0}, s{S_T0}, s{S_T1}")
    e(f"s_add_u32 s{S_T0}, s{S_T0}, {region}")
    if oob_lt32:
        e(f"s_cmp_lt_u32 s{S_WG}, 32")
        e(f"s_cselect_b32 s{S_T0}, 0x40000000, s{S_T0}")
    mask(M_N2)
    for t in range(8):
        e(f"buffer_store_dwordx4 v[{V_O+4*t}:{V_O+4*t+3}], v{V_ST}, {srd(SRD_WS)}, s{S_T0} offen sc1")
        vm_issue("st")
        if t < 7:
            e(f"s_add_u32 s{S_T0}, s{S_T0}, 16384")
    e("s_mov_b64 exec, -1")
store_part(S_BD, FPART, True)
if cfg.PRE:
    vm_wait(U_WO)
    for t in range(8):
        e(f"ds_read_b64_tr_b16 v[{V_A+4*t}:{V_A+4*t+1}], v{V_VA+t} offset:{(U_WO%R)*8192}")
        e(f"ds_read_b64_tr_b16 v[{V_A+4*t+2}:{V_A+4*t+3}], v{V_VA+t} offset:{(U_WO%R)*8192+4096}")
    e(f"v_and_b32 v{V_T0}, 1, v{V_I}")
    e(f"v_lshlrev_b32 v{V_T1}, 3, v{V_G}")
    e(f"v_lshl_add_u32 v{V_T3}, v{V_T0}, 6, v{V_T1}")
    e("s_waitcnt lgkmcnt(0)")
stamp()
e("s_barrier")
stamp()
c("---- wo unit ----")
if not cfg.PRE:
    e(f"v_and_b32 v{V_T0}, 1, v{V_I}")
    e(f"v_lshlrev_b32 v{V_T1}, 3, v{V_G}")
    e(f"v_lshl_add_u32 v{V_T3}, v{V_T0}, 6, v{V_T1}")
e(f"ds_read_b64 v[{V_B}:{V_B+1}], v{V_T3} offset:{OL}")
e(f"ds_read_b64 v[{V_B+2}:{V_B+3}], v{V_T3} offset:{OL+32}")
e("s_waitcnt lgkmcnt(0)")
if cfg.PRE:
    for t in range(8):
        e(f"v_mfma_f32_16x16x32_bf16 v[{V_O+4*t}:{V_O+4*t+3}], v[{V_A+4*t}:{V_A+4*t+3}], v[{V_B}:{V_B+3}], 0")
else:
    gemv_unit(U_WO, True, nxt=False)
stamp()
store_part(S_BO, SPART, False)
stamp()
if cfg.DIAG:
    e("s_waitcnt vmcnt(0)")
stamp()
stamp_flush(V_T0, V_T1, [(0,4,1),(0,5,0),(3,6,0),(4,7,0),(6,8,1),(6,9,0),(8,10,0),(11,11,0)])
e("s_endpgm")

in_stream[0] = False
lab("L_helper")
if cfg.PRIO:
    e(f"s_setprio {cfg.PRIO}")
c("================ helper waves ================")
S_HW = 4
H_T = 1
H_A, H_B, H_C, H_D, H_E = 2, 3, 4, 5, 6
H_XF = 8
H_NEG = 12
H_X = 16
H_R = 32
e(f"s_sub_u32 s{S_HW}, s{S_WAVE}, 4")
e(f"s_and_b32 s{S_T0}, s{S_HW}, 1")
e(f"s_lshl_b32 s{S_T1}, s{S_T0}, 11")
e(f"v_lshlrev_b32 v{H_A}, 5, v0")
e(f"buffer_load_dwordx4 v[{H_R}:{H_R+3}], v{H_A}, {srd(SRD_X)}, s{S_T1} offen")
e(f"buffer_load_dwordx4 v[{H_R+4}:{H_R+7}], v{H_A}, {srd(SRD_X)}, s{S_T1} offen offset:16")
e(f"s_lshl_b32 s{S_T2}, s{S_WG}, 3")
e(f"v_and_b32 v{H_B}, 1, v0")
e(f"v_lshlrev_b32 v{H_B}, 11, v{H_B}")
e(f"buffer_load_dwordx2 v[{H_XF}:{H_XF+1}], v{H_B}, {srd(SRD_X)}, s{S_T2} offen")
e(f"s_lshl_b32 s{S_T2}, s{S_HW}, 6")
e(f"v_add_u32 v{H_T}, s{S_T2}, v0")
for k in range(4):
    e(f"v_mov_b32 v{H_NEG+k}, -1")
e(f"v_mov_b32 v{H_C}, 0")
e(f"v_lshlrev_b32 v{H_D}, 2, v0")
e(f"v_and_b32 v{H_D}, 63, v{H_D}")
e(f"ds_write_b32 v{H_D}, v{H_C} offset:{FLG}")
if cfg.TLB:
    c("page pre-touch (helper 3)")
    e(f"s_cmp_lg_u32 s{S_HW}, 3")
    e("s_cbranch_scc1 L_h_notlb")
    e(f"v_lshlrev_b32 v{H_C}, {cfg.TLB}, v0")
    per = 64 << cfg.TLB
    k = 0
    for sr, nb in ((SRD_WQ, 8<<20), (SRD_GU, 7<<20), (SRD_K, 64<<20), (SRD_V, 64<<20), (SRD_WD, 7<<20), (SRD_WO, 8<<20), (SRD_WS, WS_BYTES)):
        for off in range(0, nb, per):
            e(f"s_mov_b32 s{S_T2}, {off}")
            e(f"buffer_load_dword v{H_R+16+(k%16)}, v{H_C}, {srd(sr)}, s{S_T2} offen")
            k += 1
    lab("L_h_notlb")
if cfg.CPF:
    c("code prefetch into L2 (helper 3)")
    e(f"s_cmp_lg_u32 s{S_HW}, 3")
    e("s_cbranch_scc1 L_h_nocpf")
    e("s_getpc_b64 s[30:31]")
    lab("L_pcref")
    e(f"s_sub_u32 s30, s30, L_pcref-{KNAME}")
    e("s_subb_u32 s31, s31, 0")
    e(f"v_lshlrev_b32 v{H_C}, 6, v0")
    for k in range(cfg.CPF):
        e(f"v_min_u32 v{H_D}, L_end-{KNAME}, v{H_C}")
        e(f"global_load_dword v{H_R+16+(k%16)}, v{H_D}, s[30:31]")
        e(f"v_add_u32 v{H_C}, 4096, v{H_C}")
    lab("L_h_nocpf")
c("bootstrap: WG 0 clears the flag area, then raises d_debug[0]")
e(f"v_lshlrev_b32 v{H_B}, 4, v{H_T}")
e(f"s_cmp_lg_u32 s{S_WG}, 0")
e("s_cbranch_scc1 L_h_noboot")
for k in range(4):
    e(f"s_mov_b32 s{S_T2}, {QFLAG + k*4096}")
    e(f"buffer_store_dwordx4 v[{H_NEG}:{H_NEG+3}], v{H_B}, {srd(SRD_WS)}, s{S_T2} offen sc1")
e("s_waitcnt vmcnt(0)")
e(f"s_lshl_b32 s{S_T2}, s{S_HW}, 2")
e(f"v_mov_b32 v{H_C}, 1")
e(f"v_mov_b32 v{H_D}, 0")
e("s_mov_b64 exec, 1")
e(f"buffer_store_dword v{H_C}, v{H_D}, {srd(SRD_DBG)}, s{S_T2} offen sc1")
e("s_mov_b64 exec, -1")
lab("L_h_noboot")
c("clear sentinels")
e(f"v_lshlrev_b32 v{H_B}, 4, v{H_T}")
e(f"s_lshl_b32 s{S_T2}, s{S_WG}, 12")
e(f"s_add_u32 s{S_T2}, s{S_T2}, {APART}")
e(f"buffer_store_dwordx4 v[{H_NEG}:{H_NEG+3}], v{H_B}, {srd(SRD_WS)}, s{S_T2} offen sc1")
e(f"s_lshl_b32 s{S_T2}, s{S_WG}, 12")
e(f"s_add_u32 s{S_T3}, s{S_T2}, {SPART}")
e(f"buffer_store_dwordx4 v[{H_NEG}:{H_NEG+3}], v{H_B}, {srd(SRD_WS)}, s{S_T3} offen sc1")
e(f"v_cmp_gt_u32 vcc, 224, v{H_T}")
e("s_nop 1")
for k in range(4):
    e(f"v_cndmask_b32 v{H_X+k}, 0, v{H_NEG}, vcc")
e(f"s_add_u32 s{S_T3}, s{S_T2}, {FPART}")
e(f"buffer_store_dwordx4 v[{H_X}:{H_X+3}], v{H_B}, {srd(SRD_WS)}, s{S_T3} offen sc1")
e(f"s_cmp_lg_u32 s{S_HW}, 0")
e("s_cbranch_scc1 L_h_skipml")
e(f"s_lshr_b32 s{S_T2}, s{S_WG}, 5")
e(f"s_lshl_b32 s{S_T2}, s{S_T2}, 11")
e(f"s_and_b32 s{S_T3}, s{S_WG}, 31")
e(f"s_lshl_b32 s{S_T3}, s{S_T3}, 3")
e(f"s_add_u32 s{S_T2}, s{S_T2}, s{S_T3}")
e(f"s_add_u32 s{S_T2}, s{S_T2}, {AML}")
e(f"v_lshlrev_b32 v{H_C}, 8, v0")
mask(0xFF)
e(f"buffer_store_dwordx2 v[{H_NEG}:{H_NEG+1}], v{H_C}, {srd(SRD_WS)}, s{S_T2} offen sc1")
e("s_mov_b64 exec, -1")
lab("L_h_skipml")

def dpp_reduce(op, regs, tmpbase, full=True):
    for pat in ["quad_perm:[1,0,3,2]", "quad_perm:[2,3,0,1]", "row_half_mirror", "row_mirror"]:
        if len(regs) < 3:
            e("s_nop 1")
        for r in regs:
            e(f"{op}_dpp v{r}, v{r}, v{r} {pat} row_mask:0xf bank_mask:0xf")
    swaps = ["v_permlane16_swap_b32"] + (["v_permlane32_swap_b32"] if full else [])
    for sw in swaps:
        for k, r in enumerate(regs):
            e(f"v_mov_b32 v{tmpbase+k}, v{r}")
        e("s_nop 1")
        for k, r in enumerate(regs):
            e(f"{sw} v{r}, v{tmpbase+k}")
        for k, r in enumerate(regs):
            e(f"{op} v{r}, v{r}, v{tmpbase+k}")

def bf16r(dst, src, tmp):
    e(f"v_cvt_pk_bf16_f32 v{tmp}, v{src}, v{src}")
    e(f"v_lshlrev_b32 v{dst}, 16, v{tmp}")

c("layernorm")
e("s_waitcnt vmcnt(3)")
e(f"s_mov_b32 s{S_T2}, 0xffff0000")
for k in range(8):
    e(f"v_lshlrev_b32 v{H_X+2*k}, 16, v{H_R+k}")
    e(f"v_and_b32 v{H_X+2*k+1}, s{S_T2}, v{H_R+k}")
e(f"v_add_f32 v{H_A}, v{H_X}, v{H_X+1}")
for k in range(2, 16):
    e(f"v_add_f32 v{H_A}, v{H_A}, v{H_X+k}")
dpp_reduce("v_add_f32", [H_A], H_B)
e(f"v_mul_f32 v{H_A}, 0x3a800000, v{H_A}")
e(f"v_mov_b32 v{H_C}, 0")
for k in range(16):
    e(f"v_sub_f32 v{H_D}, v{H_X+k}, v{H_A}")
    e(f"v_fmac_f32 v{H_C}, v{H_D}, v{H_D}")
dpp_reduce("v_add_f32", [H_C], H_B)
e(f"v_mul_f32 v{H_C}, 0x3a800000, v{H_C}")
bf16r(H_A, H_A, H_B)
bf16r(H_C, H_C, H_B)
e(f"v_add_f32 v{H_C}, 0x3727c5ac, v{H_C}")
bf16r(H_C, H_C, H_B)
e(f"v_sqrt_f32 v{H_C}, v{H_C}")
e("s_nop 0")
bf16r(H_C, H_C, H_B)
e(f"v_rcp_f32 v{H_D}, v{H_C}")
e("s_nop 0")
for k in range(0, 16, 2):
    a, b = H_X + k, H_X + k + 1
    e(f"v_sub_f32 v{a}, v{a}, v{H_A}")
    e(f"v_sub_f32 v{b}, v{b}, v{H_A}")
    e(f"v_cvt_pk_bf16_f32 v{H_B}, v{a}, v{b}")
    e(f"v_lshlrev_b32 v{a}, 16, v{H_B}")
    e(f"v_and_b32 v{b}, s{S_T2}, v{H_B}")
    for x in (a, b):
        e(f"v_mul_f32 v{H_E}, v{x}, v{H_D}")
        e(f"v_fma_f32 v{x}, -v{H_E}, v{H_C}, v{x}")
        e(f"v_fma_f32 v{x}, v{x}, v{H_D}, v{H_E}")
    e(f"v_cvt_pk_bf16_f32 v{H_R+k//2}, v{a}, v{b}")
e(f"v_lshlrev_b32 v{H_A}, 5, v0")
e(f"v_add_u32 v{H_A}, s{S_T1}, v{H_A}")
e(f"ds_write_b128 v{H_A}, v[{H_R}:{H_R+3}] offset:{XN}")
e(f"ds_write_b128 v{H_A}, v[{H_R+4}:{H_R+7}] offset:{XN+16}")
e("s_waitcnt lgkmcnt(0)")
stamp()
e("s_barrier")
e("s_barrier")
stamp()

def red_publish(red_off, soff_emit, cnt_off_emit, skip_store_if=None, tag=""):
    e(f"v_lshlrev_b32 v{H_A}, 4, v0")
    for w in range(4):
        e(f"ds_read_b128 v[{H_R+4*w}:{H_R+4*w+3}], v{H_A} offset:{red_off + w*1024}")
    e("s_waitcnt lgkmcnt(0)")
    for k in range(4):
        e(f"v_add_f32 v{H_R+k}, v{H_R+k}, v{H_R+4+k}")
        e(f"v_add_f32 v{H_R+8+k}, v{H_R+8+k}, v{H_R+12+k}")
    for k in range(4):
        e(f"v_add_f32 v{H_R+k}, v{H_R+k}, v{H_R+8+k}")
    soff_emit()
    if skip_store_if:
        skip_store_if("L_skipst" + tag)
    e(f"buffer_store_dwordx4 v[{H_R}:{H_R+3}], v{H_B}, {srd(SRD_WS)}, s{S_T2} offen sc1")
    if skip_store_if:
        lab("L_skipst" + tag)
    e(f"v_mov_b32 v{H_A}, 0")
    lab("L_boot" + tag)
    e(f"buffer_load_dwordx4 v[{H_R+4}:{H_R+7}], v{H_A}, {srd(SRD_DBG)}, 0 offen sc1")
    e("s_waitcnt vmcnt(0)")
    e(f"v_and_b32 v{H_R+4}, v{H_R+4}, v{H_R+5}")
    e(f"v_and_b32 v{H_R+6}, v{H_R+6}, v{H_R+7}")
    e(f"v_and_b32 v{H_R+4}, v{H_R+4}, v{H_R+6}")
    e(f"v_cmp_eq_u32 vcc, 0, v{H_R+4}")
    e(f"s_cbranch_vccz L_bootd{tag}")
    e("s_sleep 8")
    e(f"s_sub_u32 s{S_SPIN}, s{S_SPIN}, 1")
    e(f"s_cmp_lg_u32 s{S_SPIN}, 0")
    e(f"s_cbranch_scc1 L_boot{tag}")
    e(f"s_mov_b32 s{S_SPIN}, 1")
    lab("L_bootd" + tag)
    cnt_off_emit()
    e(f"v_mov_b32 v{H_A}, 0")
    e(f"buffer_store_dword v{H_A}, v{H_B}, {srd(SRD_WS)}, s{S_T2} offen sc1")
    e("s_mov_b64 exec, -1")

c("publish q partial (helper 0)")
e(f"s_cmp_lg_u32 s{S_HW}, 0")
e("s_cbranch_scc1 L_h_noq")
def q_soff():
    e(f"v_and_b32 v{H_B}, 31, v0")
    e(f"v_lshlrev_b32 v{H_B}, 4, v{H_B}")
    e(f"v_lshrrev_b32 v{H_C}, 5, v0")
    e(f"v_lshl_add_u32 v{H_B}, v{H_C}, 14, v{H_B}")
    e(f"s_and_b32 s{S_T2}, s{S_WG}, 7")
    e(f"s_lshl_b32 s{S_T2}, s{S_T2}, 15")
    e(f"s_lshr_b32 s{S_T3}, s{S_WG}, 3")
    e(f"s_lshl_b32 s{S_T3}, s{S_T3}, 9")
    e(f"s_add_u32 s{S_T2}, s{S_T2}, s{S_T3}")
    if QPART:
        e(f"s_add_u32 s{S_T2}, s{S_T2}, {QPART}")
def q_cnt():
    e(f"s_lshl_b32 s{S_T2}, s{S_WG}, 2")
    e(f"s_add_u32 s{S_T2}, s{S_T2}, {QFLAG}")
    e(f"v_lshlrev_b32 v{H_B}, 10, v0")
    mask(0xFF)
red_publish(REDQ, q_soff, q_cnt, None, "q")
e("s_branch L_h_q2")
lab("L_h_noq")
e("s_waitcnt vmcnt(0)")
lab("L_h_q2")
if cfg.WB:
    e(f"s_cmp_lg_u32 s{S_HW}, 3")
    e("s_cbranch_scc1 L_h_nowb")
    e(f"s_cmp_ge_u32 s{S_WG}, {cfg.WB}")
    e("s_cbranch_scc1 L_h_nowb")
    e("buffer_wbl2 sc1")
    lab("L_h_nowb")
stamp()
e("s_barrier")
c("publish gate/up partial (helper 1)")
e(f"s_cmp_lg_u32 s{S_HW}, 1")
e("s_cbranch_scc1 L_h_nog")
def g_soff():
    e(f"v_and_b32 v{H_B}, 31, v0")
    e(f"v_lshlrev_b32 v{H_B}, 4, v{H_B}")
    e(f"v_lshrrev_b32 v{H_C}, 5, v0")
    e(f"v_mul_u32_u24 v{H_C}, 14336, v{H_C}")
    e(f"v_add_u32 v{H_B}, v{H_C}, v{H_B}")
    e(f"s_lshr_b32 s{S_T3}, s{S_WG}, 2")
    e(f"s_cmp_ge_u32 s{S_T3}, 28")
    e(f"s_cselect_b32 s{S_T2}, 28, 0")
    e(f"s_sub_u32 s{S_T3}, s{S_T3}, s{S_T2}")
    e(f"s_lshr_b32 s{S_T2}, s{S_WG}, 2")
    e(f"s_cmp_ge_u32 s{S_T2}, 28")
    e(f"s_cselect_b32 s{S_T2}, 4, 0")
    e(f"s_and_b32 s{S_T4}, s{S_WG}, 3")
    e(f"s_add_u32 s{S_T2}, s{S_T2}, s{S_T4}")
    e(f"s_mul_i32 s{S_T2}, s{S_T2}, {2*14336}")
    e(f"s_lshl_b32 s{S_T3}, s{S_T3}, 9")
    e(f"s_add_u32 s{S_T2}, s{S_T2}, s{S_T3}")
    e(f"s_add_u32 s{S_T2}, s{S_T2}, {GUPART}")
def g_skip(l):
    e(f"s_cmp_ge_u32 s{S_WG}, 224")
    e(f"s_cbranch_scc1 {l}")
def g_cnt():
    e(f"s_lshl_b32 s{S_T2}, s{S_WG}, 2")
    e(f"s_add_u32 s{S_T2}, s{S_T2}, {HFLAG}")
    e(f"v_lshlrev_b32 v{H_B}, 10, v0")
    mask(0xF)
red_publish(REDG, g_soff, g_cnt, g_skip, "g")
lab("L_h_nog")

def lds_flag_wait(idx, name):
    lab(f"L_{name}_w")
    e(f"v_mov_b32 v{H_A}, 0")
    e(f"ds_read_b32 v{H_B}, v{H_A} offset:{FLG + 4*idx}")
    e("s_waitcnt lgkmcnt(0)")
    e(f"v_readfirstlane_b32 s{S_T2}, v{H_B}")
    e(f"s_cmp_lg_u32 s{S_T2}, 0")
    e(f"s_cbranch_scc1 L_{name}_d")
    e("s_sleep 1")
    e(f"s_sub_u32 s{S_SPIN}, s{S_SPIN}, 1")
    e(f"s_cmp_lg_u32 s{S_SPIN}, 0")
    e(f"s_cbranch_scc1 L_{name}_w")
    e(f"s_mov_b32 s{S_SPIN}, 1")
    e(f"s_branch L_{name}_d")

def lds_flag_set(idx):
    e(f"v_mov_b32 v{H_A}, 0")
    e(f"v_mov_b32 v{H_B}, 1")
    e(f"ds_write_b32 v{H_A}, v{H_B} offset:{FLG + 4*idx}")

c("wait for q counter")
e(f"s_cmp_lg_u32 s{S_HW}, 0")
e("s_cbranch_scc1 L_qf_w")
e(f"s_lshr_b32 s{S_T3}, s{S_WG}, 5")
e(f"s_and_b32 s{S_T3}, s{S_T3}, 3")
e(f"s_lshl_b32 s{S_T3}, s{S_T3}, 8")
e(f"s_and_b32 s{S_T2}, s{S_WG}, 7")
e(f"s_lshl_b32 s{S_T2}, s{S_T2}, 10")
e(f"s_add_u32 s{S_T3}, s{S_T3}, s{S_T2}")
e(f"s_add_u32 s{S_T3}, s{S_T3}, {QFLAG}")
e(f"v_lshlrev_b32 v{H_A}, 2, v0")
lab("L_qpoll")
e(f"buffer_load_dword v{H_B}, v{H_A}, {srd(SRD_WS)}, s{S_T3} offen sc1")
e("s_waitcnt vmcnt(0)")
e(f"v_cmp_eq_u32 vcc, -1, v{H_B}")
e("s_cbranch_vccz L_qpoll_d")
e("s_sleep 4")
e(f"s_sub_u32 s{S_SPIN}, s{S_SPIN}, 1")
e(f"s_cmp_lg_u32 s{S_SPIN}, 0")
e("s_cbranch_scc1 L_qpoll")
e(f"s_mov_b32 s{S_SPIN}, 1")
lab("L_qpoll_d")
lds_flag_set(0)
e("s_branch L_qf_d")
lds_flag_wait(0, "qf")
lab("L_qf_d")
stamp()
c("gather q")
e(f"s_lshr_b32 s{S_T2}, s{S_WG}, 5")
e(f"s_lshl_b32 s{S_T2}, s{S_T2}, 12")
e(f"v_lshlrev_b32 v{H_A}, 4, v{H_T}")
for ks in range(8):
    e(f"s_add_u32 s{S_T3}, s{S_T2}, {QPART + ks*32768}")
    e(f"buffer_load_dwordx4 v[{H_R+4*ks}:{H_R+4*ks+3}], v{H_A}, {srd(SRD_WS)}, s{S_T3} offen sc1")
e("s_waitcnt vmcnt(0)")
for ks in range(1, 8):
    for k in range(4):
        e(f"v_add_f32 v{H_R+k}, v{H_R+k}, v{H_R+4*ks+k}")
e(f"v_cvt_pk_bf16_f32 v{H_R}, v{H_R}, v{H_R+1}")
e(f"v_cvt_pk_bf16_f32 v{H_R+1}, v{H_R+2}, v{H_R+3}")
e(f"v_lshlrev_b32 v{H_A}, 3, v{H_T}")
e(f"ds_write_b64 v{H_A}, v[{H_R}:{H_R+1}] offset:{QL}")
e("s_waitcnt lgkmcnt(0)")
stamp()
e("s_barrier")
c("wait for h counter (helper 0), h gather (helper 1)")
e(f"s_cmp_eq_u32 s{S_HW}, 1")
e("s_cbranch_scc1 L_hf_w")
e(f"s_cmp_lg_u32 s{S_HW}, 0")
e("s_cbranch_scc1 L_h_b5")
e(f"v_lshlrev_b32 v{H_A}, 4, v0")
e(f"s_and_b32 s{S_T2}, s{S_WG}, 3")
e(f"s_lshl_b32 s{S_T2}, s{S_T2}, 10")
e(f"s_add_u32 s{S_T2}, s{S_T2}, {HFLAG}")
lab("L_hpoll")
e(f"buffer_load_dwordx4 v[{H_R}:{H_R+3}], v{H_A}, {srd(SRD_WS)}, s{S_T2} offen sc1")
e("s_waitcnt vmcnt(0)")
e(f"v_max3_u32 v{H_B}, v{H_R}, v{H_R+1}, v{H_R+2}")
e(f"v_max_u32 v{H_B}, v{H_B}, v{H_R+3}")
e(f"v_cmp_eq_u32 vcc, -1, v{H_B}")
e("s_cbranch_vccz L_hpoll_d")
e("s_sleep 16")
e(f"s_sub_u32 s{S_SPIN}, s{S_SPIN}, 1")
e(f"s_cmp_lg_u32 s{S_SPIN}, 0")
e("s_cbranch_scc1 L_hpoll")
e(f"s_mov_b32 s{S_SPIN}, 1")
lab("L_hpoll_d")
lds_flag_set(1)
e("s_branch L_h_b5")
lds_flag_wait(1, "hf")
lab("L_hf_d")
e(f"s_max_u32 s{S_T2}, s{S_WG}, 32")
e(f"s_sub_u32 s{S_T2}, s{S_T2}, 32")
e(f"s_lshr_b32 s{S_T2}, s{S_T2}, 1")
e(f"s_lshl_b32 s{S_T2}, s{S_T2}, 7")
e(f"v_and_b32 v{H_A}, 31, v0")
e(f"v_lshlrev_b32 v{H_A}, 2, v{H_A}")
e(f"v_lshrrev_b32 v{H_B}, 5, v0")
e(f"v_mul_u32_u24 v{H_B}, 14336, v{H_B}")
e(f"v_add_u32 v{H_A}, v{H_A}, v{H_B}")
for m in range(8):
    e(f"s_add_u32 s{S_T3}, s{S_T2}, {GUPART + m*2*14336}")
    e(f"buffer_load_dword v{H_R+m}, v{H_A}, {srd(SRD_WS)}, s{S_T3} offen sc1")
e("s_waitcnt vmcnt(0)")
for m in (0, 4):
    e(f"v_add_f32 v{H_R+m}, v{H_R+m}, v{H_R+m+1}")
    e(f"v_add_f32 v{H_R+m+2}, v{H_R+m+2}, v{H_R+m+3}")
    e(f"v_add_f32 v{H_R+m}, v{H_R+m}, v{H_R+m+2}")
    bf16r(H_R + m, H_R + m, H_B)
def silu(dst, src, t):
    e(f"v_mul_f32 v{t}, 0xbfb8aa3b, v{src}")
    e(f"v_exp_f32 v{t}, v{t}")
    e("s_nop 0")
    e(f"v_add_f32 v{t}, 1.0, v{t}")
    e(f"v_rcp_f32 v{t}, v{t}")
    e("s_nop 0")
    e(f"v_mul_f32 v{dst}, v{src}, v{t}")
silu(H_R, H_R, H_B)
bf16r(H_R, H_R, H_B)
e(f"v_mul_f32 v{H_R}, v{H_R}, v{H_R+4}")
e(f"v_cvt_pk_bf16_f32 v{H_R}, v{H_R}, v{H_R}")
e(f"v_lshlrev_b32 v{H_A}, 1, v0")
e(f"ds_write_b16 v{H_A}, v{H_R} offset:{HL}")
e("s_waitcnt lgkmcnt(0)")
lab("L_h_b5")
e("s_waitcnt lgkmcnt(0)")
stamp()
def spin_tail(back, sl=1):
    if sl:
        e(f"s_sleep {sl}")
    e(f"s_sub_u32 s{S_SPIN}, s{S_SPIN}, 1")
    e(f"s_cmp_lg_u32 s{S_SPIN}, 0")
    e(f"s_cbranch_scc1 {back}")
    e(f"s_mov_b32 s{S_SPIN}, 1")
def mailbox(region, name, sl):
    e(f"s_lshl_b32 s{S_T2}, s{S_WG}, 12")
    e(f"s_add_u32 s{S_T2}, s{S_T2}, {region}")
    e(f"v_lshlrev_b32 v{H_A}, 4, v0")
    lab(f"L_{name}")
    for k in range(4):
        e(f"buffer_load_dwordx4 v[{H_R+4*k}:{H_R+4*k+3}], v{H_A}, {srd(SRD_WS)}, s{S_T2} offen offset:{1024*k} sc1")
    e("s_waitcnt vmcnt(0)")
    e(f"v_max3_u32 v{H_D}, v{H_R}, v{H_R+1}, v{H_R+2}")
    e(f"v_max3_u32 v{H_E}, v{H_R+3}, v{H_R+4}, v{H_R+5}")
    e(f"v_max3_u32 v{H_D}, v{H_D}, v{H_R+6}, v{H_R+7}")
    e(f"v_max3_u32 v{H_E}, v{H_E}, v{H_R+8}, v{H_R+9}")
    e(f"v_max3_u32 v{H_D}, v{H_D}, v{H_R+10}, v{H_R+11}")
    e(f"v_max3_u32 v{H_E}, v{H_E}, v{H_R+12}, v{H_R+13}")
    e(f"v_max3_u32 v{H_D}, v{H_D}, v{H_R+14}, v{H_R+15}")
    e(f"v_max_u32 v{H_D}, v{H_D}, v{H_E}")
    e(f"v_cmp_eq_u32 vcc, -1, v{H_D}")
    e(f"s_cbranch_vccz L_{name}_d")
    spin_tail(f"L_{name}", sl)
    lab(f"L_{name}_d")
    for k in range(4):
        e(f"v_add_f32 v{H_R+k}, v{H_R+k}, v{H_R+4+k}")
        e(f"v_add_f32 v{H_R+8+k}, v{H_R+8+k}, v{H_R+12+k}")
    for k in range(4):
        e(f"v_add_f32 v{H_R+k}, v{H_R+k}, v{H_R+8+k}")
    regs = [H_R + k for k in range(4)]
    for pat in ["quad_perm:[2,3,0,1]", "row_ror:4", "row_ror:8"]:
        for r in regs:
            e(f"v_add_f32_dpp v{r}, v{r}, v{r} {pat} row_mask:0xf bank_mask:0xf")
    for sw in ["v_permlane16_swap_b32", "v_permlane32_swap_b32"]:
        for k, r in enumerate(regs):
            e(f"v_mov_b32 v{H_X+k}, v{r}")
        e("s_nop 1")
        for k, r in enumerate(regs):
            e(f"{sw} v{r}, v{H_X+k}")
        for k, r in enumerate(regs):
            e(f"v_add_f32 v{r}, v{r}, v{H_X+k}")
stamp()
e("s_barrier")
stamp()
c("combine 4 waves' attention partials, publish")
e(f"v_lshrrev_b32 v{H_A}, 5, v{H_T}")
e(f"v_lshlrev_b32 v{H_B}, 5, v{H_A}")
e(f"ds_read_b128 v[{H_X}:{H_X+3}], v{H_B} offset:{AMLL}")
e(f"ds_read_b128 v[{H_X+4}:{H_X+7}], v{H_B} offset:{AMLL+16}")
e(f"v_lshlrev_b32 v{H_C}, 4, v{H_T}")
for w in range(4):
    e(f"ds_read_b128 v[{H_R+4*w}:{H_R+4*w+3}], v{H_C} offset:{AO + w*4096}")
e(f"s_mov_b32 s{S_T3}, {LOG2E:#x}")
e("s_waitcnt lgkmcnt(4)")
e(f"v_max3_f32 v{H_D}, v{H_X}, v{H_X+2}, v{H_X+4}")
e(f"v_max_f32 v{H_D}, v{H_D}, v{H_X+6}")
for w in range(4):
    e(f"v_sub_f32 v{H_X+2*w}, v{H_X+2*w}, v{H_D}")
    e(f"v_mul_f32 v{H_X+2*w}, s{S_T3}, v{H_X+2*w}")
    e(f"v_exp_f32 v{H_X+2*w}, v{H_X+2*w}")
e("s_nop 0")
e(f"v_mul_f32 v{H_E}, v{H_X}, v{H_X+1}")
for w in range(1, 4):
    e(f"v_fmac_f32 v{H_E}, v{H_X+2*w}, v{H_X+2*w+1}")
e("s_waitcnt lgkmcnt(0)")
for k in range(4):
    e(f"v_mul_f32 v{H_R+k}, v{H_X}, v{H_R+k}")
for w in range(1, 4):
    for k in range(4):
        e(f"v_fmac_f32 v{H_R+k}, v{H_X+2*w}, v{H_R+4*w+k}")
for k in range(4):
    e(f"v_min_u32 v{H_R+k}, 0xfffffffe, v{H_R+k}")
e(f"v_min_u32 v{H_D}, 0xfffffffe, v{H_D}")
e(f"v_min_u32 v{H_E}, 0xfffffffe, v{H_E}")
e(f"s_lshl_b32 s{S_T2}, s{S_WG}, 12")
e(f"s_add_u32 s{S_T2}, s{S_T2}, {APART}")
e(f"buffer_store_dwordx4 v[{H_R}:{H_R+3}], v{H_C}, {srd(SRD_WS)}, s{S_T2} offen sc1")
e(f"s_lshr_b32 s{S_T2}, s{S_WG}, 5")
e(f"s_lshl_b32 s{S_T2}, s{S_T2}, 11")
e(f"s_and_b32 s{S_T3}, s{S_WG}, 31")
e(f"s_lshl_b32 s{S_T3}, s{S_T3}, 3")
e(f"s_add_u32 s{S_T2}, s{S_T2}, s{S_T3}")
e(f"s_add_u32 s{S_T2}, s{S_T2}, {AML}")
e(f"v_lshlrev_b32 v{H_B}, 8, v{H_A}")
assert H_E == H_D + 1
e(f"v_mov_b32 v{H_X+8}, v{H_D}")
e(f"v_mov_b32 v{H_X+9}, v{H_E}")
mask(0x0000000100000001)
e(f"buffer_store_dwordx2 v[{H_X+8}:{H_X+9}], v{H_B}, {srd(SRD_WS)}, s{S_T2} offen sc1")
e("s_mov_b64 exec, -1")
stamp()
c("level-1 gather")
e(f"s_lshr_b32 s{S_T0}, s{S_HW}, 1")
e(f"s_lshl_b32 s{S_T0}, s{S_T0}, 2")
e(f"s_lshr_b32 s{S_T1}, s{S_WG}, 6")
e(f"s_add_u32 s{S_T0}, s{S_T0}, s{S_T1}")
e(f"s_lshr_b32 s{S_T1}, s{S_WG}, 3")
e(f"s_and_b32 s{S_T1}, s{S_T1}, 7")
e(f"s_lshl_b32 s{S_T2}, s{S_T0}, 17")
e(f"s_lshl_b32 s{S_T3}, s{S_T1}, 9")
e(f"s_add_u32 s{S_T2}, s{S_T2}, s{S_T3}")
e(f"s_lshr_b32 s{S_T3}, s{S_WG}, 1")
e(f"s_and_b32 s{S_T3}, s{S_T3}, 3")
e(f"s_lshl_b32 s{S_T3}, s{S_T3}, 7")
e(f"s_add_u32 s{S_T2}, s{S_T2}, s{S_T3}")
e(f"s_and_b32 s{S_T3}, s{S_HW}, 1")
e(f"s_lshl_b32 s{S_T3}, s{S_T3}, 6")
e(f"s_add_u32 s{S_T2}, s{S_T2}, s{S_T3}")
e(f"s_add_u32 s{S_T2}, s{S_T2}, {APART}")
e(f"s_lshl_b32 s{S_T3}, s{S_T0}, 11")
e(f"s_lshl_b32 s{S_T1}, s{S_T1}, 8")
e(f"s_add_u32 s{S_T3}, s{S_T3}, s{S_T1}")
e(f"s_add_u32 s{S_T3}, s{S_T3}, {AML}")
e(f"v_and_b32 v{H_A}, 31, v0")
e(f"v_lshrrev_b32 v{H_B}, 5, v0")
e(f"v_lshlrev_b32 v{H_C}, 3, v{H_A}")
e(f"v_lshlrev_b32 v{H_B}, 5, v{H_B}")
e(f"v_lshl_add_u32 v{H_B}, v{H_A}, 12, v{H_B}")
lab("L_l1f")
e(f"buffer_load_dwordx2 v[{H_R+8}:{H_R+9}], v{H_C}, {srd(SRD_WS)}, s{S_T3} offen sc1")
e("s_waitcnt vmcnt(0)")
e(f"v_max_u32 v{H_D}, v{H_R+8}, v{H_R+9}")
e(f"v_cmp_eq_u32 vcc, -1, v{H_D}")
e(f"s_bcnt1_i32_b64 s{S_T1}, vcc")
e(f"s_cmp_le_u32 s{S_T1}, {cfg.L1TH}")
e("s_cbranch_scc1 L_l1poll")
spin_tail("L_l1f", cfg.PS1)
lab("L_l1poll")
e(f"buffer_load_dwordx4 v[{H_R}:{H_R+3}], v{H_B}, {srd(SRD_WS)}, s{S_T2} offen sc1")
e(f"buffer_load_dwordx4 v[{H_R+4}:{H_R+7}], v{H_B}, {srd(SRD_WS)}, s{S_T2} offen offset:16 sc1")
e(f"buffer_load_dwordx2 v[{H_R+8}:{H_R+9}], v{H_C}, {srd(SRD_WS)}, s{S_T3} offen sc1")
e("s_waitcnt vmcnt(0)")
e(f"v_max3_u32 v{H_D}, v{H_R}, v{H_R+1}, v{H_R+2}")
e(f"v_max3_u32 v{H_E}, v{H_R+3}, v{H_R+4}, v{H_R+5}")
e(f"v_max3_u32 v{H_D}, v{H_D}, v{H_R+6}, v{H_R+7}")
e(f"v_max3_u32 v{H_E}, v{H_E}, v{H_R+8}, v{H_R+9}")
e(f"v_max_u32 v{H_D}, v{H_D}, v{H_E}")
e(f"v_cmp_eq_u32 vcc, -1, v{H_D}")
e("s_cbranch_vccz L_l1poll_d")
spin_tail("L_l1poll", cfg.PS)
lab("L_l1poll_d")
stamp()
e(f"v_mov_b32 v{H_D}, v{H_R+8}")
dpp_reduce("v_max_f32", [H_D], H_X, full=False)
e(f"s_mov_b32 s{S_T1}, {LOG2E:#x}")
e(f"v_sub_f32 v{H_D}, v{H_R+8}, v{H_D}")
e(f"v_mul_f32 v{H_D}, s{S_T1}, v{H_D}")
e(f"v_exp_f32 v{H_D}, v{H_D}")
e("s_nop 0")
for k in range(8):
    e(f"v_mul_f32 v{H_R+k}, v{H_D}, v{H_R+k}")
e(f"v_mul_f32 v{H_R+8}, v{H_D}, v{H_R+9}")
dpp_reduce("v_add_f32", [H_R + k for k in range(9)], H_X, full=False)
e(f"v_rcp_f32 v{H_D}, v{H_R+8}")
e("s_nop 0")
for k in range(8):
    e(f"v_mul_f32 v{H_R+k}, v{H_D}, v{H_R+k}")
for k in range(4):
    e(f"v_cvt_pk_bf16_f32 v{H_R+k}, v{H_R+2*k}, v{H_R+2*k+1}")
e(f"s_lshl_b32 s{S_T1}, s{S_HW}, 5")
e(f"v_lshrrev_b32 v{H_A}, 5, v0")
e(f"v_lshlrev_b32 v{H_A}, 4, v{H_A}")
e(f"v_add_u32 v{H_A}, s{S_T1}, v{H_A}")
mask(0x0000000100000001)
e(f"ds_write_b128 v{H_A}, v[{H_R}:{H_R+3}] offset:{OL}")
e("s_mov_b64 exec, -1")
e("s_waitcnt lgkmcnt(0)")
stamp()
e("s_barrier")
c("f gather (helper 2)")
e(f"s_cmp_lg_u32 s{S_HW}, 2")
e("s_cbranch_scc1 L_h_nof")
mailbox(FPART, "fmb", cfg.FSL)
for k in range(4):
    bf16r(H_R + k, H_R + k, H_B)
    silu(H_R + k, H_R + k, H_B)
    bf16r(H_R + k, H_R + k, H_B)
mask(0x3)
e(f"ds_write_b128 v{H_A}, v[{H_R}:{H_R+3}] offset:{G2L}")
e("s_mov_b64 exec, -1")
e("s_waitcnt lgkmcnt(0)")
lds_flag_set(2)
e("s_branch L_h_end")
lab("L_h_nof")
c("level-2")
e(f"s_cmp_lg_u32 s{S_HW}, 0")
e("s_cbranch_scc1 L_h_end")
e(f"v_and_b32 v{H_C}, 1, v0")
mailbox(SPART, "smb", cfg.PS)
stamp()
lds_flag_wait(2, "g2f")
lab("L_g2f_d")
e(f"v_lshlrev_b32 v{H_B}, 4, v{H_C}")
e(f"ds_read_b128 v[{H_X+8}:{H_X+11}], v{H_B} offset:{G2L}")
e(f"s_mov_b32 s{S_T2}, 0xffff0000")
e(f"v_lshlrev_b32 v{H_X}, 16, v{H_XF}")
e(f"v_and_b32 v{H_X+1}, s{S_T2}, v{H_XF}")
e(f"v_lshlrev_b32 v{H_X+2}, 16, v{H_XF+1}")
e(f"v_and_b32 v{H_X+3}, s{S_T2}, v{H_XF+1}")
e("s_waitcnt lgkmcnt(0)")
for k in range(4):
    bf16r(H_R + k, H_R + k, H_B)
    e(f"v_mul_f32 v{H_R+k}, v{H_R+k}, v{H_X+8+k}")
    bf16r(H_R + k, H_R + k, H_B)
    e(f"v_add_f32 v{H_R+k}, v{H_X+k}, v{H_R+k}")
e(f"v_cvt_pk_bf16_f32 v{H_R}, v{H_R}, v{H_R+1}")
e(f"v_cvt_pk_bf16_f32 v{H_R+1}, v{H_R+2}, v{H_R+3}")
e(f"s_lshl_b32 s{S_T0}, s{S_WG}, 3")
e(f"v_lshlrev_b32 v{H_A}, 11, v{H_C}")
mask(0x3)
e(f"buffer_store_dwordx2 v[{H_R}:{H_R+1}], v{H_A}, {srd(SRD_OUT)}, s{S_T0} offen")
e("s_mov_b64 exec, -1")
stamp()
if cfg.DIAG == 2:
    stamp_flush(H_A, H_B, [(4,12,0),(9,13,0),(11,14,0),(12,15,0)])
if cfg.DIAG == 3 and cfg.PROBE >= 0:
    e(f"s_cmp_lg_u32 s{S_WG}, {cfg.PWG}")
    e("s_cbranch_scc1 L_h_end")
    e(f"s_sub_u32 s{S_T0}, s{S_STAMP0+cfg.PROBE}, s100")
    e(f"s_add_u32 s{S_T0}, s{S_T0}, s{S_STAMP0+12}")
    lab("L_probe")
    e("s_memrealtime s[30:31]")
    e("s_waitcnt lgkmcnt(0)")
    e(f"s_sub_u32 s{S_T1}, s30, s{S_T0}")
    e(f"s_cmp_lt_i32 s{S_T1}, 0")
    e("s_cbranch_scc1 L_probe")
lab("L_h_end")
if cfg.DIAG == 1:
    stamp_flush(H_A, H_B)
lab("L_end")
e("s_endpgm")

L.append('.section .rodata,"a"')
L.append(".p2align 6")
L.append(f".amdhsa_kernel {KNAME}")
L.append(f"  .amdhsa_next_free_vgpr {NV_STREAM}")
L.append("  .amdhsa_next_free_sgpr 102")
L.append(f"  .amdhsa_accum_offset {NV_STREAM}")
L.append("  .amdhsa_group_segment_fixed_size 0")
L.append("  .amdhsa_kernarg_size 96")
L.append("  .amdhsa_user_sgpr_count 2")
L.append("  .amdhsa_user_sgpr_kernarg_segment_ptr 1")
L.append("  .amdhsa_system_sgpr_workgroup_id_x 1")
L.append(".end_amdhsa_kernel")
open(sys.argv[1], "w").write("\n".join(L) + "\n")
print("wrote", sys.argv[1], len(L), "lines; LDS", LDS_BYTES)
```

```python
import sys

KNAME = "recurrent_scan__gqa_block_cached__swiglu_ffn__decode_kernel"

class Cfg:
    R = 4
    NT = False
    DIAG = False
    SPIN = 1 << 22
    D = 2
    PAT = 2
    DH = 0
    L1TH = 8
    VS = 0
    FSL = 2
    D2 = 0
    U2 = 14
    TLB = 0
    PRIO = 2
    PROBE = -1
    PWG = 0
    CPF = 0
    ROT = 1
    LATE = 0
    WB = 0
    PS = 1
    PS1 = 2
    PRE = 0
    D0 = 1
    ID = 0
    IDF = 0
    PSL = 1
    NS = 6
    ND = 4
    NP = 4

cfg = Cfg()
for a in sys.argv[2:]:
    k, v = a.split("=")
    setattr(cfg, k, int(v))

R = cfg.R
L = []
def e(s): L.append("    " + s)
def lab(s): L.append(s + ":")
def c(s): L.append("    ; " + s)

QPART = 0x000000
GUPART = 0x040000
APART = 0x080000
AML = 0x180000
SPART = 0x200000
FPART = 0x300000
SFLAG = 0x190000
QFLAG = 0x1A0000
HFLAG = 0x1A2000
CNT = 0x1A3000
TSOFF = 0x400000
WS_BYTES = 0x500000

XN = 0
REDQ = XN + 4096
REDG = REDQ + 4096
QL = REDG + 4096
AO = QL + 2048
AMLL = AO + 16384
HL = AMLL + 256
OL = HL + 128
G2L = OL + 128
FLG = G2L + 64
RING = 32768
assert FLG + 64 <= RING
LDS_BYTES = RING + 4 * R * 8192
assert LDS_BYTES <= 163840, LDS_BYTES

S_WG = 2
S_WAVE = 3
SRD_X, SRD_K, SRD_V, SRD_WQ, SRD_WO, SRD_GU, SRD_WD, SRD_OUT, SRD_DBG, SRD_WS, SRD_FP = \
    [56 + 4 * i for i in range(11)]
def srd(b): return f"s[{b}:{b+3}]"
S_WB = 4
S_T0, S_T1, S_T2, S_T3 = 5, 6, 7, 8
S_BQ, S_BG, S_BKV, S_BD, S_BO = 9, 10, 11, 12, 13
S_SPIN = 14
S_T4 = 15
S_STAMP0 = 36
nstamp = [0]
in_stream = [True]

def stamp(kind=0):
    if not cfg.DIAG:
        return
    if in_stream[0] and cfg.VS != kind and kind != 2:
        return
    if in_stream[0] and cfg.DIAG == 3:
        return
    i = nstamp[0]
    assert i < 14
    e("s_memrealtime s[30:31]")
    e("s_waitcnt lgkmcnt(0)")
    e(f"s_mov_b32 s{S_STAMP0+i}, s30")
    nstamp[0] += 1

def stamp_flush(vtmp0, vtmp1, dbgmap=None):
    if not cfg.DIAG:
        return
    n = nstamp[0]
    if cfg.DIAG == 3:
        nstamp[0] = 0
        return
    if cfg.DIAG == 2:
        e("s_mov_b64 exec, 1")
        e(f"v_mov_b32 v{vtmp0}, 0")
        for (i, word, inv) in dbgmap:
            if inv:
                e(f"s_not_b32 s30, s{S_STAMP0+i}")
            else:
                e(f"s_mov_b32 s30, s{S_STAMP0+i}")
            e(f"v_mov_b32 v{vtmp1}, s30")
            e(f"buffer_atomic_umax v{vtmp1}, v{vtmp0}, {srd(SRD_DBG)}, 0 offen offset:{4*word} sc1")
            e("s_nop 1")
        e("s_mov_b64 exec, -1")
        nstamp[0] = 0
        return
    e(f"s_lshl_b32 s30, s{S_WG}, 3")
    e(f"s_add_u32 s30, s30, s{S_WAVE}")
    e("s_lshl_b32 s30, s30, 6")
    e(f"s_add_u32 s30, s30, {TSOFF}")
    e("s_mov_b64 exec, 1")
    e(f"v_mov_b32 v{vtmp0}, 0")
    for i in range(n):
        e(f"v_mov_b32 v{vtmp1}, s{S_STAMP0+i}")
        e(f"buffer_store_dword v{vtmp1}, v{vtmp0}, {srd(SRD_WS)}, s30 offen offset:{4*i}")
        e("s_nop 1")
    e("s_mov_b64 exec, -1")
    nstamp[0] = 0

NTF = " nt" if cfg.NT else ""

LOG2E = 0x3fb8aa3b
SCALE = 0x3db504f3

L.append(f"; @launch grid=(256,1,1) block=(512,1,1) lds={LDS_BYTES}")
L.append('.amdgcn_target "amdgcn-amd-amdhsa--gfx950"')
L.append(".text")
L.append(f".globl {KNAME}")
L.append(".p2align 8")
L.append(f".type {KNAME},@function")
lab(KNAME)
e(f"s_cmp_ge_u32 s{S_WG}, 256")
e("s_cbranch_scc1 L_end")
if cfg.DIAG == 3:
    e("s_memrealtime s[100:101]")
e("s_load_dwordx16 s[32:47], s[0:1], 0")
e("s_load_dwordx8 s[48:55], s[0:1], 64")
e("v_lshrrev_b32 v1, 6, v0")
e("v_and_b32 v0, 63, v0")
e(f"v_readfirstlane_b32 s{S_WAVE}, v1")
e(f"s_mov_b32 s{S_SPIN}, {cfg.SPIN}")
e("s_waitcnt lgkmcnt(0)")
def mk_srd(b, plo, nbytes):
    e(f"s_mov_b32 s{b}, s{plo}")
    e(f"s_mov_b32 s{b+1}, s{plo+1}")
    e(f"s_mov_b32 s{b+2}, {nbytes}")
    e(f"s_mov_b32 s{b+3}, 0x00020000")
mk_srd(SRD_X, 32, 4096)
mk_srd(SRD_K, 34, 0x4000000)
mk_srd(SRD_V, 36, 0x4000000)
mk_srd(SRD_WQ, 38, 0x800000)
mk_srd(SRD_WO, 40, 0x800000)
e(f"s_cmp_ge_u32 s{S_WG}, 112")
e(f"s_cselect_b32 s{SRD_GU}, s46, s44")
e(f"s_cselect_b32 s{SRD_GU+1}, s47, s45")
e(f"s_cmp_lt_u32 s{S_WG}, 224")
e(f"s_cselect_b32 s{SRD_GU+2}, 0x700000, 0")
e(f"s_mov_b32 s{SRD_GU+3}, 0x00020000")
mk_srd(SRD_WD, 48, 0x700000)
e(f"s_cmp_ge_u32 s{S_WG}, 32")
e(f"s_cselect_b32 s{SRD_WD+2}, 0x700000, 0")
mk_srd(SRD_OUT, 50, 4096)
mk_srd(SRD_DBG, 52, 256)
mk_srd(SRD_WS, 54, WS_BYTES)
e(f"s_add_u32 s{SRD_FP}, s54, {FPART}")
e(f"s_addc_u32 s{SRD_FP+1}, s55, 0")
e(f"s_mov_b32 s{SRD_FP+2}, {112*8192}")
e(f"s_mov_b32 s{SRD_FP+3}, 0x00020000")
e(f"s_cmp_ge_u32 s{S_WAVE}, 4")
e("s_cbranch_scc1 L_helper")

c("================ stream waves ================")
V_L = 0
V_G, V_I, V_T0, V_T1, V_T2, V_T3 = 1, 2, 3, 4, 5, 6
V_CV = 7
V_OWQ = 9
V_OGU = 11
V_OW2 = 13
V_OV = 15
V_OK = 17
V_KA = 21
V_VA = 25
V_XB = 33
V_RED = 34
V_ST = 35
V_MX = 36
V_LS = 37
V_MC = 38
V_T4 = 39
V_B = 40
V_A = 56
V_O = 88
NKU = cfg.NS
V_S = 120
V_X = V_S + 8*NKU
V_X2 = V_X + 32
V_CL = V_X2 + 32
V_AL = V_CL + 1
NV_STREAM = (V_CL + 6 + 7) // 8 * 8
assert NV_STREAM <= 256
POOL = (8 - cfg.NS) * 32
S_DYN = 18
S_GB = 24
S_CNT = 25

outstanding = []
def vm_issue(tag): outstanding.append(tag)
def vm_wait(tag):
    if tag not in outstanding:
        return
    idx = max(i for i, t in enumerate(outstanding) if t == tag)
    n = len(outstanding) - 1 - idx
    assert n <= 63
    e(f"s_waitcnt vmcnt({n})")
    del outstanding[:idx + 1]

e(f"v_lshrrev_b32 v{V_G}, 4, v{V_L}")
e(f"v_and_b32 v{V_I}, 15, v{V_L}")
e(f"s_mul_i32 s{S_WB}, s{S_WAVE}, {R*8192}")
e(f"s_add_u32 s{S_WB}, s{S_WB}, {RING}")
e(f"v_lshlrev_b32 v{V_T0}, 1, v{V_G}")
e(f"v_xor_b32 v{V_T0}, v{V_T0}, v{V_I}")
e(f"v_lshlrev_b32 v{V_CV}, 4, v{V_T0}")
e(f"v_xor_b32 v{V_CV+1}, 0x80, v{V_CV}")
def mk_off(dst, rs):
    e(f"v_mul_u32_u24 v{V_T0}, {rs}, v{V_G}")
    e(f"v_add_u32 v{dst}, v{V_T0}, v{V_CV}")
    e(f"v_add_u32 v{dst+1}, v{V_T0}, v{V_CV+1}")
mk_off(V_OWQ, 8192)
e(f"s_and_b32 s{S_T0}, s{S_WG}, 7")
e(f"s_lshl_b32 s{S_T0}, s{S_T0}, 2")
e(f"s_add_u32 s{S_T0}, s{S_T0}, s{S_WAVE}")
e(f"s_lshl_b32 s{S_BQ}, s{S_T0}, 18")
e(f"s_lshl_b32 s{S_T4}, s{S_T0}, 6")
e(f"s_lshr_b32 s{S_T1}, s{S_WG}, 3")
e(f"s_lshl_b32 s{S_T1}, s{S_T1}, 8")
e(f"s_add_u32 s{S_BQ}, s{S_BQ}, s{S_T1}")

def half_throttle():
    if cfg.DH > 0:
        keep = (cfg.DH - 1) * 4
        if len(outstanding) > keep:
            e(f"s_waitcnt vmcnt({keep})")
            del outstanding[:len(outstanding) - keep]
def dma_w(u, srd_b, sbase, extra, rs, voff):
    slot = u % R
    for jj in range(8):
        if jj % 4 == 0:
            half_throttle()
            e(f"s_add_u32 m0, s{S_WB}, {slot*8192 + (jj//4)*4096}")
        e(f"s_add_u32 s{S_T3}, s{sbase}, {extra + jj*4*rs - (jj&3)*1024}")
        e(f"buffer_load_dwordx4 v{voff + (jj&1)}, {srd(srd_b)}, s{S_T3} offen offset:{(jj&3)*1024}{NTF} lds")
        vm_issue(u)

def dma_kv(u, is_k, idx):
    slot = u % R
    for half in range(2):
        half_throttle()
        e(f"s_add_u32 m0, s{S_WB}, {slot*8192 + half*4096}")
        if idx < cfg.NS:
            e(f"s_add_u32 s{S_T3}, s{S_WIN[idx]}, {half*4096}")
        else:
            e(f"s_add_u32 s{S_T3}, s{S_DYN}, {half*4096}")
        for j4 in range(4):
            if is_k:
                e(f"buffer_load_dwordx4 v{V_OK + j4}, {srd(SRD_K)}, s{S_T3} offen offset:{j4*1024}{NTF} lds")
            else:
                e(f"buffer_load_dwordx4 v{V_OV + (j4&1)}, {srd(SRD_V)}, s{S_T3} offen offset:{j4*1024}{NTF} lds")
            vm_issue(u)

U_K0 = 3
U_V0 = U_K0 + NKU
U_VL = U_V0 + NKU - 1
NUNITS = U_VL + 1
SLOT_B = U_VL % R
SLOT_A = (SLOT_B + 1) % R
U_KD = U_VL + 1
U_WD = U_VL + 2
U_WO = U_VL + 3
U_VD = U_VL + 4
def claim():
    e(f"v_mov_b32 v{V_CL}, 1")
    e(f"v_mov_b32 v{V_CL+2}, 0")
    e("s_mov_b64 exec, 1")
    e(f"buffer_atomic_add v{V_CL}, v{V_CL+2}, {srd(SRD_WS)}, s{S_CNT} offen sc0 sc1")
    e("s_mov_b64 exec, -1")
    vm_issue("cl")
def issue_unit(u):
    if u >= NUNITS:
        return
    dd = cfg.D2 if (cfg.D2 and u >= cfg.U2) else cfg.D
    if (u - dd) in outstanding and u >= cfg.D0:
        vm_wait(u - dd)
    if u == 0:
        dma_w(u, SRD_WQ, S_BQ, 0, 8192, V_OWQ)
    elif u in (1, 2):
        dma_w(u, SRD_GU, S_BG, (u - 1) * 32 * 7168, 7168, V_OGU)
    elif u < U_V0:
        dma_kv(u, True, u - U_K0)
    else:
        dma_kv(u, False, u - U_V0)
        if u == U_VL:
            claim()

issue_unit(0)
mk_off(V_OGU, 7168)
e(f"s_and_b32 s{S_T0}, s{S_WG}, 3")
e(f"s_lshl_b32 s{S_T0}, s{S_T0}, 2")
e(f"s_add_u32 s{S_T0}, s{S_T0}, s{S_WAVE}")
e(f"s_mul_i32 s{S_BG}, s{S_T0}, {64*7168}")
e(f"s_lshl_b32 s{S_T2}, s{S_T0}, 7")
e(f"s_lshr_b32 s{S_T1}, s{S_WG}, 2")
e(f"s_cmp_ge_u32 s{S_T1}, 28")
e(f"s_cselect_b32 s{S_T0}, 28, 0")
e(f"s_sub_u32 s{S_T1}, s{S_T1}, s{S_T0}")
e(f"s_lshl_b32 s{S_T1}, s{S_T1}, 8")
e(f"s_add_u32 s{S_BG}, s{S_BG}, s{S_T1}")
S_XG = S_T2
S_XQ = S_T4
issue_unit(1)
if cfg.PAT == 0:
    e(f"s_lshl_b32 s{S_BKV}, s{S_WG}, 18")
    e(f"s_lshl_b32 s{S_T0}, s{S_WAVE}, 16")
    e(f"s_add_u32 s{S_BKV}, s{S_BKV}, s{S_T0}")
    KVSTRIDE = 8192
elif cfg.PAT == 1:
    e(f"s_lshl_b32 s{S_BKV}, s{S_WG}, 18")
    e(f"s_lshl_b32 s{S_T0}, s{S_WAVE}, 13")
    e(f"s_add_u32 s{S_BKV}, s{S_BKV}, s{S_T0}")
    KVSTRIDE = 32768
else:
    e(f"s_lshr_b32 s{S_BKV}, s{S_WG}, 5")
    e(f"s_lshl_b32 s{S_BKV}, s{S_BKV}, 23")
    e(f"s_and_b32 s{S_T0}, s{S_WG}, 31")
    e(f"s_lshl_b32 s{S_T0}, s{S_T0}, 2")
    e(f"s_add_u32 s{S_T0}, s{S_T0}, s{S_WAVE}")
    e(f"s_lshl_b32 s{S_T0}, s{S_T0}, 13")
    e(f"s_add_u32 s{S_BKV}, s{S_BKV}, s{S_T0}")
    KVSTRIDE = 1 << 20
S_WIN = [50, 51, 52, 53, 54, 55, 32, 33]
e(f"s_lshr_b32 s{S_T1}, s{S_WG}, 5")
e(f"s_mul_i32 s{S_T1}, s{S_T1}, {cfg.ROT}")
for idx in range(cfg.NS):
    e(f"s_add_u32 s{S_T0}, s{S_T1}, {idx}")
    e(f"s_and_b32 s{S_T0}, s{S_T0}, 7")
    e(f"s_lshl_b32 s{S_T0}, s{S_T0}, 20")
    e(f"s_add_u32 s{S_WIN[idx]}, s{S_BKV}, s{S_T0}")
e(f"s_lshr_b32 s{S_GB}, s{S_WG}, 5")
e(f"s_lshl_b32 s{S_GB}, s{S_GB}, 23")
e(f"s_lshr_b32 s{S_T0}, s{S_WG}, 3")
e(f"s_lshl_b32 s{S_CNT}, s{S_T0}, 7")
e(f"s_add_u32 s{S_CNT}, s{S_CNT}, {CNT}")
e(f"s_and_b32 s{S_T0}, s{S_T0}, 3")
e(f"s_mul_i32 s{S_T0}, s{S_T0}, {POOL}")
e(f"s_lshr_b32 s{S_T3}, s{S_T0}, 7")
e(f"s_add_u32 s{S_T1}, s{S_T1}, s{S_T3}")
e(f"s_add_u32 s{S_T1}, s{S_T1}, {cfg.NS}")
e(f"s_and_b32 s{S_T1}, s{S_T1}, 7")
e(f"s_lshl_b32 s{S_T1}, s{S_T1}, 20")
e(f"s_add_u32 s{S_GB}, s{S_GB}, s{S_T1}")
e(f"s_and_b32 s{S_T0}, s{S_T0}, 127")
e(f"s_lshl_b32 s{S_T0}, s{S_T0}, 13")
e(f"s_add_u32 s{S_GB}, s{S_GB}, s{S_T0}")
assert 128 % POOL == 0
assert cfg.PAT == 2
e(f"v_xor_b32 v{V_T0}, v{V_I}, v{V_G}")
e(f"v_lshlrev_b32 v{V_T1}, 8, v{V_G}")
for j4 in range(4):
    e(f"v_xor_b32 v{V_T2}, {4*j4}, v{V_T0}")
    e(f"v_lshl_add_u32 v{V_OK+j4}, v{V_T2}, 4, v{V_T1}")
mk_off(V_OV, 256)
mk_off(V_OW2, 2048)
e(f"s_max_u32 s{S_T0}, s{S_WG}, 32")
e(f"s_sub_u32 s{S_T0}, s{S_T0}, 32")
def mk_base2(dst, src):
    e(f"s_lshr_b32 s{S_T1}, s{src}, 1")
    e(f"s_lshl_b32 s{dst}, s{S_T1}, 16")
    e(f"s_and_b32 s{S_T1}, s{src}, 1")
    e(f"s_lshl_b32 s{S_T1}, s{S_T1}, 10")
    e(f"s_add_u32 s{dst}, s{dst}, s{S_T1}")
    e(f"s_lshl_b32 s{S_T1}, s{S_WAVE}, 8")
    e(f"s_add_u32 s{dst}, s{dst}, s{S_T1}")
mk_base2(S_BD, S_T0)
mk_base2(S_BO, S_WG)
e(f"v_xor_b32 v{V_T0}, v{V_I}, v{V_G}")
e(f"v_lshlrev_b32 v{V_T1}, 8, v{V_I}")
e(f"v_add_u32 v{V_T1}, s{S_WB}, v{V_T1}")
for ks in range(4):
    e(f"v_xor_b32 v{V_T2}, {4*ks}, v{V_T0}")
    e(f"v_lshl_add_u32 v{V_KA+ks}, v{V_T2}, 4, v{V_T1}")
e(f"v_lshrrev_b32 v{V_T0}, 2, v{V_L}")
e(f"v_lshlrev_b32 v{V_T1}, 8, v{V_T0}")
e(f"v_add_u32 v{V_T1}, s{S_WB}, v{V_T1}")
e(f"v_and_b32 v{V_T2}, 3, v{V_L}")
e(f"v_lshl_add_u32 v{V_T1}, v{V_T2}, 3, v{V_T1}")
e(f"v_and_b32 v{V_T0}, 7, v{V_T0}")
for t in range(8):
    e(f"v_xor_b32 v{V_T2}, {t}, v{V_T0}")
    e(f"v_lshl_add_u32 v{V_VA+t}, v{V_T2}, 5, v{V_T1}")
e(f"v_and_b32 v{V_T0}, 1, v{V_I}")
e(f"v_lshlrev_b32 v{V_T1}, 3, v{V_G}")
e(f"v_lshl_add_u32 v{V_XB}, v{V_T0}, 11, v{V_T1}")
e(f"v_lshlrev_b32 v{V_T1}, 4, v{V_G}")
e(f"v_lshl_add_u32 v{V_RED}, v{V_I}, 9, v{V_T1}")
e(f"v_lshlrev_b32 v{V_T1}, 4, v{V_I}")
e(f"v_lshl_add_u32 v{V_ST}, v{V_G}, 12, v{V_T1}")

def mask(m):
    e(f"s_mov_b32 exec_lo, {m & 0xffffffff:#x}")
    e(f"s_mov_b32 exec_hi, {(m >> 32) & 0xffffffff:#x}")
M_N2 = 0x0003000300030003
M_N8 = 0x00FF00FF00FF00FF

def gemv_unit(u, first, nxt=True):
    slot = u % R
    vm_wait(u)
    for t in range(8):
        e(f"ds_read_b64_tr_b16 v[{V_A+4*t}:{V_A+4*t+1}], v{V_VA+t} offset:{slot*8192}")
        e(f"ds_read_b64_tr_b16 v[{V_A+4*t+2}:{V_A+4*t+3}], v{V_VA+t} offset:{slot*8192+4096}")
        if t == 3:
            pass
    for t in range(8):
        if t % 2 == 0:
            e(f"s_waitcnt lgkmcnt({16 - 2*t - 4})")
        cc = "0" if first else f"v[{V_O+4*t}:{V_O+4*t+3}]"
        e(f"v_mfma_f32_16x16x32_bf16 v[{V_O+4*t}:{V_O+4*t+3}], v[{V_A+4*t}:{V_A+4*t+3}], v[{V_B}:{V_B+3}], {cc}")
    if nxt:
        issue_unit(u + R)

def read_b(vaddr_s, base):
    pass

for u in range(2, max(cfg.D, cfg.D0)):
    issue_unit(u)
nxt_issue = [max(2, cfg.D, cfg.D0)]
def pump(upto):
    while nxt_issue[0] <= upto:
        issue_unit(nxt_issue[0]); nxt_issue[0] += 1
stamp(2)
e("s_barrier")
c("---- q-proj unit ----")
e(f"v_add_u32 v{V_T3}, s{S_XQ}, v{V_XB}")
e(f"ds_read_b64 v[{V_B}:{V_B+1}], v{V_T3} offset:{XN}")
e(f"ds_read_b64 v[{V_B+2}:{V_B+3}], v{V_T3} offset:{XN+32}")
e(f"v_add_u32 v{V_T3}, s{S_XG}, v{V_XB}")
e(f"ds_read_b64 v[{V_B+4}:{V_B+5}], v{V_T3} offset:{XN}")
e(f"ds_read_b64 v[{V_B+6}:{V_B+7}], v{V_T3} offset:{XN+32}")
e(f"ds_read_b64 v[{V_B+8}:{V_B+9}], v{V_T3} offset:{XN+64}")
e(f"ds_read_b64 v[{V_B+10}:{V_B+11}], v{V_T3} offset:{XN+96}")
e("s_waitcnt lgkmcnt(0)")
gemv_unit(0, True, nxt=False)
e(f"s_lshl_b32 s{S_T0}, s{S_WAVE}, 10")
e(f"v_add_u32 v{V_T3}, s{S_T0}, v{V_RED}")
e("s_nop 7")
mask(M_N2)
for t in range(8):
    e(f"ds_write_b128 v{V_T3}, v[{V_O+4*t}:{V_O+4*t+3}] offset:{REDQ + t*64}")
e("s_mov_b64 exec, -1")
e("s_waitcnt lgkmcnt(0)")
stamp()
e("s_barrier")
pump(cfg.D)
c("---- gate/up units ----")
for k in range(4):
    e(f"v_mov_b32 v{V_B+k}, v{V_B+4+k}")
e("s_nop 1")
gemv_unit(1, True, nxt=False)
pump(1 + cfg.D)
e("s_nop 7")
for k in range(4):
    e(f"v_mov_b32 v{V_B+k}, v{V_B+8+k}")
e("s_nop 1")
gemv_unit(2, False, nxt=False)
e("s_nop 7")
mask(M_N2)
for t in range(8):
    e(f"ds_write_b128 v{V_T3}, v[{V_O+4*t}:{V_O+4*t+3}] offset:{REDG + t*64}")
e("s_mov_b64 exec, -1")
e("s_waitcnt lgkmcnt(0)")
e("s_barrier")
pump(2 + R)
PARK = [V_O, V_X, V_X2, V_A][:cfg.NP]
def k_frags(u, base):
    slot = u % R
    vm_wait(u)
    for tile in range(2):
        for ks in range(4):
            a = base + 16*tile + 4*ks
            e(f"ds_read_b128 v[{a}:{a+3}], v{V_KA+ks} offset:{slot*8192 + tile*4096}")
for ku in range(cfg.NP):
    k_frags(3 + ku, PARK[ku])
    e("s_waitcnt lgkmcnt(0)")
    pump(3 + ku + R)
stamp()
e("s_barrier")
stamp(2)
c("---- load q fragments ----")
e(f"v_and_b32 v{V_T0}, 7, v{V_I}")
e(f"v_lshlrev_b32 v{V_T1}, 4, v{V_G}")
e(f"v_lshl_add_u32 v{V_T0}, v{V_T0}, 8, v{V_T1}")
for ks in range(4):
    e(f"ds_read_b128 v[{V_B+4*ks}:{V_B+4*ks+3}], v{V_T0} offset:{QL + ks*64}")
e(f"s_mov_b32 s{S_T0}, {SCALE:#x}")
e(f"s_mov_b32 s{S_T1}, 0xffff0000")
e(f"v_mov_b32 v{V_MX}, 0xff800000")
e("s_waitcnt lgkmcnt(0)")

def score_post(base):
    for h in range(2):
        a, b = base + 2*h, base + 2*h + 1
        e(f"v_cvt_pk_bf16_f32 v{V_T2}, v{a}, v{b}")
        e(f"v_lshlrev_b32 v{a}, 16, v{V_T2}")
        e(f"v_and_b32 v{b}, s{S_T1}, v{V_T2}")
        e(f"v_mul_f32 v{a}, s{S_T0}, v{a}")
        e(f"v_mul_f32 v{b}, s{S_T0}, v{b}")
        e(f"v_cvt_pk_bf16_f32 v{V_T2}, v{a}, v{b}")
        e(f"v_lshlrev_b32 v{a}, 16, v{V_T2}")
        e(f"v_and_b32 v{b}, s{S_T1}, v{V_T2}")
        e(f"v_max3_f32 v{V_MX}, v{a}, v{b}, v{V_MX}")

c("---- K phase ----")
def k_mfma(base, d0, wait):
    for tile in range(2):
        d = d0 + tile * 4
        if wait:
            e(f"s_waitcnt lgkmcnt({4 - 4*tile})")
        for ks in range(4):
            a = base + 16*tile + 4*ks
            cc = "0" if ks == 0 else f"v[{d}:{d+3}]"
            e(f"v_mfma_f32_16x16x32_bf16 v[{d}:{d+3}], v[{a}:{a+3}], v[{V_B+4*ks}:{V_B+4*ks+3}], {cc}")
for ku in range(NKU):
    u = 3 + ku
    parked = ku < cfg.NP
    base = PARK[ku] if parked else V_A
    if not parked:
        k_frags(u, V_A)
    k_mfma(base, V_S + 8*ku, not parked)
    if not parked:
        pump(u + R)
    e("s_nop 7")
    score_post(V_S + (2*ku) * 4)
    score_post(V_S + (2*ku + 1) * 4)
stamp(2)
c("---- softmax ----")
def xswap(op, v, tmp):
    e(f"v_mov_b32 v{tmp}, v{v}")
    e("s_nop 1")
    e(f"v_permlane16_swap_b32 v{v}, v{tmp}")
    e(f"{op} v{v}, v{v}, v{tmp}")
    e(f"v_mov_b32 v{tmp}, v{v}")
    e("s_nop 1")
    e(f"v_permlane32_swap_b32 v{v}, v{tmp}")
    e(f"{op} v{v}, v{v}, v{tmp}")
xswap("v_max_f32", V_MX, V_T2)
e(f"s_mov_b32 s{S_T2}, {LOG2E:#x}")
e(f"v_mul_f32 v{V_MC}, s{S_T2}, v{V_MX}")
e(f"v_mov_b32 v{V_LS}, 0")
e(f"v_mov_b32 v{V_T4}, 0")
def exp_block(r0, n):
    for r in range(r0, r0 + n, 2):
        a, b = V_S + r, V_S + r + 1
        e(f"v_fma_f32 v{a}, v{a}, s{S_T2}, -v{V_MC}")
        e(f"v_fma_f32 v{b}, v{b}, s{S_T2}, -v{V_MC}")
        e(f"v_exp_f32 v{a}, v{a}")
        e(f"v_exp_f32 v{b}, v{b}")
        e("s_nop 0")
        e(f"v_add_f32 v{V_LS}, v{V_LS}, v{a}")
        e(f"v_add_f32 v{V_T4}, v{V_T4}, v{b}")
        e(f"v_cvt_pk_bf16_f32 v{V_S + (r//8)*8 + (r%8)//2}, v{a}, v{b}")
exp_block(0, 8*NKU)
e(f"v_add_f32 v{V_LS}, v{V_LS}, v{V_T4}")
stamp()
c("---- V phase ----")
def v_consume(slot, preg, first):
    for t in range(8):
        e(f"ds_read_b64_tr_b16 v[{V_A+4*t}:{V_A+4*t+1}], v{V_VA+t} offset:{slot*8192}")
        e(f"ds_read_b64_tr_b16 v[{V_A+4*t+2}:{V_A+4*t+3}], v{V_VA+t} offset:{slot*8192+4096}")
    for t in range(8):
        if t % 2 == 0:
            e(f"s_waitcnt lgkmcnt({16 - 2*t - 4})")
        cc = "0" if first else f"v[{V_O+4*t}:{V_O+4*t+3}]"
        e(f"v_mfma_f32_16x16x32_bf16 v[{V_O+4*t}:{V_O+4*t+3}], v[{V_A+4*t}:{V_A+4*t+3}], v[{preg}:{preg+3}], {cc}")
for vu in range(NKU - 1):
    u = U_V0 + vu
    vm_wait(u)
    v_consume(u % R, V_S + 8*vu, vu == 0)
    pump(u + R)
    stamp(1)
assert outstanding == [U_VL]*8 + ["cl"], outstanding
PD = V_S + 8*(NKU - 1)
e("s_waitcnt vmcnt(1)")
v_consume(SLOT_B, PD, False)
lab("L_dyn")
e("s_waitcnt vmcnt(0)")
del outstanding[:]
e(f"v_readfirstlane_b32 s{S_T3}, v{V_CL}")
e(f"s_add_u32 s{S_T3}, s{S_T3}, 1")
e(f"s_cmp_ge_u32 s{S_T3}, {POOL}")
e("s_cbranch_scc1 L_dyn_exit")
e(f"s_lshl_b32 s{S_T3}, s{S_T3}, 13")
e(f"s_add_u32 s{S_DYN}, s{S_T3}, s{S_GB}")
dma_kv(U_KD, True, 99)
dma_kv(U_VD, False, 99)
e("s_waitcnt vmcnt(8)")
claim()
del outstanding[:]
for tile in range(2):
    for ks in range(4):
        a = V_A + 16*tile + 4*ks
        e(f"ds_read_b128 v[{a}:{a+3}], v{V_KA+ks} offset:{SLOT_A*8192 + tile*4096}")
k_mfma(V_A, PD, True)
e("s_nop 7")
score_post(PD)
score_post(PD + 4)
xswap("v_max_f32", V_MX, V_T2)
e(f"v_mul_f32 v{V_T4}, s{S_T2}, v{V_MX}")
e(f"v_sub_f32 v{V_AL}, v{V_MC}, v{V_T4}")
e(f"v_exp_f32 v{V_AL}, v{V_AL}")
e(f"v_mov_b32 v{V_MC}, v{V_T4}")
e(f"v_mov_b32 v{V_T4}, 0")
e(f"v_mul_f32 v{V_LS}, v{V_LS}, v{V_AL}")
for r in range(32):
    e(f"v_mul_f32 v{V_O+r}, v{V_O+r}, v{V_AL}")
exp_block(8*(NKU - 1), 8)
e(f"v_add_f32 v{V_LS}, v{V_LS}, v{V_T4}")
e("s_waitcnt vmcnt(1)")
v_consume(SLOT_B, PD, False)
e("s_branch L_dyn")
lab("L_dyn_exit")
if cfg.LATE == 0:
    dma_w(U_WD, SRD_WD, S_BD, 0, 2048, V_OW2)
    dma_w(U_WO, SRD_WO, S_BO, 0, 2048, V_OW2)
if cfg.LATE == 3:
    dma_w(U_WD, SRD_WD, S_BD, 0, 2048, V_OW2)
xswap("v_add_f32", V_LS, V_T2)
c("---- write attention partial to LDS ----")
e(f"s_lshl_b32 s{S_T0}, s{S_WAVE}, 12")
e(f"v_add_u32 v{V_T3}, s{S_T0}, v{V_RED}")
e(f"s_lshl_b32 s{S_T0}, s{S_WAVE}, 3")
e(f"v_lshlrev_b32 v{V_T2}, 5, v{V_I}")
e(f"v_add_u32 v{V_T2}, s{S_T0}, v{V_T2}")
e(f"v_mov_b32 v{V_MX+1}, v{V_LS}") if V_LS != V_MX + 1 else None
e("s_nop 7")
mask(M_N8)
for t in range(8):
    e(f"ds_write_b128 v{V_T3}, v[{V_O+4*t}:{V_O+4*t+3}] offset:{AO + t*64}")
mask(0xFF)
e(f"ds_write_b64 v{V_T2}, v[{V_MX}:{V_MX+1}] offset:{AMLL}")
e("s_mov_b64 exec, -1")
e("s_waitcnt lgkmcnt(0)")
stamp()
e("s_barrier")
if cfg.LATE == 1:
    dma_w(U_WD, SRD_WD, S_BD, 0, 2048, V_OW2)
    dma_w(U_WO, SRD_WO, S_BO, 0, 2048, V_OW2)
if cfg.LATE == 2:
    dma_w(U_WD, SRD_WD, S_BD, 0, 2048, V_OW2)
    vm_wait(U_WD)
    dma_w(U_WO, SRD_WO, S_BO, 0, 2048, V_OW2)
if cfg.LATE == 3:
    vm_wait(U_WD)
    dma_w(U_WO, SRD_WO, S_BO, 0, 2048, V_OW2)
c("---- down-proj unit ----")
e(f"v_and_b32 v{V_T0}, 1, v{V_I}")
e(f"v_lshlrev_b32 v{V_T1}, 3, v{V_G}")
e(f"v_lshl_add_u32 v{V_T3}, v{V_T0}, 6, v{V_T1}")
e(f"ds_read_b64 v[{V_B}:{V_B+1}], v{V_T3} offset:{HL}")
e(f"ds_read_b64 v[{V_B+2}:{V_B+3}], v{V_T3} offset:{HL+32}")
e("s_waitcnt lgkmcnt(0)")
gemv_unit(U_WD, True, nxt=False)
def store_part(sb, region, oob_lt32):
    e("s_nop 7")
    for r in range(32):
        e(f"v_min_u32 v{V_O+r}, 0xfffffffe, v{V_O+r}")
    e(f"s_lshr_b32 s{S_T0}, s{sb}, 16")
    e(f"s_lshl_b32 s{S_T0}, s{S_T0}, 5")
    e(f"s_and_b32 s{S_T1}, s{sb}, 0xffff")
    e(f"s_lshl_b32 s{S_T1}, s{S_T1}, 9")
    e(f"s_add_u32 s{S_T0}, s{S_T0}, s{S_T1}")
    e(f"s_add_u32 s{S_T0}, s{S_T0}, {region}")
    if oob_lt32:
        e(f"s_cmp_lt_u32 s{S_WG}, 32")
        e(f"s_cselect_b32 s{S_T0}, 0x40000000, s{S_T0}")
    mask(M_N2)
    for t in range(8):
        e(f"buffer_store_dwordx4 v[{V_O+4*t}:{V_O+4*t+3}], v{V_ST}, {srd(SRD_WS)}, s{S_T0} offen sc1")
        vm_issue("st")
        if t < 7:
            e(f"s_add_u32 s{S_T0}, s{S_T0}, 16384")
    e("s_mov_b64 exec, -1")
store_part(S_BD, FPART, True)
if cfg.PRE:
    vm_wait(U_WO)
    for t in range(8):
        e(f"ds_read_b64_tr_b16 v[{V_A+4*t}:{V_A+4*t+1}], v{V_VA+t} offset:{(U_WO%R)*8192}")
        e(f"ds_read_b64_tr_b16 v[{V_A+4*t+2}:{V_A+4*t+3}], v{V_VA+t} offset:{(U_WO%R)*8192+4096}")
    e(f"v_and_b32 v{V_T0}, 1, v{V_I}")
    e(f"v_lshlrev_b32 v{V_T1}, 3, v{V_G}")
    e(f"v_lshl_add_u32 v{V_T3}, v{V_T0}, 6, v{V_T1}")
    e("s_waitcnt lgkmcnt(0)")
stamp()
e("s_barrier")
stamp()
c("---- wo unit ----")
if not cfg.PRE:
    e(f"v_and_b32 v{V_T0}, 1, v{V_I}")
    e(f"v_lshlrev_b32 v{V_T1}, 3, v{V_G}")
    e(f"v_lshl_add_u32 v{V_T3}, v{V_T0}, 6, v{V_T1}")
e(f"ds_read_b64 v[{V_B}:{V_B+1}], v{V_T3} offset:{OL}")
e(f"ds_read_b64 v[{V_B+2}:{V_B+3}], v{V_T3} offset:{OL+32}")
e("s_waitcnt lgkmcnt(0)")
if cfg.PRE:
    for t in range(8):
        e(f"v_mfma_f32_16x16x32_bf16 v[{V_O+4*t}:{V_O+4*t+3}], v[{V_A+4*t}:{V_A+4*t+3}], v[{V_B}:{V_B+3}], 0")
else:
    gemv_unit(U_WO, True, nxt=False)
stamp()
store_part(S_BO, SPART, False)
stamp()
if cfg.DIAG:
    e("s_waitcnt vmcnt(0)")
stamp()
stamp_flush(V_T0, V_T1, [(0,4,1),(0,5,0),(3,6,0),(4,7,0),(6,8,1),(6,9,0),(8,10,0),(11,11,0)])
e("s_endpgm")

in_stream[0] = False
lab("L_helper")
if cfg.PRIO:
    e(f"s_setprio {cfg.PRIO}")
c("================ helper waves ================")
S_HW = 4
H_T = 1
H_A, H_B, H_C, H_D, H_E = 2, 3, 4, 5, 6
H_XF = 8
H_NEG = 12
H_X = 16
H_R = 32
e(f"s_sub_u32 s{S_HW}, s{S_WAVE}, 4")
e(f"s_and_b32 s{S_T0}, s{S_HW}, 1")
e(f"s_lshl_b32 s{S_T1}, s{S_T0}, 11")
e(f"v_lshlrev_b32 v{H_A}, 5, v0")
e(f"buffer_load_dwordx4 v[{H_R}:{H_R+3}], v{H_A}, {srd(SRD_X)}, s{S_T1} offen")
e(f"buffer_load_dwordx4 v[{H_R+4}:{H_R+7}], v{H_A}, {srd(SRD_X)}, s{S_T1} offen offset:16")
e(f"s_lshl_b32 s{S_T2}, s{S_WG}, 3")
e(f"v_and_b32 v{H_B}, 1, v0")
e(f"v_lshlrev_b32 v{H_B}, 11, v{H_B}")
e(f"buffer_load_dwordx2 v[{H_XF}:{H_XF+1}], v{H_B}, {srd(SRD_X)}, s{S_T2} offen")
e(f"s_lshl_b32 s{S_T2}, s{S_HW}, 6")
e(f"v_add_u32 v{H_T}, s{S_T2}, v0")
for k in range(4):
    e(f"v_mov_b32 v{H_NEG+k}, -1")
e(f"v_mov_b32 v{H_C}, 0")
e(f"v_lshlrev_b32 v{H_D}, 2, v0")
e(f"v_and_b32 v{H_D}, 63, v{H_D}")
e(f"ds_write_b32 v{H_D}, v{H_C} offset:{FLG}")
if cfg.TLB:
    c("page pre-touch (helper 3)")
    e(f"s_cmp_lg_u32 s{S_HW}, 3")
    e("s_cbranch_scc1 L_h_notlb")
    e(f"v_lshlrev_b32 v{H_C}, {cfg.TLB}, v0")
    per = 64 << cfg.TLB
    k = 0
    for sr, nb in ((SRD_WQ, 8<<20), (SRD_GU, 7<<20), (SRD_K, 64<<20), (SRD_V, 64<<20), (SRD_WD, 7<<20), (SRD_WO, 8<<20), (SRD_WS, WS_BYTES)):
        for off in range(0, nb, per):
            e(f"s_mov_b32 s{S_T2}, {off}")
            e(f"buffer_load_dword v{H_R+16+(k%16)}, v{H_C}, {srd(sr)}, s{S_T2} offen")
            k += 1
    lab("L_h_notlb")
if cfg.CPF:
    c("code prefetch into L2 (helper 3)")
    e(f"s_cmp_lg_u32 s{S_HW}, 3")
    e("s_cbranch_scc1 L_h_nocpf")
    e("s_getpc_b64 s[30:31]")
    lab("L_pcref")
    e(f"s_sub_u32 s30, s30, L_pcref-{KNAME}")
    e("s_subb_u32 s31, s31, 0")
    e(f"v_lshlrev_b32 v{H_C}, 6, v0")
    for k in range(cfg.CPF):
        e(f"v_min_u32 v{H_D}, L_end-{KNAME}, v{H_C}")
        e(f"global_load_dword v{H_R+16+(k%16)}, v{H_D}, s[30:31]")
        e(f"v_add_u32 v{H_C}, 4096, v{H_C}")
    lab("L_h_nocpf")
c("bootstrap: WG 0 clears the flag area, then raises d_debug[0]")
e(f"v_lshlrev_b32 v{H_B}, 4, v{H_T}")
e(f"s_cmp_lg_u32 s{S_WG}, 0")
e("s_cbranch_scc1 L_h_noboot")
for k in range(4):
    e(f"s_mov_b32 s{S_T2}, {QFLAG + k*4096}")
    e(f"buffer_store_dwordx4 v[{H_NEG}:{H_NEG+3}], v{H_B}, {srd(SRD_WS)}, s{S_T2} offen sc1")
e("s_waitcnt vmcnt(0)")
e(f"s_lshl_b32 s{S_T2}, s{S_HW}, 2")
e(f"v_mov_b32 v{H_C}, 1")
e(f"v_mov_b32 v{H_D}, 0")
e("s_mov_b64 exec, 1")
e(f"buffer_store_dword v{H_C}, v{H_D}, {srd(SRD_DBG)}, s{S_T2} offen sc1")
e("s_mov_b64 exec, -1")
lab("L_h_noboot")
c("clear sentinels")
e(f"v_lshlrev_b32 v{H_B}, 4, v{H_T}")
e(f"s_lshl_b32 s{S_T2}, s{S_WG}, 12")
e(f"s_add_u32 s{S_T2}, s{S_T2}, {APART}")
e(f"buffer_store_dwordx4 v[{H_NEG}:{H_NEG+3}], v{H_B}, {srd(SRD_WS)}, s{S_T2} offen sc1")
e(f"s_lshl_b32 s{S_T2}, s{S_WG}, 12")
e(f"s_add_u32 s{S_T3}, s{S_T2}, {SPART}")
e(f"buffer_store_dwordx4 v[{H_NEG}:{H_NEG+3}], v{H_B}, {srd(SRD_WS)}, s{S_T3} offen sc1")
e(f"v_cmp_gt_u32 vcc, 224, v{H_T}")
e("s_nop 1")
for k in range(4):
    e(f"v_cndmask_b32 v{H_X+k}, 0, v{H_NEG}, vcc")
e(f"s_add_u32 s{S_T3}, s{S_T2}, {FPART}")
e(f"buffer_store_dwordx4 v[{H_X}:{H_X+3}], v{H_B}, {srd(SRD_WS)}, s{S_T3} offen sc1")
e(f"s_cmp_lg_u32 s{S_HW}, 0")
e("s_cbranch_scc1 L_h_skipml")
e(f"s_lshr_b32 s{S_T2}, s{S_WG}, 5")
e(f"s_lshl_b32 s{S_T2}, s{S_T2}, 11")
e(f"s_and_b32 s{S_T3}, s{S_WG}, 31")
e(f"s_lshl_b32 s{S_T3}, s{S_T3}, 3")
e(f"s_add_u32 s{S_T2}, s{S_T2}, s{S_T3}")
e(f"s_add_u32 s{S_T2}, s{S_T2}, {AML}")
e(f"v_lshlrev_b32 v{H_C}, 8, v0")
mask(0xFF)
e(f"buffer_store_dwordx2 v[{H_NEG}:{H_NEG+1}], v{H_C}, {srd(SRD_WS)}, s{S_T2} offen sc1")
e("s_mov_b64 exec, -1")
lab("L_h_skipml")

def dpp_reduce(op, regs, tmpbase, full=True):
    for pat in ["quad_perm:[1,0,3,2]", "quad_perm:[2,3,0,1]", "row_half_mirror", "row_mirror"]:
        if len(regs) < 3:
            e("s_nop 1")
        for r in regs:
            e(f"{op}_dpp v{r}, v{r}, v{r} {pat} row_mask:0xf bank_mask:0xf")
    swaps = ["v_permlane16_swap_b32"] + (["v_permlane32_swap_b32"] if full else [])
    for sw in swaps:
        for k, r in enumerate(regs):
            e(f"v_mov_b32 v{tmpbase+k}, v{r}")
        e("s_nop 1")
        for k, r in enumerate(regs):
            e(f"{sw} v{r}, v{tmpbase+k}")
        for k, r in enumerate(regs):
            e(f"{op} v{r}, v{r}, v{tmpbase+k}")

def bf16r(dst, src, tmp):
    e(f"v_cvt_pk_bf16_f32 v{tmp}, v{src}, v{src}")
    e(f"v_lshlrev_b32 v{dst}, 16, v{tmp}")

c("layernorm")
e("s_waitcnt vmcnt(3)")
e(f"s_mov_b32 s{S_T2}, 0xffff0000")
for k in range(8):
    e(f"v_lshlrev_b32 v{H_X+2*k}, 16, v{H_R+k}")
    e(f"v_and_b32 v{H_X+2*k+1}, s{S_T2}, v{H_R+k}")
e(f"v_add_f32 v{H_A}, v{H_X}, v{H_X+1}")
for k in range(2, 16):
    e(f"v_add_f32 v{H_A}, v{H_A}, v{H_X+k}")
dpp_reduce("v_add_f32", [H_A], H_B)
e(f"v_mul_f32 v{H_A}, 0x3a800000, v{H_A}")
e(f"v_mov_b32 v{H_C}, 0")
for k in range(16):
    e(f"v_sub_f32 v{H_D}, v{H_X+k}, v{H_A}")
    e(f"v_fmac_f32 v{H_C}, v{H_D}, v{H_D}")
dpp_reduce("v_add_f32", [H_C], H_B)
e(f"v_mul_f32 v{H_C}, 0x3a800000, v{H_C}")
bf16r(H_A, H_A, H_B)
bf16r(H_C, H_C, H_B)
e(f"v_add_f32 v{H_C}, 0x3727c5ac, v{H_C}")
bf16r(H_C, H_C, H_B)
e(f"v_sqrt_f32 v{H_C}, v{H_C}")
e("s_nop 0")
bf16r(H_C, H_C, H_B)
e(f"v_rcp_f32 v{H_D}, v{H_C}")
e("s_nop 0")
for k in range(0, 16, 2):
    a, b = H_X + k, H_X + k + 1
    e(f"v_sub_f32 v{a}, v{a}, v{H_A}")
    e(f"v_sub_f32 v{b}, v{b}, v{H_A}")
    e(f"v_cvt_pk_bf16_f32 v{H_B}, v{a}, v{b}")
    e(f"v_lshlrev_b32 v{a}, 16, v{H_B}")
    e(f"v_and_b32 v{b}, s{S_T2}, v{H_B}")
    for x in (a, b):
        e(f"v_mul_f32 v{H_E}, v{x}, v{H_D}")
        e(f"v_fma_f32 v{x}, -v{H_E}, v{H_C}, v{x}")
        e(f"v_fma_f32 v{x}, v{x}, v{H_D}, v{H_E}")
    e(f"v_cvt_pk_bf16_f32 v{H_R+k//2}, v{a}, v{b}")
e(f"v_lshlrev_b32 v{H_A}, 5, v0")
e(f"v_add_u32 v{H_A}, s{S_T1}, v{H_A}")
e(f"ds_write_b128 v{H_A}, v[{H_R}:{H_R+3}] offset:{XN}")
e(f"ds_write_b128 v{H_A}, v[{H_R+4}:{H_R+7}] offset:{XN+16}")
e("s_waitcnt lgkmcnt(0)")
stamp()
e("s_barrier")
e("s_barrier")
stamp()

def red_publish(red_off, soff_emit, cnt_off_emit, skip_store_if=None, tag=""):
    e(f"v_lshlrev_b32 v{H_A}, 4, v0")
    for w in range(4):
        e(f"ds_read_b128 v[{H_R+4*w}:{H_R+4*w+3}], v{H_A} offset:{red_off + w*1024}")
    e("s_waitcnt lgkmcnt(0)")
    for k in range(4):
        e(f"v_add_f32 v{H_R+k}, v{H_R+k}, v{H_R+4+k}")
        e(f"v_add_f32 v{H_R+8+k}, v{H_R+8+k}, v{H_R+12+k}")
    for k in range(4):
        e(f"v_add_f32 v{H_R+k}, v{H_R+k}, v{H_R+8+k}")
    soff_emit()
    if skip_store_if:
        skip_store_if("L_skipst" + tag)
    e(f"buffer_store_dwordx4 v[{H_R}:{H_R+3}], v{H_B}, {srd(SRD_WS)}, s{S_T2} offen sc1")
    if skip_store_if:
        lab("L_skipst" + tag)
    e(f"v_mov_b32 v{H_A}, 0")
    lab("L_boot" + tag)
    e(f"buffer_load_dwordx4 v[{H_R+4}:{H_R+7}], v{H_A}, {srd(SRD_DBG)}, 0 offen sc1")
    e("s_waitcnt vmcnt(0)")
    e(f"v_and_b32 v{H_R+4}, v{H_R+4}, v{H_R+5}")
    e(f"v_and_b32 v{H_R+6}, v{H_R+6}, v{H_R+7}")
    e(f"v_and_b32 v{H_R+4}, v{H_R+4}, v{H_R+6}")
    e(f"v_cmp_eq_u32 vcc, 0, v{H_R+4}")
    e(f"s_cbranch_vccz L_bootd{tag}")
    e("s_sleep 8")
    e(f"s_sub_u32 s{S_SPIN}, s{S_SPIN}, 1")
    e(f"s_cmp_lg_u32 s{S_SPIN}, 0")
    e(f"s_cbranch_scc1 L_boot{tag}")
    e(f"s_mov_b32 s{S_SPIN}, 1")
    lab("L_bootd" + tag)
    cnt_off_emit()
    e(f"v_mov_b32 v{H_A}, 0")
    e(f"buffer_store_dword v{H_A}, v{H_B}, {srd(SRD_WS)}, s{S_T2} offen sc1")
    e("s_mov_b64 exec, -1")

c("publish q partial (helper 0)")
e(f"s_cmp_lg_u32 s{S_HW}, 0")
e("s_cbranch_scc1 L_h_noq")
def q_soff():
    e(f"v_and_b32 v{H_B}, 31, v0")
    e(f"v_lshlrev_b32 v{H_B}, 4, v{H_B}")
    e(f"v_lshrrev_b32 v{H_C}, 5, v0")
    e(f"v_lshl_add_u32 v{H_B}, v{H_C}, 14, v{H_B}")
    e(f"s_and_b32 s{S_T2}, s{S_WG}, 7")
    e(f"s_lshl_b32 s{S_T2}, s{S_T2}, 15")
    e(f"s_lshr_b32 s{S_T3}, s{S_WG}, 3")
    e(f"s_lshl_b32 s{S_T3}, s{S_T3}, 9")
    e(f"s_add_u32 s{S_T2}, s{S_T2}, s{S_T3}")
    if QPART:
        e(f"s_add_u32 s{S_T2}, s{S_T2}, {QPART}")
def q_cnt():
    e(f"s_lshl_b32 s{S_T2}, s{S_WG}, 2")
    e(f"s_add_u32 s{S_T2}, s{S_T2}, {QFLAG}")
    e(f"v_lshlrev_b32 v{H_B}, 10, v0")
    mask(0xFF)
red_publish(REDQ, q_soff, q_cnt, None, "q")
e("s_branch L_h_q2")
lab("L_h_noq")
e("s_waitcnt vmcnt(0)")
lab("L_h_q2")
if cfg.WB:
    e(f"s_cmp_lg_u32 s{S_HW}, 3")
    e("s_cbranch_scc1 L_h_nowb")
    e(f"s_cmp_ge_u32 s{S_WG}, {cfg.WB}")
    e("s_cbranch_scc1 L_h_nowb")
    e("buffer_wbl2 sc1")
    lab("L_h_nowb")
stamp()
e("s_barrier")
c("publish gate/up partial (helper 1)")
e(f"s_cmp_lg_u32 s{S_HW}, 1")
e("s_cbranch_scc1 L_h_nog")
def g_soff():
    e(f"v_and_b32 v{H_B}, 31, v0")
    e(f"v_lshlrev_b32 v{H_B}, 4, v{H_B}")
    e(f"v_lshrrev_b32 v{H_C}, 5, v0")
    e(f"v_mul_u32_u24 v{H_C}, 14336, v{H_C}")
    e(f"v_add_u32 v{H_B}, v{H_C}, v{H_B}")
    e(f"s_lshr_b32 s{S_T3}, s{S_WG}, 2")
    e(f"s_cmp_ge_u32 s{S_T3}, 28")
    e(f"s_cselect_b32 s{S_T2}, 28, 0")
    e(f"s_sub_u32 s{S_T3}, s{S_T3}, s{S_T2}")
    e(f"s_lshr_b32 s{S_T2}, s{S_WG}, 2")
    e(f"s_cmp_ge_u32 s{S_T2}, 28")
    e(f"s_cselect_b32 s{S_T2}, 4, 0")
    e(f"s_and_b32 s{S_T4}, s{S_WG}, 3")
    e(f"s_add_u32 s{S_T2}, s{S_T2}, s{S_T4}")
    e(f"s_mul_i32 s{S_T2}, s{S_T2}, {2*14336}")
    e(f"s_lshl_b32 s{S_T3}, s{S_T3}, 9")
    e(f"s_add_u32 s{S_T2}, s{S_T2}, s{S_T3}")
    e(f"s_add_u32 s{S_T2}, s{S_T2}, {GUPART}")
def g_skip(l):
    e(f"s_cmp_ge_u32 s{S_WG}, 224")
    e(f"s_cbranch_scc1 {l}")
def g_cnt():
    e(f"s_lshl_b32 s{S_T2}, s{S_WG}, 2")
    e(f"s_add_u32 s{S_T2}, s{S_T2}, {HFLAG}")
    e(f"v_lshlrev_b32 v{H_B}, 10, v0")
    mask(0xF)
red_publish(REDG, g_soff, g_cnt, g_skip, "g")
lab("L_h_nog")

def lds_flag_wait(idx, name):
    lab(f"L_{name}_w")
    e(f"v_mov_b32 v{H_A}, 0")
    e(f"ds_read_b32 v{H_B}, v{H_A} offset:{FLG + 4*idx}")
    e("s_waitcnt lgkmcnt(0)")
    e(f"v_readfirstlane_b32 s{S_T2}, v{H_B}")
    e(f"s_cmp_lg_u32 s{S_T2}, 0")
    e(f"s_cbranch_scc1 L_{name}_d")
    e("s_sleep 1")
    e(f"s_sub_u32 s{S_SPIN}, s{S_SPIN}, 1")
    e(f"s_cmp_lg_u32 s{S_SPIN}, 0")
    e(f"s_cbranch_scc1 L_{name}_w")
    e(f"s_mov_b32 s{S_SPIN}, 1")
    e(f"s_branch L_{name}_d")

def lds_flag_set(idx):
    e(f"v_mov_b32 v{H_A}, 0")
    e(f"v_mov_b32 v{H_B}, 1")
    e(f"ds_write_b32 v{H_A}, v{H_B} offset:{FLG + 4*idx}")

c("wait for q counter")
e(f"s_cmp_lg_u32 s{S_HW}, 0")
e("s_cbranch_scc1 L_qf_w")
e(f"s_lshr_b32 s{S_T3}, s{S_WG}, 5")
e(f"s_and_b32 s{S_T3}, s{S_T3}, 3")
e(f"s_lshl_b32 s{S_T3}, s{S_T3}, 8")
e(f"s_and_b32 s{S_T2}, s{S_WG}, 7")
e(f"s_lshl_b32 s{S_T2}, s{S_T2}, 10")
e(f"s_add_u32 s{S_T3}, s{S_T3}, s{S_T2}")
e(f"s_add_u32 s{S_T3}, s{S_T3}, {QFLAG}")
e(f"v_lshlrev_b32 v{H_A}, 2, v0")
lab("L_qpoll")
e(f"buffer_load_dword v{H_B}, v{H_A}, {srd(SRD_WS)}, s{S_T3} offen sc1")
e("s_waitcnt vmcnt(0)")
e(f"v_cmp_eq_u32 vcc, -1, v{H_B}")
e("s_cbranch_vccz L_qpoll_d")
e("s_sleep 4")
e(f"s_sub_u32 s{S_SPIN}, s{S_SPIN}, 1")
e(f"s_cmp_lg_u32 s{S_SPIN}, 0")
e("s_cbranch_scc1 L_qpoll")
e(f"s_mov_b32 s{S_SPIN}, 1")
lab("L_qpoll_d")
lds_flag_set(0)
e("s_branch L_qf_d")
lds_flag_wait(0, "qf")
lab("L_qf_d")
stamp()
c("gather q")
e(f"s_lshr_b32 s{S_T2}, s{S_WG}, 5")
e(f"s_lshl_b32 s{S_T2}, s{S_T2}, 12")
e(f"v_lshlrev_b32 v{H_A}, 4, v{H_T}")
for ks in range(8):
    e(f"s_add_u32 s{S_T3}, s{S_T2}, {QPART + ks*32768}")
    e(f"buffer_load_dwordx4 v[{H_R+4*ks}:{H_R+4*ks+3}], v{H_A}, {srd(SRD_WS)}, s{S_T3} offen sc1")
e("s_waitcnt vmcnt(0)")
for ks in range(1, 8):
    for k in range(4):
        e(f"v_add_f32 v{H_R+k}, v{H_R+k}, v{H_R+4*ks+k}")
e(f"v_cvt_pk_bf16_f32 v{H_R}, v{H_R}, v{H_R+1}")
e(f"v_cvt_pk_bf16_f32 v{H_R+1}, v{H_R+2}, v{H_R+3}")
e(f"v_lshlrev_b32 v{H_A}, 3, v{H_T}")
e(f"ds_write_b64 v{H_A}, v[{H_R}:{H_R+1}] offset:{QL}")
e("s_waitcnt lgkmcnt(0)")
stamp()
e("s_barrier")
c("wait for h counter (helper 0), h gather (helper 1)")
e(f"s_cmp_eq_u32 s{S_HW}, 1")
e("s_cbranch_scc1 L_hf_w")
e(f"s_cmp_lg_u32 s{S_HW}, 0")
e("s_cbranch_scc1 L_h_b5")
e(f"v_lshlrev_b32 v{H_A}, 4, v0")
e(f"s_and_b32 s{S_T2}, s{S_WG}, 3")
e(f"s_lshl_b32 s{S_T2}, s{S_T2}, 10")
e(f"s_add_u32 s{S_T2}, s{S_T2}, {HFLAG}")
lab("L_hpoll")
e(f"buffer_load_dwordx4 v[{H_R}:{H_R+3}], v{H_A}, {srd(SRD_WS)}, s{S_T2} offen sc1")
e("s_waitcnt vmcnt(0)")
e(f"v_max3_u32 v{H_B}, v{H_R}, v{H_R+1}, v{H_R+2}")
e(f"v_max_u32 v{H_B}, v{H_B}, v{H_R+3}")
e(f"v_cmp_eq_u32 vcc, -1, v{H_B}")
e("s_cbranch_vccz L_hpoll_d")
e("s_sleep 16")
e(f"s_sub_u32 s{S_SPIN}, s{S_SPIN}, 1")
e(f"s_cmp_lg_u32 s{S_SPIN}, 0")
e("s_cbranch_scc1 L_hpoll")
e(f"s_mov_b32 s{S_SPIN}, 1")
lab("L_hpoll_d")
lds_flag_set(1)
e("s_branch L_h_b5")
lds_flag_wait(1, "hf")
lab("L_hf_d")
e(f"s_max_u32 s{S_T2}, s{S_WG}, 32")
e(f"s_sub_u32 s{S_T2}, s{S_T2}, 32")
e(f"s_lshr_b32 s{S_T2}, s{S_T2}, 1")
e(f"s_lshl_b32 s{S_T2}, s{S_T2}, 7")
e(f"v_and_b32 v{H_A}, 31, v0")
e(f"v_lshlrev_b32 v{H_A}, 2, v{H_A}")
e(f"v_lshrrev_b32 v{H_B}, 5, v0")
e(f"v_mul_u32_u24 v{H_B}, 14336, v{H_B}")
e(f"v_add_u32 v{H_A}, v{H_A}, v{H_B}")
for m in range(8):
    e(f"s_add_u32 s{S_T3}, s{S_T2}, {GUPART + m*2*14336}")
    e(f"buffer_load_dword v{H_R+m}, v{H_A}, {srd(SRD_WS)}, s{S_T3} offen sc1")
e("s_waitcnt vmcnt(0)")
for m in (0, 4):
    e(f"v_add_f32 v{H_R+m}, v{H_R+m}, v{H_R+m+1}")
    e(f"v_add_f32 v{H_R+m+2}, v{H_R+m+2}, v{H_R+m+3}")
    e(f"v_add_f32 v{H_R+m}, v{H_R+m}, v{H_R+m+2}")
    bf16r(H_R + m, H_R + m, H_B)
def silu(dst, src, t):
    e(f"v_mul_f32 v{t}, 0xbfb8aa3b, v{src}")
    e(f"v_exp_f32 v{t}, v{t}")
    e("s_nop 0")
    e(f"v_add_f32 v{t}, 1.0, v{t}")
    e(f"v_rcp_f32 v{t}, v{t}")
    e("s_nop 0")
    e(f"v_mul_f32 v{dst}, v{src}, v{t}")
silu(H_R, H_R, H_B)
bf16r(H_R, H_R, H_B)
e(f"v_mul_f32 v{H_R}, v{H_R}, v{H_R+4}")
e(f"v_cvt_pk_bf16_f32 v{H_R}, v{H_R}, v{H_R}")
e(f"v_lshlrev_b32 v{H_A}, 1, v0")
e(f"ds_write_b16 v{H_A}, v{H_R} offset:{HL}")
e("s_waitcnt lgkmcnt(0)")
lab("L_h_b5")
e("s_waitcnt lgkmcnt(0)")
stamp()
def spin_tail(back, sl=1):
    if sl:
        e(f"s_sleep {sl}")
    e(f"s_sub_u32 s{S_SPIN}, s{S_SPIN}, 1")
    e(f"s_cmp_lg_u32 s{S_SPIN}, 0")
    e(f"s_cbranch_scc1 {back}")
    e(f"s_mov_b32 s{S_SPIN}, 1")
def mailbox(region, name, sl):
    e(f"s_lshl_b32 s{S_T2}, s{S_WG}, 12")
    e(f"s_add_u32 s{S_T2}, s{S_T2}, {region}")
    e(f"v_lshlrev_b32 v{H_A}, 4, v0")
    lab(f"L_{name}")
    for k in range(4):
        e(f"buffer_load_dwordx4 v[{H_R+4*k}:{H_R+4*k+3}], v{H_A}, {srd(SRD_WS)}, s{S_T2} offen offset:{1024*k} sc1")
    e("s_waitcnt vmcnt(0)")
    e(f"v_max3_u32 v{H_D}, v{H_R}, v{H_R+1}, v{H_R+2}")
    e(f"v_max3_u32 v{H_E}, v{H_R+3}, v{H_R+4}, v{H_R+5}")
    e(f"v_max3_u32 v{H_D}, v{H_D}, v{H_R+6}, v{H_R+7}")
    e(f"v_max3_u32 v{H_E}, v{H_E}, v{H_R+8}, v{H_R+9}")
    e(f"v_max3_u32 v{H_D}, v{H_D}, v{H_R+10}, v{H_R+11}")
    e(f"v_max3_u32 v{H_E}, v{H_E}, v{H_R+12}, v{H_R+13}")
    e(f"v_max3_u32 v{H_D}, v{H_D}, v{H_R+14}, v{H_R+15}")
    e(f"v_max_u32 v{H_D}, v{H_D}, v{H_E}")
    e(f"v_cmp_eq_u32 vcc, -1, v{H_D}")
    e(f"s_cbranch_vccz L_{name}_d")
    spin_tail(f"L_{name}", sl)
    lab(f"L_{name}_d")
    for k in range(4):
        e(f"v_add_f32 v{H_R+k}, v{H_R+k}, v{H_R+4+k}")
        e(f"v_add_f32 v{H_R+8+k}, v{H_R+8+k}, v{H_R+12+k}")
    for k in range(4):
        e(f"v_add_f32 v{H_R+k}, v{H_R+k}, v{H_R+8+k}")
    regs = [H_R + k for k in range(4)]
    for pat in ["quad_perm:[2,3,0,1]", "row_ror:4", "row_ror:8"]:
        for r in regs:
            e(f"v_add_f32_dpp v{r}, v{r}, v{r} {pat} row_mask:0xf bank_mask:0xf")
    for sw in ["v_permlane16_swap_b32", "v_permlane32_swap_b32"]:
        for k, r in enumerate(regs):
            e(f"v_mov_b32 v{H_X+k}, v{r}")
        e("s_nop 1")
        for k, r in enumerate(regs):
            e(f"{sw} v{r}, v{H_X+k}")
        for k, r in enumerate(regs):
            e(f"v_add_f32 v{r}, v{r}, v{H_X+k}")
stamp()
e("s_barrier")
stamp()
c("combine 4 waves' attention partials, publish")
e(f"v_lshrrev_b32 v{H_A}, 5, v{H_T}")
e(f"v_lshlrev_b32 v{H_B}, 5, v{H_A}")
e(f"ds_read_b128 v[{H_X}:{H_X+3}], v{H_B} offset:{AMLL}")
e(f"ds_read_b128 v[{H_X+4}:{H_X+7}], v{H_B} offset:{AMLL+16}")
e(f"v_lshlrev_b32 v{H_C}, 4, v{H_T}")
for w in range(4):
    e(f"ds_read_b128 v[{H_R+4*w}:{H_R+4*w+3}], v{H_C} offset:{AO + w*4096}")
e(f"s_mov_b32 s{S_T3}, {LOG2E:#x}")
e("s_waitcnt lgkmcnt(4)")
e(f"v_max3_f32 v{H_D}, v{H_X}, v{H_X+2}, v{H_X+4}")
e(f"v_max_f32 v{H_D}, v{H_D}, v{H_X+6}")
for w in range(4):
    e(f"v_sub_f32 v{H_X+2*w}, v{H_X+2*w}, v{H_D}")
    e(f"v_mul_f32 v{H_X+2*w}, s{S_T3}, v{H_X+2*w}")
    e(f"v_exp_f32 v{H_X+2*w}, v{H_X+2*w}")
e("s_nop 0")
e(f"v_mul_f32 v{H_E}, v{H_X}, v{H_X+1}")
for w in range(1, 4):
    e(f"v_fmac_f32 v{H_E}, v{H_X+2*w}, v{H_X+2*w+1}")
e("s_waitcnt lgkmcnt(0)")
for k in range(4):
    e(f"v_mul_f32 v{H_R+k}, v{H_X}, v{H_R+k}")
for w in range(1, 4):
    for k in range(4):
        e(f"v_fmac_f32 v{H_R+k}, v{H_X+2*w}, v{H_R+4*w+k}")
for k in range(4):
    e(f"v_min_u32 v{H_R+k}, 0xfffffffe, v{H_R+k}")
e(f"v_min_u32 v{H_D}, 0xfffffffe, v{H_D}")
e(f"v_min_u32 v{H_E}, 0xfffffffe, v{H_E}")
e(f"s_lshl_b32 s{S_T2}, s{S_WG}, 12")
e(f"s_add_u32 s{S_T2}, s{S_T2}, {APART}")
e(f"buffer_store_dwordx4 v[{H_R}:{H_R+3}], v{H_C}, {srd(SRD_WS)}, s{S_T2} offen sc1")
e(f"s_lshr_b32 s{S_T2}, s{S_WG}, 5")
e(f"s_lshl_b32 s{S_T2}, s{S_T2}, 11")
e(f"s_and_b32 s{S_T3}, s{S_WG}, 31")
e(f"s_lshl_b32 s{S_T3}, s{S_T3}, 3")
e(f"s_add_u32 s{S_T2}, s{S_T2}, s{S_T3}")
e(f"s_add_u32 s{S_T2}, s{S_T2}, {AML}")
e(f"v_lshlrev_b32 v{H_B}, 8, v{H_A}")
assert H_E == H_D + 1
e(f"v_mov_b32 v{H_X+8}, v{H_D}")
e(f"v_mov_b32 v{H_X+9}, v{H_E}")
mask(0x0000000100000001)
e(f"buffer_store_dwordx2 v[{H_X+8}:{H_X+9}], v{H_B}, {srd(SRD_WS)}, s{S_T2} offen sc1")
e("s_mov_b64 exec, -1")
stamp()
c("level-1 gather")
e(f"s_lshr_b32 s{S_T0}, s{S_HW}, 1")
e(f"s_lshl_b32 s{S_T0}, s{S_T0}, 2")
e(f"s_lshr_b32 s{S_T1}, s{S_WG}, 6")
e(f"s_add_u32 s{S_T0}, s{S_T0}, s{S_T1}")
e(f"s_lshr_b32 s{S_T1}, s{S_WG}, 3")
e(f"s_and_b32 s{S_T1}, s{S_T1}, 7")
e(f"s_lshl_b32 s{S_T2}, s{S_T0}, 17")
e(f"s_lshl_b32 s{S_T3}, s{S_T1}, 9")
e(f"s_add_u32 s{S_T2}, s{S_T2}, s{S_T3}")
e(f"s_lshr_b32 s{S_T3}, s{S_WG}, 1")
e(f"s_and_b32 s{S_T3}, s{S_T3}, 3")
e(f"s_lshl_b32 s{S_T3}, s{S_T3}, 7")
e(f"s_add_u32 s{S_T2}, s{S_T2}, s{S_T3}")
e(f"s_and_b32 s{S_T3}, s{S_HW}, 1")
e(f"s_lshl_b32 s{S_T3}, s{S_T3}, 6")
e(f"s_add_u32 s{S_T2}, s{S_T2}, s{S_T3}")
e(f"s_add_u32 s{S_T2}, s{S_T2}, {APART}")
e(f"s_lshl_b32 s{S_T3}, s{S_T0}, 11")
e(f"s_lshl_b32 s{S_T1}, s{S_T1}, 8")
e(f"s_add_u32 s{S_T3}, s{S_T3}, s{S_T1}")
e(f"s_add_u32 s{S_T3}, s{S_T3}, {AML}")
e(f"v_and_b32 v{H_A}, 31, v0")
e(f"v_lshrrev_b32 v{H_B}, 5, v0")
e(f"v_lshlrev_b32 v{H_C}, 3, v{H_A}")
e(f"v_lshlrev_b32 v{H_B}, 5, v{H_B}")
e(f"v_lshl_add_u32 v{H_B}, v{H_A}, 12, v{H_B}")
lab("L_l1f")
e(f"buffer_load_dwordx2 v[{H_R+8}:{H_R+9}], v{H_C}, {srd(SRD_WS)}, s{S_T3} offen sc1")
e("s_waitcnt vmcnt(0)")
e(f"v_max_u32 v{H_D}, v{H_R+8}, v{H_R+9}")
e(f"v_cmp_eq_u32 vcc, -1, v{H_D}")
e(f"s_bcnt1_i32_b64 s{S_T1}, vcc")
e(f"s_cmp_le_u32 s{S_T1}, {cfg.L1TH}")
e("s_cbranch_scc1 L_l1poll")
spin_tail("L_l1f", cfg.PS1)
lab("L_l1poll")
e(f"buffer_load_dwordx4 v[{H_R}:{H_R+3}], v{H_B}, {srd(SRD_WS)}, s{S_T2} offen sc1")
e(f"buffer_load_dwordx4 v[{H_R+4}:{H_R+7}], v{H_B}, {srd(SRD_WS)}, s{S_T2} offen offset:16 sc1")
e(f"buffer_load_dwordx2 v[{H_R+8}:{H_R+9}], v{H_C}, {srd(SRD_WS)}, s{S_T3} offen sc1")
e("s_waitcnt vmcnt(0)")
e(f"v_max3_u32 v{H_D}, v{H_R}, v{H_R+1}, v{H_R+2}")
e(f"v_max3_u32 v{H_E}, v{H_R+3}, v{H_R+4}, v{H_R+5}")
e(f"v_max3_u32 v{H_D}, v{H_D}, v{H_R+6}, v{H_R+7}")
e(f"v_max3_u32 v{H_E}, v{H_E}, v{H_R+8}, v{H_R+9}")
e(f"v_max_u32 v{H_D}, v{H_D}, v{H_E}")
e(f"v_cmp_eq_u32 vcc, -1, v{H_D}")
e("s_cbranch_vccz L_l1poll_d")
spin_tail("L_l1poll", cfg.PSL)
lab("L_l1poll_d")
stamp()
e(f"v_mov_b32 v{H_D}, v{H_R+8}")
dpp_reduce("v_max_f32", [H_D], H_X, full=False)
e(f"s_mov_b32 s{S_T1}, {LOG2E:#x}")
e(f"v_sub_f32 v{H_D}, v{H_R+8}, v{H_D}")
e(f"v_mul_f32 v{H_D}, s{S_T1}, v{H_D}")
e(f"v_exp_f32 v{H_D}, v{H_D}")
e("s_nop 0")
for k in range(8):
    e(f"v_mul_f32 v{H_R+k}, v{H_D}, v{H_R+k}")
e(f"v_mul_f32 v{H_R+8}, v{H_D}, v{H_R+9}")
dpp_reduce("v_add_f32", [H_R + k for k in range(9)], H_X, full=False)
e(f"v_rcp_f32 v{H_D}, v{H_R+8}")
e("s_nop 0")
for k in range(8):
    e(f"v_mul_f32 v{H_R+k}, v{H_D}, v{H_R+k}")
for k in range(4):
    e(f"v_cvt_pk_bf16_f32 v{H_R+k}, v{H_R+2*k}, v{H_R+2*k+1}")
e(f"s_lshl_b32 s{S_T1}, s{S_HW}, 5")
e(f"v_lshrrev_b32 v{H_A}, 5, v0")
e(f"v_lshlrev_b32 v{H_A}, 4, v{H_A}")
e(f"v_add_u32 v{H_A}, s{S_T1}, v{H_A}")
mask(0x0000000100000001)
e(f"ds_write_b128 v{H_A}, v[{H_R}:{H_R+3}] offset:{OL}")
e("s_mov_b64 exec, -1")
e("s_waitcnt lgkmcnt(0)")
stamp()
e("s_barrier")
c("f gather (helper 2)")
e(f"s_cmp_lg_u32 s{S_HW}, 2")
e("s_cbranch_scc1 L_h_nof")
if cfg.IDF:
    e(f"s_sleep {cfg.IDF}")
mailbox(FPART, "fmb", cfg.FSL)
for k in range(4):
    bf16r(H_R + k, H_R + k, H_B)
    silu(H_R + k, H_R + k, H_B)
    bf16r(H_R + k, H_R + k, H_B)
mask(0x3)
e(f"ds_write_b128 v{H_A}, v[{H_R}:{H_R+3}] offset:{G2L}")
e("s_mov_b64 exec, -1")
e("s_waitcnt lgkmcnt(0)")
lds_flag_set(2)
e("s_branch L_h_end")
lab("L_h_nof")
c("level-2")
e(f"s_cmp_lg_u32 s{S_HW}, 0")
e("s_cbranch_scc1 L_h_end")
e(f"v_and_b32 v{H_C}, 1, v0")
if cfg.ID:
    e(f"s_sleep {cfg.ID}")
mailbox(SPART, "smb", cfg.PS)
stamp()
lds_flag_wait(2, "g2f")
lab("L_g2f_d")
e(f"v_lshlrev_b32 v{H_B}, 4, v{H_C}")
e(f"ds_read_b128 v[{H_X+8}:{H_X+11}], v{H_B} offset:{G2L}")
e(f"s_mov_b32 s{S_T2}, 0xffff0000")
e(f"v_lshlrev_b32 v{H_X}, 16, v{H_XF}")
e(f"v_and_b32 v{H_X+1}, s{S_T2}, v{H_XF}")
e(f"v_lshlrev_b32 v{H_X+2}, 16, v{H_XF+1}")
e(f"v_and_b32 v{H_X+3}, s{S_T2}, v{H_XF+1}")
e("s_waitcnt lgkmcnt(0)")
for k in range(4):
    bf16r(H_R + k, H_R + k, H_B)
    e(f"v_mul_f32 v{H_R+k}, v{H_R+k}, v{H_X+8+k}")
    bf16r(H_R + k, H_R + k, H_B)
    e(f"v_add_f32 v{H_R+k}, v{H_X+k}, v{H_R+k}")
e(f"v_cvt_pk_bf16_f32 v{H_R}, v{H_R}, v{H_R+1}")
e(f"v_cvt_pk_bf16_f32 v{H_R+1}, v{H_R+2}, v{H_R+3}")
e(f"s_lshl_b32 s{S_T0}, s{S_WG}, 3")
e(f"v_lshlrev_b32 v{H_A}, 11, v{H_C}")
mask(0x3)
e(f"buffer_store_dwordx2 v[{H_R}:{H_R+1}], v{H_A}, {srd(SRD_OUT)}, s{S_T0} offen")
e("s_mov_b64 exec, -1")
stamp()
if cfg.DIAG == 2:
    stamp_flush(H_A, H_B, [(4,12,0),(9,13,0),(11,14,0),(12,15,0)])
if cfg.DIAG == 3 and cfg.PROBE >= 0:
    e(f"s_cmp_lg_u32 s{S_WG}, {cfg.PWG}")
    e("s_cbranch_scc1 L_h_end")
    e(f"s_sub_u32 s{S_T0}, s{S_STAMP0+cfg.PROBE}, s100")
    e(f"s_add_u32 s{S_T0}, s{S_T0}, s{S_STAMP0+12}")
    lab("L_probe")
    e("s_memrealtime s[30:31]")
    e("s_waitcnt lgkmcnt(0)")
    e(f"s_sub_u32 s{S_T1}, s30, s{S_T0}")
    e(f"s_cmp_lt_i32 s{S_T1}, 0")
    e("s_cbranch_scc1 L_probe")
lab("L_h_end")
if cfg.DIAG == 1:
    stamp_flush(H_A, H_B)
lab("L_end")
e("s_endpgm")

L.append('.section .rodata,"a"')
L.append(".p2align 6")
L.append(f".amdhsa_kernel {KNAME}")
L.append(f"  .amdhsa_next_free_vgpr {NV_STREAM}")
L.append("  .amdhsa_next_free_sgpr 102")
L.append(f"  .amdhsa_accum_offset {NV_STREAM}")
L.append("  .amdhsa_group_segment_fixed_size 0")
L.append("  .amdhsa_kernarg_size 96")
L.append("  .amdhsa_user_sgpr_count 2")
L.append("  .amdhsa_user_sgpr_kernarg_segment_ptr 1")
L.append("  .amdhsa_system_sgpr_workgroup_id_x 1")
L.append(".end_amdhsa_kernel")
open(sys.argv[1], "w").write("\n".join(L) + "\n")
print("wrote", sys.argv[1], len(L), "lines; LDS", LDS_BYTES)
```
